```python
import torch

def _softmax(x, axis=-1):
    return torch.softmax(x, dim=axis)
def _gelu(x):
    return torch.nn.functional.gelu(x, approximate="tanh")
def _silu(x):
    return torch.nn.functional.silu(x)
def _sigmoid(x):
    return torch.sigmoid(x)
def _layernorm(x, axis=-1, eps=1e-5):
    m = x.mean(dim=axis, keepdim=True)
    v = x.var(dim=axis, keepdim=True, unbiased=False)
    return (x - m) / torch.sqrt(v + eps)
def _scatter_add(tgt, idx, src, axis=0):
    return tgt.clone().index_add_(axis, idx, src)
def _segment_sum(src, seg, n):
    out = torch.zeros((n,) + src.shape[1:], dtype=src.dtype)
    return out.index_add_(0, seg, src)
def _pad(x, pw):
    flat = tuple(v for pair in reversed(pw) for v in pair)
    return torch.nn.functional.pad(x, flat)

kernel_name = 'parallel_sum__sliding_block_cached__dense_activation_silu__decode'

def setup_inputs():

    _w = (lambda a: (lambda t: t.to(torch.bfloat16) if t.is_floating_point() else t)(torch.as_tensor(a)))
    def _A_setup():
        B, Sq, D = 4, 1, 576
        Hq, Hkv, Sk, Dh = 32, 16, 8192, 128
        assert Hq % Hkv == 0, (Hq, Hkv)
        return {
            "x": _w((lambda *s: torch.randn(*s, dtype=torch.bfloat16) * 0.05)(B, Sq, D)),
            "k_cache": _w((lambda *s: torch.randn(*s, dtype=torch.bfloat16) * 3.2)(B, Hkv, Sk, Dh)),
            "v_cache": _w((lambda *s: torch.randn(*s, dtype=torch.bfloat16) * 0.8)(B, Hkv, Sk, Dh)),
            "wq": _w((lambda *s: torch.randn(*s, dtype=torch.bfloat16) * 3.2)(D, Hq * Dh) * (D ** -0.5)),
            "wo": _w((lambda *s: torch.randn(*s, dtype=torch.bfloat16) * 0.8)(Hq * Dh, D) * ((Hq * Dh) ** -0.5)),
        }
    _A_in = _A_setup()

    def _B_setup():
        B, S, D, F = 4, 1, 576, 4608
        return {
            "x": _w((lambda *s: torch.randn(*s, dtype=torch.bfloat16) * 0.05)(B, S, D)),
            "w1": _w((lambda *s: torch.randn(*s, dtype=torch.bfloat16) * 3.2)(D, F) * (D ** -0.5)),
            "w2": _w((lambda *s: torch.randn(*s, dtype=torch.bfloat16) * 0.4)(F, D) * (F ** -0.5)),
        }
    _B_in = _B_setup()

    return {
        "A_x": _A_in["x"],
        "A_k_cache": _A_in["k_cache"],
        "A_v_cache": _A_in["v_cache"],
        "A_wq": _A_in["wq"],
        "A_wo": _A_in["wo"],
        "B_x": _B_in["x"],
        "B_w1": _B_in["w1"],
        "B_w2": _B_in["w2"],
    }

def reference(A_x, A_k_cache, A_v_cache, A_wq, A_wo, B_x, B_w1, B_w2):
    def _A_ref(x, k_cache, v_cache, wq, wo):
        B, Sq, D = x.shape
        Hq, Dh = 32, 128
        Hkv, Sk = k_cache.shape[1], k_cache.shape[2]
        W = min(4096, max(256, Sk // 4))
        rep = Hq // Hkv
        q = (lambda x, *d: x.permute(*d))((x @ wq).reshape(B, Sq, Hq, Dh), 0, 2, 1, 3)
        k = (lambda x, n, axis: torch.repeat_interleave(x, n, dim=axis))(k_cache[:, :, Sk - W:, :], rep, axis=1)
        v = (lambda x, n, axis: torch.repeat_interleave(x, n, dim=axis))(v_cache[:, :, Sk - W:, :], rep, axis=1)
        scores = torch.einsum("bhqd,bhkd->bhqk", q, k) * (Dh ** -0.5)
        p = _softmax(scores, axis=-1)
        o = torch.einsum("bhqk,bhkd->bhqd", p, v)
        return (lambda x, *d: x.permute(*d))(o, 0, 2, 1, 3).reshape(B, Sq, Hq * Dh) @ wo

    def _B_ref(x, w1, w2):
        h = torch.einsum("bsd,df->bsf", x, w1)
        h = _silu(h)
        out = torch.einsum("bsf,fd->bsd", h, w2)
        return out

    x = A_x
    xn = _layernorm(x, axis=-1)
    return x + _A_ref(xn, A_k_cache, A_v_cache, A_wq, A_wo) + _B_ref(xn, B_w1, B_w2)
```

```python
import re

TRANS = ("v_exp_f32", "v_log_f32", "v_rcp_f32", "v_rsq_f32", "v_sqrt_f32", "v_sin_f32", "v_cos_f32")

def regs_of(tok):
    tok = tok.strip()
    tok = tok.lstrip("-")
    m = re.fullmatch(r"abs\((.*)\)", tok)
    if m: tok = m.group(1)
    tok = tok.strip("|")
    m = re.fullmatch(r"([vas])(\d+)", tok)
    if m: return {(m.group(1), int(m.group(2)))}
    m = re.fullmatch(r"([vas])\[(\d+):(\d+)\]", tok)
    if m: return {(m.group(1), i) for i in range(int(m.group(2)), int(m.group(3)) + 1)}
    if tok in ("vcc", "vcc_lo", "vcc_hi"): return {("s", "vcc")}
    if tok in ("exec", "exec_lo", "exec_hi"): return {("s", "exec")}
    if tok == "m0": return {("s", "m0")}
    return set()

class Ins:
    def __init__(self, text):
        self.text = text
        parts = text.split(None, 1)
        self.op = op = parts[0]
        rest = parts[1] if len(parts) > 1 else ""
        toks = [t.strip() for t in rest.split(",")]
        if toks:
            toks[-1] = toks[-1].split()[0] if toks[-1].split() else ""
        rest2 = re.split(r"\s(?:op_sel|op_sel_hi|neg_lo|neg_hi|row_|quad_perm|offset|offen|bitop3|nt\b|sc0|sc1|lds\b)", " " + rest, 1)[0]
        toks = [t.strip() for t in rest2.split(",") if t.strip()]
        R = [regs_of(t) for t in toks]
        self.w = set(); self.r = set(); self.c = set()
        self.valu = op.startswith("v_") and not op.startswith("v_mfma")
        self.mfma = op.startswith("v_mfma")
        self.salu = op.startswith("s_")
        self.vmem = op.startswith(("buffer_", "global_"))
        self.ds = op.startswith("ds_")
        self.dpp = "_dpp" in op or "row_" in rest or "quad_perm" in rest
        self.trans = op.replace("_e32", "").replace("_e64", "") in TRANS
        self.perml = op.startswith("v_permlane")
        self.dma = self.vmem and re.search(r"\blds\b", rest) is not None
        self.store = self.vmem and ("store" in op or "atomic" in op)
        self.wide_store = self.store and ("x4" in op or "x3" in op)
        self.states = 1
        if op == "s_nop": self.states = int(toks[0], 0) + 1
        U = lambda xs: set().union(*xs) if xs else set()
        if self.mfma:
            self.w = R[0]; self.r = U(R[1:]); self.ab = R[1] | R[2]; self.c = R[3] if len(R) > 3 else set()
        elif self.perml:
            self.w = U(R); self.r = U(R)
        elif self.valu:
            self.w = R[0]; self.r = U(R[1:])
            if op.startswith(("v_fmac", "v_writelane", "v_dot2c")) or self.dpp: self.r |= R[0]
            if op.startswith(("v_add_co", "v_addc_co", "v_sub_co")): self.w |= R[1]
            if op.startswith("v_cmpx"): self.w |= {("s", "exec")}
        elif self.vmem:
            if self.store or self.dma: self.r = U(R)
            else: self.w = R[0]; self.r = U(R[1:])
            if self.dma: self.r |= {("s", "m0")}
            self.data = R[0] if op.startswith("buffer_") else (R[1] if len(R) > 1 else set())
        elif self.ds:
            if "read" in op or "permute" in op or "swizzle" in op: self.w = R[0]; self.r = U(R[1:])
            else: self.r = U(R)
        elif self.salu:
            if op.startswith(("s_cmp", "s_cbranch", "s_branch", "s_waitcnt", "s_barrier", "s_nop", "s_sleep", "s_endpgm", "s_setprio")): self.r = U(R)
            else:
                self.w = R[0] if R else set(); self.r = U(R[1:])
                if "saveexec" in op: self.w |= {("s", "exec")}

def need(p, c):
    n = 0
    vw = {x for x in p.w if x[0] in "va"}; sw = {x for x in p.w if x[0] == "s"}
    if p.valu:
        if c.mfma and vw & c.r: n = max(n, 2)
        if c.perml and vw & c.r: n = max(n, 2)
        if c.valu and c.dpp and vw & c.r: n = max(n, 2)
        if c.op.startswith(("v_readlane", "v_readfirstlane")) and vw & c.r: n = max(n, 1)
        if p.trans and c.valu and vw & c.r: n = max(n, 1)
        if p.trans and (c.ds or c.vmem) and vw & c.r: n = max(n, 1)
        if sw & c.r:
            if c.valu: n = max(n, 4 if c.op.startswith(("v_readlane", "v_writelane")) else 2)
            if c.vmem: n = max(n, 5)
            if c.salu: n = max(n, 1)
        if ("s", "exec") in sw:
            if c.dpp: n = max(n, 5)
            if c.mfma or c.perml or c.op.startswith(("v_readlane", "v_readfirstlane", "v_writelane")): n = max(n, 4)
    if p.mfma:
        big = "32x32" in p.op
        if c.mfma:
            if vw & c.ab: n = max(n, 12 if big else 8)
            if vw & c.c and vw != c.c: n = max(n, 10 if big else 6)
            if vw & c.c and vw == c.c and p.op != c.op: n = max(n, 10 if big else 6)
        elif (c.valu or c.vmem or c.ds) and vw & (c.r | c.w): n = max(n, 12 if big else 8)
        if c.valu and p.c & c.w: n = max(n, 7 if big else 3)
    if p.salu and ("s", "m0") in p.w and (c.dma or c.op.startswith("v_writelane") or c.op.startswith("v_readlane")) and ("s", "m0") in c.r: n = max(n, 1)
    if p.wide_store and p.data & c.w: n = max(n, 2)
    return n

class Asm:
    def __init__(self):
        self.lines = []; self.hist = []; self.vm = []; self.nops = 0
    def raw(self, t): self.lines.append(t)
    def label(self, name):
        self.lines.append(name + ":")
    def __call__(self, text):
        for t in text.split("\n"):
            t = t.strip()
            if t: self.ins(t)
    def ins(self, text):
        i = Ins(text)
        dist = 0; pad = 0
        for p in reversed(self.hist[-24:]):
            pad = max(pad, need(p, i) - dist)
            dist += p.states
        if pad > 0:
            n = Ins(f"s_nop {pad-1}"); self.lines.append("    " + n.text); self.hist.append(n); self.nops += 1
        self.lines.append("    " + text); self.hist.append(i)
        if i.vmem:
            self.vm.append(i); return len(self.vm) - 1
    def vmem(self, text):
        return self.ins(text)
    def wait_vm(self, seq, extra=""):
        n = sum(1 for x in self.vm[seq + 1:] if not x.store)
        assert n <= 63
        self.ins(f"s_waitcnt vmcnt({n}) {extra}".strip())
    def text(self): return "\n".join(self.lines) + "\n"

class VAlloc:
    def __init__(self, lo, hi):
        self.free = set(range(lo, hi)); self.top = 0
    def get(self, n=1, align=None):
        align = align or (1 if n == 1 else 2)
        for s in sorted(self.free):
            if s % align == 0 and all(s + k in self.free for k in range(n)):
                for k in range(n): self.free.remove(s + k)
                self.top = max(self.top, s + n)
                return s
        raise RuntimeError("out of vgprs")
    def put(self, s, n=1):
        for k in range(n):
            assert s + k not in self.free
            self.free.add(s + k)
def vr(s, n): return f"v[{s}:{s+n-1}]" if n > 1 else f"v{s}"
def ar(s, n): return f"a[{s}:{s+n-1}]" if n > 1 else f"a{s}"
def sr(s, n): return f"s[{s}:{s+n-1}]" if n > 1 else f"s{s}"
```

```python
import sys, struct
from asmlib import *
NAME = "parallel_sum__sliding_block_cached__dense_activation_silu__decode"

def f2u(x): return struct.unpack("<I", struct.pack("<f", x))[0]
LOG2E = f2u(1.4426950408889634)
SCALE = f2u(128 ** -0.5)
OOB = 0x40000000
WS_H1, H1S = 0x1000, 2304
WS_H2, H2S = 0x100000, 1152
WS_H3, H3S = 0x180000, 2304
WS_ST = 0x400000
L_WQ = 131072 - 20480; L_WO = L_WQ
L_XN = 131072; L_Q = L_XN + 1152; L_H = L_Q + 512; L_ML = L_H + 640; L_O = L_ML + 128
L_W1 = 134144; L_W2 = L_W1
L_OP = 0
LDS_BYTES = L_W1 + 24576

HEADER = open("cdna_kernels/" + NAME + ".s.ref").read().split("; Override launch")[0]

def gen(D=8, nt="nt", stamps=False, rot=True, scramble=False, spin=20000, wnt=None):
    if wnt is None: wnt = nt
    A = Asm(); V = VAlloc(1, 256)
    A.raw(HEADER.rstrip("\n"))
    A.raw(f"; @launch grid=(256,1,1) block=(256,1,1) lds={LDS_BYTES}")
    A.raw('.amdgcn_target "amdgcn-amd-amdhsa--gfx950"')
    A.raw(".text"); A.raw(f".globl {NAME}_kernel"); A.raw(".p2align 8"); A.raw(f".type {NAME}_kernel,@function")
    A.label(f"{NAME}_kernel")
    sW = 3
    pX, pK, pV, pWQ, pWO, pW1, pW2, pOUT, pWS = 4, 6, 8, 10, 12, 16, 18, 20, 24
    dX, dK, dV, dWQ, dW1, dW2, dWO, dWS, dOUT = 28, 32, 36, 40, 44, 48, 52, 56, 60
    sG, sS, sB, sHKV, sBOX, sRot, sSo, sE, sT0, sT1, sT2 = 64, 65, 66, 67, 68, 69, 70, 71, 72, 73, 74
    sSel = 76
    sSelA, sSelB = 80, 81
    sU1, sU2 = 82, 84
    sSpin = 86; sC = 87; sPC = 26; sM = 88; sP = 90
    sSt = 98
    vSt = V.get() if stamps else None
    nst = [0]
    def stamp():
        if stamps:
            A(f"s_memrealtime s[{sSt}:{sSt+1}]"); A("s_waitcnt lgkmcnt(0)"); A(f"v_writelane_b32 v{vSt}, s{sSt}, {nst[0]}"); nst[0] += 1
    def srd(d, p, off_s, nrec):
        if off_s is None:
            A(f"s_mov_b32 s{d}, s{p}"); A(f"s_mov_b32 s{d+1}, s{p+1}")
        else:
            A(f"s_add_u32 s{d}, s{p}, s{off_s}"); A(f"s_addc_u32 s{d+1}, s{p+1}, 0")
        A(f"s_mov_b32 s{d+2}, {nrec}"); A(f"s_mov_b32 s{d+3}, 0x20000")

    A("s_cmp_ge_u32 s2, 256"); A("s_cbranch_scc1 L_end")
    A("s_load_dwordx16 s[4:19], s[0:1], 0")
    A("s_load_dwordx2 s[20:21], s[0:1], 64")
    A("s_load_dwordx2 s[24:25], s[0:1], 80")
    if stamps: A(f"s_memrealtime s[{sSt}:{sSt+1}]")
    vJ = V.get(); vPa = V.get(2)
    A(f"s_getpc_b64 s[{sPC}:{sPC+1}]")
    A.label("L_pc")
    A(f"v_lshlrev_b32 v{vPa}, 6, v0")
    A(f"v_min_u32 v{vPa}, L_end-L_pc, v{vPa}")
    A(f"v_mov_b32 v{vPa+1}, s{sPC+1}")
    A(f"v_add_co_u32 v{vPa}, vcc, s{sPC}, v{vPa}")
    A(f"v_addc_co_u32 v{vPa+1}, vcc, 0, v{vPa+1}, vcc")
    A.vmem(f"global_load_dword v{vJ}, {vr(vPa,2)}, off")
    vL = V.get(); t0 = V.get(); t1 = V.get(); t2 = V.get(); t3 = V.get()
    A(f"v_lshrrev_b32 v{t0}, 6, v0")
    A(f"v_and_b32 v{vL}, 63, v0")
    A(f"v_readfirstlane_b32 s{sW}, v{t0}")
    if scramble:
        A(f"s_lshr_b32 s{sG}, s2, 2"); A(f"s_and_b32 s{sS}, s2, 3")
    else:
        A(f"s_and_b32 s{sT0}, s2, 7"); A(f"s_bfe_u32 s{sT1}, s2, 0x30003"); A(f"s_lshl3_add_u32 s{sG}, s{sT0}, s{sT1}")
        A(f"s_lshr_b32 s{sS}, s2, 6")
    vX = V.get(); vWq = V.get()
    A(f"v_lshlrev_b32 v{vX}, 5, v{vL}")
    A(f"v_lshrrev_b32 v{t0}, 3, v0"); A(f"v_and_b32 v{t1}, 7, v0"); A(f"v_lshlrev_b32 v{t1}, 4, v{t1}")
    A(f"v_lshl_or_b32 v{vWq}, v{t0}, 13, v{t1}")
    A(f"s_mul_i32 s{sT0}, s{sW}, 1152")
    A(f"s_mul_i32 s{sT1}, s{sS}, {144*8192}"); A(f"s_lshl_b32 s{sT2}, s{sG}, 7"); A(f"s_add_u32 s{sT1}, s{sT1}, s{sT2}")
    A(f"s_lshl_b32 s{sM}, s{sW}, 10")
    A(f"s_add_u32 m0, s{sM}, {L_WQ}")
    A("s_waitcnt lgkmcnt(0)")
    if stamps: A(f"v_writelane_b32 v{vSt}, s{sSt}, 0"); nst[0] = 1
    srd(dX, pX, sT0, 1152)
    xr = V.get(8, 4)
    x0 = A.vmem(f"buffer_load_dwordx4 {vr(xr,4)}, v{vX}, {sr(dX,4)}, 0 offen")
    x1 = A.vmem(f"buffer_load_dwordx4 {vr(xr+4,4)}, v{vX}, {sr(dX,4)}, 0 offen offset:16")
    srd(dWQ, pWQ, sT1, 143 * 8192 + 128)
    for r in range(5):
        if r:
            A("s_addk_i32 m0, 0x1000"); A(f"v_add_u32 v{vWq}, 0x40000, v{vWq}")
        A.vmem(f"buffer_load_dwordx4 v{vWq}, {sr(dWQ,4)}, 0 offen {wnt} lds")
    A(f"s_load_dword s{sE}, s[{pWS}:{pWS+1}], 0")
    A(f"s_mul_i32 s{sT1}, s{sS}, {144*9216}"); A(f"s_mul_i32 s{sT2}, s{sG}, 144"); A(f"s_add_u32 s{sT1}, s{sT1}, s{sT2}")
    srd(dW1, pW1, sT1, 143 * 9216 + 144)
    def ragged_dma(d, lbase, rounds, magic, rowpad, flags):
        vP16 = V.get(); vMul = V.get(); vo = V.get()
        def mk(r):
            def f():
                if r == 0:
                    A(f"v_lshlrev_b32 v{vP16}, 4, v0"); A(f"v_mul_u32_u24 v{vMul}, {magic}, v0")
                else:
                    A(f"v_add_u32 v{vP16}, 0x1000, v{vP16}"); A(f"v_add_u32 v{vMul}, {magic*256}, v{vMul}")
                A(f"s_movk_i32 s{sC}, {rowpad}")
                A(f"v_lshrrev_b32 v{vo}, 16, v{vMul}")
                A(f"s_add_u32 m0, s{sM}, {lbase + r*4096}")
                A(f"v_mad_u32_u24 v{vo}, v{vo}, s{sC}, v{vP16}")
                q = A.vmem(f"buffer_load_dwordx4 v{vo}, {sr(d,4)}, 0 offen {flags} lds")
                if r == rounds - 1:
                    V.put(vP16); V.put(vMul); V.put(vo)
                return q
            return f
        return [mk(r) for r in range(rounds)]
    for f in ragged_dma(dW1, L_W1, 6, 7282, 9072, wnt): lastA = f()
    V.put(vWq); V.put(vX); V.put(vPa, 2)
    stamp()
    A(f"s_and_b32 s{sB}, s{sG}, 3"); A(f"s_lshr_b32 s{sHKV}, s{sG}, 2")
    A(f"s_lshl4_add_u32 s{sT0}, s{sB}, s{sHKV}"); A(f"s_lshl_b32 s{sT0}, s{sT0}, 21")
    A(f"s_lshl_b32 s{sT1}, s{sS}, 17"); A(f"s_add_u32 s{sT0}, s{sT0}, s{sT1}"); A(f"s_add_u32 s{sT0}, s{sT0}, {6144*256}")
    srd(dK, pK, sT0, 131072); srd(dV, pV, sT0, 131072)
    srd(dWS, pWS, None, 0x800000)
    A(f"s_lshl2_add_u32 s{sBOX}, s{sG}, s{sS}")
    if rot: A(f"s_lshl_b32 s{sRot}, s2, 12"); A(f"s_and_b32 s{sRot}, s{sRot}, 0x1f000")
    else: A(f"s_mov_b32 s{sRot}, 0")
    vG = V.get(); vI = V.get()
    A(f"v_lshrrev_b32 v{vG}, 4, v{vL}"); A(f"v_and_b32 v{vI}, 15, v{vL}")
    vKo = V.get(4); vVo = V.get()
    A(f"v_lshlrev_b32 v{vVo}, 4, v0")
    A(f"v_lshlrev_b32 v{t0}, 6, v{vG}"); A(f"v_xor_b32 v{vKo}, v{vVo}, v{t0}")
    for i in range(1, 4): A(f"v_xor_b32 v{vKo+i}, {i*16}, v{vKo}")
    kseq = []; vseq = []
    def pace(d=None): A(f"s_waitcnt vmcnt({(d or D)-1})")
    def so(j):
        if j == 0: A(f"s_mov_b32 s{sSo}, s{sRot}")
        else: A(f"s_addk_i32 s{sSo}, 0x1000"); A(f"s_and_b32 s{sSo}, s{sSo}, 0x1f000")
    def stepK(n=1):
        for _ in range(n):
            j = len(kseq)
            A(f"s_add_u32 m0, s{sM}, {j*4096}"); so(j); pace()
            kseq.append(A.vmem(f"buffer_load_dwordx4 v{vKo + (j & 3)}, {sr(dK,4)}, s{sSo} offen {nt} lds"))
    def stepV(n=1, d=None):
        for _ in range(n):
            j = len(vseq)
            so(j); pace(d)
            vseq.append(A.vmem(f"buffer_load_dwordx4 {ar(4*j,4)}, v{vVo}, {sr(dV,4)}, s{sSo} offen {nt}"))
    def allred_groups(v, t, op):
        A(f"v_mov_b32 v{t}, v{v}"); A(f"v_permlane16_swap_b32 v{v}, v{t}"); A(f"{op} v{v}, v{v}, v{t}")
        A(f"v_mov_b32 v{t}, v{v}"); A(f"v_permlane32_swap_b32 v{v}, v{t}"); A(f"{op} v{v}, v{v}, v{t}")
    def allred64(v, t):
        for k in (8, 4, 2, 1): A(f"v_add_f32_dpp v{v}, v{v}, v{v} row_ror:{k} row_mask:0xf bank_mask:0xf")
        allred_groups(v, t, "v_add_f32")
    def unpack(dst, src, n):
        for k in range(n):
            A(f"v_and_b32 v{dst+2*k+1}, 0xffff0000, v{src+k}"); A(f"v_lshlrev_b32 v{dst+2*k}, 16, v{src+k}")
    A.wait_vm(x1)
    stamp()
    xf = V.get(16); d16 = V.get(16); p2 = V.get(2); pm = V.get(2)
    unpack(xf, xr, 8)
    A(f"v_pk_add_f32 {vr(p2,2)}, {vr(xf,2)}, {vr(xf+2,2)}")
    for k in range(2, 8): A(f"v_pk_add_f32 {vr(p2,2)}, {vr(p2,2)}, {vr(xf+2*k,2)}")
    A(f"v_add_f32 v{pm}, v{p2}, v{p2+1}")
    allred64(pm, t0)
    A(f"v_mul_f32 v{pm}, {hex(f2u(1/576))}, v{pm}")
    for k in range(8): A(f"v_pk_add_f32 {vr(d16+2*k,2)}, {vr(xf+2*k,2)}, {vr(pm,2)} op_sel_hi:[1,0] neg_lo:[0,1] neg_hi:[0,1]")
    A(f"v_pk_mul_f32 {vr(p2,2)}, {vr(d16,2)}, {vr(d16,2)}")
    for k in range(1, 8): A(f"v_pk_fma_f32 {vr(p2,2)}, {vr(d16+2*k,2)}, {vr(d16+2*k,2)}, {vr(p2,2)}")
    A(f"v_cmp_gt_u32 vcc, 36, v{vL}")
    A(f"v_add_f32 v{t1}, v{p2}, v{p2+1}")
    A(f"v_cndmask_b32 v{t1}, 0, v{t1}, vcc")
    allred64(t1, t0)
    A(f"v_mul_f32 v{t1}, {hex(f2u(1/576))}, v{t1}")
    A(f"v_cvt_pk_bf16_f32 v{t0}, v{pm}, v{t1}")
    A(f"v_lshlrev_b32 v{pm}, 16, v{t0}"); A(f"v_and_b32 v{t1}, 0xffff0000, v{t0}")
    A(f"v_add_f32 v{t1}, {hex(f2u(1e-5))}, v{t1}")
    A(f"v_cvt_pk_bf16_f32 v{t1}, v{t1}, v{t1}"); A(f"v_lshlrev_b32 v{t1}, 16, v{t1}")
    A(f"v_sqrt_f32 v{t1}, v{t1}")
    A(f"v_cvt_pk_bf16_f32 v{t1}, v{t1}, v{t1}"); A(f"v_lshlrev_b32 v{t1}, 16, v{t1}")
    A(f"v_rcp_f32 v{p2}, v{t1}")
    stepK(1)
    for k in range(8): A(f"v_pk_add_f32 {vr(d16+2*k,2)}, {vr(xf+2*k,2)}, {vr(pm,2)} op_sel_hi:[1,0] neg_lo:[0,1] neg_hi:[0,1]")
    for k in range(8): A(f"v_cvt_pk_bf16_f32 v{xr+k}, v{d16+2*k}, v{d16+2*k+1}")
    unpack(xf, xr, 8)
    for k in range(8): A(f"v_pk_mul_f32 {vr(xf+2*k,2)}, {vr(xf+2*k,2)}, {vr(p2,2)} op_sel_hi:[1,0]")
    for k in range(8): A(f"v_cvt_pk_bf16_f32 v{xr+k}, v{xf+2*k}, v{xf+2*k+1}")
    A(f"s_mul_i32 s{sT0}, s{sS}, 9"); A(f"s_sub_u32 s{sT1}, s{sW}, s{sS}"); A(f"s_mul_i32 s{sT1}, s{sT1}, 288"); A(f"s_add_u32 s{sT1}, s{sT1}, {L_XN}")
    A(f"v_lshl_add_u32 v{t0}, v{vL}, 5, s{sT1}")
    A(f"s_lshl_b64 exec, 0x1ff, s{sT0}")
    A(f"ds_write_b128 v{t0}, {vr(xr,4)}"); A(f"ds_write_b128 v{t0}, {vr(xr+4,4)} offset:16")
    A("s_mov_b64 exec, -1")
    V.put(xf, 16); V.put(d16, 16); V.put(p2, 2); V.put(pm, 2)
    stepK(1)
    A("s_waitcnt lgkmcnt(0)")
    V.put(xr, 8)
    vT = V.get()
    A(f"s_add_u32 s{sE}, s{sE}, 1"); A(f"s_mul_i32 s{sT0}, s{sE}, 0x9E3779B1"); A(f"v_mov_b32 v{vT}, s{sT0}")
    for r in range(4): A(f"s_mov_b32 s{sSel+r}, {hex(0x07060500 + r)}")
    A(f"s_mov_b32 s{sSelA}, 0x0c0c0400"); A(f"s_mov_b32 s{sSelB}, 0x04000c0c")
    A(f"s_mov_b32 s{sU1}, 0x00f000f0"); A(f"s_mov_b32 s{sU1+1}, 0x00f000f0")
    A(f"s_mov_b32 s{sU2}, 0x0f000f00"); A(f"s_mov_b32 s{sU2+1}, 0x0f000f00")
    A(f"s_mov_b32 s{sSpin}, {spin}")
    def tag(v):
        for r in range(4): A(f"v_perm_b32 v{v+r}, v{v+r}, v{vT}, s{sSel+r}")
    def chk(v, dst):
        A(f"v_perm_b32 v{t0}, v{v+1}, v{v}, s{sSelA}"); A(f"v_perm_b32 v{t1}, v{v+3}, v{v+2}, s{sSelB}")
        A(f"v_or_b32 v{t0}, v{t0}, v{t1}"); A(f"v_cmp_ne_u32 {dst}, v{t0}, v{vT}")
    def untag(d, v):
        for r in range(4): A(f"v_and_b32 v{d+r}, 0xffffff00, v{v+r}")
    def tred(v):
        A(f"v_permlane32_swap_b32 v{v}, v{v+2}"); A(f"v_permlane32_swap_b32 v{v+1}, v{v+3}")
        A(f"v_add_f32 v{v}, v{v}, v{v+2}"); A(f"v_add_f32 v{v+1}, v{v+1}, v{v+3}")
        A(f"v_permlane16_swap_b32 v{v}, v{v+1}"); A(f"v_add_f32 v{v}, v{v}, v{v+1}")
    def select3(o, d0, d1, d2):
        for r in range(4): A(f"v_cndmask_b32 v{o+r}, v{d0+r}, v{d1+r}, {sr(sU1,2)}")
        for r in range(4): A(f"v_cndmask_b32 v{o+r}, v{o+r}, v{d2+r}, {sr(sU2,2)}")
    vB3 = V.get(); vQ4 = V.get()
    A(f"v_and_b32 v{vB3}, 3, v{vL}"); A(f"v_lshrrev_b32 v{vQ4}, 2, v{vL}")
    aXb = V.get(); aWq = V.get(); aW1 = V.get(); aW1h = V.get(); aH1 = V.get()
    A(f"v_mul_u32_u24 v{aXb}, 288, v{vB3}"); A(f"v_lshl_add_u32 v{aXb}, v{vG}, 3, v{aXb}"); A(f"v_add_u32 v{aXb}, {L_XN}, v{aXb}")
    A(f"s_lshl_b32 s{sT0}, s{sW}, 5")
    A(f"v_lshlrev_b32 v{t2}, 3, v{vB3}")
    A(f"v_lshl_add_u32 v{aWq}, v{vQ4}, 7, v{t2}"); A(f"s_add_u32 s{sT1}, s{sT0}, {L_WQ}"); A(f"v_add_u32 v{aWq}, s{sT1}, v{aWq}")
    A(f"v_mul_u32_u24 v{aW1h}, 144, v{vQ4}"); A(f"v_add_u32 v{aW1h}, v{aW1h}, v{t2}"); A(f"v_add_u32 v{aW1h}, {L_W1}, v{aW1h}")
    A(f"v_add_u32 v{aW1}, s{sT0}, v{aW1h}")
    stepK(1)
    A(f"s_lshl_b32 s{sT0}, s{sW}, 6")
    A(f"v_lshlrev_b32 v{t2}, 4, v{vG}")
    A(f"v_lshl_add_u32 v{aH1}, v{vB3}, 8, v{t2}"); A(f"v_add_u32 v{aH1}, s{sT0}, v{aH1}")
    A(f"v_mul_u32_u24 v{t3}, 288, v{vB3}"); A(f"v_add_u32 v{t3}, v{t3}, v{t2}")
    A(f"s_add_u32 s{sT0}, s{sT0}, 1024"); A(f"v_add_u32 v{t0}, s{sT0}, v{t3}")
    A(f"v_cndmask_b32 v{aH1}, v{aH1}, v{t0}, {sr(sU1,2)}")
    A(f"v_add_u32 v{t0}, {1024+256}, v{t3}")
    A(f"v_cndmask_b32 v{aH1}, v{aH1}, v{t0}, {sr(sU2,2)}")
    A(f"s_lshl_b32 s{sT0}, 0x01000100, s{sW}"); A(f"s_or_b32 vcc_lo, s{sT0}, 0x00ff00ff"); A("s_mov_b32 vcc_hi, 0x00ff00ff")
    A(f"s_mul_i32 s{sT0}, s{sBOX}, {H1S}"); A(f"s_add_u32 s{sT0}, s{sT0}, {WS_H1}")
    A(f"v_add_u32 v{aH1}, s{sT0}, v{aH1}")
    A(f"v_mov_b32 v{t0}, {hex(OOB)}")
    A(f"v_cndmask_b32 v{aH1}, v{t0}, v{aH1}, vcc")
    while len(kseq) < D: stepK(1)
    A.wait_vm(lastA)
    A("s_barrier")
    stamp()
    fr = [V.get(24), V.get(24)]; acc = V.get(12, 4)
    def batchA(bi):
        f = fr[bi & 1]
        for k in range(3):
            st = 3 * bi + k
            A(f"ds_read_b64 {vr(f+8*k,2)}, v{aXb} offset:{st*32}")
            A(f"ds_read_b64_tr_b16 {vr(f+8*k+2,2)}, v{aWq} offset:{st*2048}")
            A(f"ds_read_b64_tr_b16 {vr(f+8*k+4,2)}, v{aW1} offset:{st*2304}")
            A(f"ds_read_b64_tr_b16 {vr(f+8*k+6,2)}, v{aW1h} offset:{st*2304+128}")
    def mfmaA(bi):
        f = fr[bi & 1]
        for k in range(3):
            for tl in range(3):
                c = "0" if (bi == 0 and k == 0) else vr(acc+4*tl, 4)
                A(f"v_mfma_f32_16x16x16_bf16 {vr(acc+4*tl,4)}, {vr(f+8*k+2+2*tl,2)}, {vr(f+8*k,2)}, {c}")
    batchA(0); stepK(1); A("s_waitcnt lgkmcnt(0)")
    batchA(1); mfmaA(0); A("s_waitcnt lgkmcnt(0)")
    A("s_nop 7")
    batchA(2); mfmaA(1); A("s_waitcnt lgkmcnt(0)")
    mfmaA(2); stepK(1)
    o4 = V.get(4, 4)
    select3(o4, acc, acc + 4, acc + 8); tag(o4)
    A.vmem(f"buffer_store_dwordx4 {vr(o4,4)}, v{aH1}, {sr(dWS,4)}, 0 offen sc1")
    stamp()
    V.put(fr[0], 24); V.put(fr[1], 24); V.put(acc, 12)
    for r in (aXb, aWq, aW1, aW1h): V.put(r)
    stepK(2)
    A("s_barrier")
    V.put(aH1); V.put(o4, 4)
    aGq = V.get(); aGh = V.get(); aGh2 = V.get()
    A(f"v_mul_u32_u24 v{t2}, {H1S}, v{vG}"); A(f"v_lshl_add_u32 v{t2}, v{vI}, 4, v{t2}")
    A(f"s_lshl2_add_u32 s{sT0}, s{sHKV}, s{sW}"); A(f"s_mul_i32 s{sT0}, s{sT0}, {4*H1S}"); A(f"s_lshl_b32 s{sT1}, s{sB}, 8"); A(f"s_add_u32 s{sT0}, s{sT0}, s{sT1}"); A(f"s_add_u32 s{sT0}, s{sT0}, {WS_H1}")
    A(f"v_add_u32 v{aGq}, s{sT0}, v{t2}")
    A(f"s_mul_i32 s{sT0}, s{sG}, {4*H1S}"); A(f"s_mul_i32 s{sT1}, s{sW}, 288"); A(f"s_add_u32 s{sT0}, s{sT0}, s{sT1}"); A(f"s_add_u32 s{sT0}, s{sT0}, {WS_H1+1024}")
    A(f"v_add_u32 v{aGh}, s{sT0}, v{t2}")
    A(f"v_cmp_gt_u32 vcc, 2, v{vI}"); A(f"v_add_u32 v{aGh2}, 256, v{aGh}"); A(f"v_mov_b32 v{t0}, {hex(OOB)}")
    A(f"v_cndmask_b32 v{aGh2}, v{t0}, v{aGh2}, vcc")
    stepK(2)
    vM = V.get(4)
    A(f"v_and_b32 v{t0}, 1, v{vL}"); A(f"v_lshlrev_b32 v{t0}, 4, v{t0}"); A(f"v_mov_b32 v{t1}, 0xffff"); A(f"v_lshlrev_b32 v{t1}, v{t0}, v{t1}")
    A(f"v_bfe_u32 v{t0}, v{vL}, 1, 2")
    for k in range(4):
        A(f"v_cmp_eq_u32 vcc, {k}, v{t0}"); A(f"v_cndmask_b32 v{vM+k}, 0, v{t1}, vcc")
    stepK(1)
    aQw = V.get(); aHw = V.get(); aQr = V.get(); aKr = V.get(4)
    A(f"v_lshl_add_u32 v{t0}, v{vI}, 2, v{vG}"); A(f"v_lshlrev_b32 v{t0}, 1, v{t0}")
    A(f"s_lshl_b32 s{sT0}, s{sW}, 7"); A(f"s_add_u32 s{sT0}, s{sT0}, {L_Q}"); A(f"v_add_u32 v{aQw}, s{sT0}, v{t0}")
    A(f"s_mul_i32 s{sT0}, s{sW}, 160"); A(f"s_add_u32 s{sT0}, s{sT0}, {L_H}"); A(f"v_add_u32 v{aHw}, s{sT0}, v{t0}")
    A(f"v_lshrrev_b32 v{t0}, 3, v{vI}"); A(f"v_lshlrev_b32 v{t0}, 8, v{t0}"); A(f"v_lshl_add_u32 v{aQr}, v{vG}, 4, v{t0}"); A(f"v_add_u32 v{aQr}, {L_Q}, v{aQr}")
    A(f"v_xor_b32 v{t0}, v{vG}, v{vI}"); A(f"v_lshlrev_b32 v{t0}, 4, v{t0}")
    A(f"v_lshl_add_u32 v{t0}, v{vB3}, 12, v{t0}"); A(f"v_lshrrev_b32 v{t1}, 2, v{vI}"); A(f"v_lshl_add_u32 v{t0}, v{t1}, 8, v{t0}")
    A(f"v_add_u32 v{aKr}, s{sM}, v{t0}")
    for k in range(1, 4): A(f"v_xor_b32 v{aKr+k}, {k*64}, v{aKr}")
    while len(kseq) < 32: stepK(1)
    V.put(vKo, 4)
    stamp()
    gq = V.get(4, 4); gh = V.get(4, 4); gh2 = V.get(4, 4)
    def gatherH1():
        A.vmem(f"buffer_load_dwordx4 {vr(gq,4)}, v{aGq}, {sr(dWS,4)}, 0 offen sc1")
        A.vmem(f"buffer_load_dwordx4 {vr(gh,4)}, v{aGh}, {sr(dWS,4)}, 0 offen sc1")
        return A.vmem(f"buffer_load_dwordx4 {vr(gh2,4)}, v{aGh2}, {sr(dWS,4)}, 0 offen sc1")
    g1 = gatherH1()
    stepV(3, D + 3); stepV(D - 3, D + 2)
    A.wait_vm(g1)
    stamp()
    slow = []
    A.label("L_chk1")
    chk(gq, sr(sP, 2)); chk(gh, sr(sP + 2, 2)); chk(gh2, "vcc")
    A(f"s_and_b32 vcc_lo, vcc_lo, 0x00030003"); A(f"s_and_b32 vcc_hi, vcc_hi, 0x00030003")
    A(f"s_or_b64 vcc, vcc, {sr(sP,2)}"); A(f"s_or_b64 vcc, vcc, {sr(sP+2,2)}")
    A("s_cbranch_scc1 L_slow1")
    A.label("L_ok1")
    def slow1():
        A.label("L_slow1")
        A(f"s_sub_u32 s{sSpin}, s{sSpin}, 1"); A("s_cbranch_scc1 L_end")
        n = len(A.vm); gatherH1(); del A.vm[n:]
        A("s_waitcnt vmcnt(0)"); A("s_branch L_chk1")
    slow.append(slow1)
    for v in (gq, gh, gh2): untag(v, v)
    for v in (gq, gh, gh2): tred(v)
    A(f"v_cvt_pk_bf16_f32 v{gq}, v{gq}, v{gq}")
    A(f"ds_write_b16 v{aQw}, v{gq}")
    A(f"v_cvt_pk_bf16_f32 v{t0}, v{gh}, v{gh2}")
    A(f"v_lshlrev_b32 v{gh}, 16, v{t0}"); A(f"v_and_b32 v{gh2}, 0xffff0000, v{t0}")
    for v in (gh, gh2): A(f"v_mul_f32 v{v+1}, {hex(LOG2E | 0x80000000)}, v{v}")
    for v in (gh, gh2): A(f"v_exp_f32 v{v+1}, v{v+1}")
    for v in (gh, gh2): A(f"v_add_f32 v{v+1}, 1.0, v{v+1}")
    for v in (gh, gh2): A(f"v_rcp_f32 v{v+1}, v{v+1}")
    for v in (gh, gh2): A(f"v_mul_f32 v{v}, v{v}, v{v+1}")
    A(f"v_cvt_pk_bf16_f32 v{t0}, v{gh}, v{gh2}")
    A(f"ds_write_b16 v{aHw}, v{t0}")
    A("s_mov_b32 exec_lo, 0x000f000f"); A("s_mov_b32 exec_hi, 0x000f000f")
    A(f"ds_write_b16_d16_hi v{aHw}, v{t0} offset:128")
    A("s_mov_b64 exec, -1")
    stepV(1)
    A("s_waitcnt lgkmcnt(0)")
    A("s_barrier")
    stamp()
    for v in (gq, gh, gh2): V.put(v, 4)
    V.put(aQw); V.put(aHw)
    qf = V.get(16, 4); kf = [V.get(16, 4), V.get(16, 4)]; S = V.get(32, 4)
    for st in range(4): A(f"ds_read_b128 {vr(qf+4*st,4)}, v{aQr} offset:{st*64}")
    def rdK(t):
        if t == 4:
            for k in range(4): A(f"v_add_u32 v{aKr+k}, 0x10000, v{aKr+k}")
        for st in range(4): A(f"ds_read_b128 {vr(kf[t&1]+4*st,4)}, v{aKr+st} offset:{(t&3)*16384}")
    rdK(0)
    for t in range(8):
        if t < 7:
            rdK(t + 1); A("s_waitcnt lgkmcnt(4)")
        else: A("s_waitcnt lgkmcnt(0)")
        for st in range(4):
            c = "0" if st == 0 else vr(S+4*t, 4)
            A(f"v_mfma_f32_16x16x32_bf16 {vr(S+4*t,4)}, {vr(kf[t&1]+4*st,4)}, {vr(qf+4*st,4)}, {c}")
        if t < 7: A("s_nop 3")
        if t in (2, 6): stepV(1)
    V.put(qf, 16); V.put(kf[0], 16); V.put(kf[1], 16); V.put(aQr); V.put(aKr, 4)
    pc = V.get(2); tp = V.get(8)
    A(f"v_mov_b32 v{pc}, {hex(SCALE)}")
    for h in range(2):
        for k in range(8): A(f"v_cvt_pk_bf16_f32 v{tp+k}, v{S+16*h+2*k}, v{S+16*h+2*k+1}")
        unpack(S + 16 * h, tp, 8)
        for k in range(8): A(f"v_pk_mul_f32 {vr(S+16*h+2*k,2)}, {vr(S+16*h+2*k,2)}, {vr(pc,2)} op_sel_hi:[1,0]")
        for k in range(8): A(f"v_cvt_pk_bf16_f32 v{tp+k}, v{S+16*h+2*k}, v{S+16*h+2*k+1}")
        unpack(S + 16 * h, tp, 8)
        stepV(1)
    ml = V.get(2); pl = V.get(2); pn = V.get(2)
    A(f"v_max_f32 v{ml}, v{S}, v{S+1}")
    for k in range(1, 16): A(f"v_max3_f32 v{ml}, v{S+2*k}, v{S+2*k+1}, v{ml}")
    allred_groups(ml, t0, "v_max_f32")
    A(f"v_mov_b32 v{pc}, {hex(LOG2E)}")
    A(f"v_mul_f32 v{pn}, {hex(LOG2E | 0x80000000)}, v{ml}")
    for k in range(16): A(f"v_pk_fma_f32 {vr(S+2*k,2)}, {vr(S+2*k,2)}, {vr(pc,2)}, {vr(pn,2)} op_sel_hi:[1,0,0]")
    stepV(1)
    for k in range(32): A(f"v_exp_f32 v{S+k}, v{S+k}")
    stepV(1)
    A(f"v_pk_add_f32 {vr(pl,2)}, {vr(S,2)}, {vr(S+2,2)}")
    for k in range(2, 16): A(f"v_pk_add_f32 {vr(pl,2)}, {vr(pl,2)}, {vr(S+2*k,2)}")
    A(f"v_add_f32 v{ml+1}, v{pl}, v{pl+1}")
    allred_groups(ml + 1, t0, "v_add_f32")
    A(f"s_lshl_b32 s{sT0}, s{sW}, 4"); A(f"s_add_u32 s{sT0}, s{sT0}, {L_ML}")
    A(f"v_and_b32 v{t0}, 8, v{vL}"); A(f"v_add_u32 v{t0}, s{sT0}, v{t0}")
    A(f"ds_write_b64 v{t0}, {vr(ml,2)}")
    for k in range(32): A(f"v_cvt_pk_bf16_f32 v{S+k}, v{S+k}, v{S+k}")
    stepV(1)
    A("s_waitcnt lgkmcnt(0)")
    A("s_barrier")
    stamp()
    A(f"v_lshrrev_b32 v{t0}, 5, v{vL}"); A(f"v_lshlrev_b32 v{t0}, 3, v{t0}"); A(f"v_add_u32 v{t1}, s{sT0}, v{t0}"); A(f"v_add_u32 v{t0}, {L_ML}, v{t0}")
    for k in range(4): A(f"ds_read_b64 {vr(tp+2*k,2)}, v{t0} offset:{16*k}")
    A(f"ds_read_b32 v{pl}, v{t1}")
    A("s_waitcnt lgkmcnt(0)")
    vF = V.get(2); g4 = V.get(4, 4)
    A(f"v_max3_f32 v{g4}, v{tp}, v{tp+2}, v{tp+4}"); A(f"v_max_f32 v{g4}, v{g4}, v{tp+6}")
    for r in (tp, tp + 2, tp + 4, tp + 6, pl): A(f"v_sub_f32 v{r}, v{r}, v{g4}")
    for r in (tp, tp + 2, tp + 4, tp + 6, pl): A(f"v_mul_f32 v{r}, {hex(LOG2E)}, v{r}")
    for r in (tp, tp + 2, tp + 4, tp + 6): A(f"v_exp_f32 v{r}, v{r}")
    A(f"v_exp_f32 v{vF}, v{pl}")
    A(f"v_mul_f32 v{g4+1}, v{tp}, v{tp+1}")
    for k in range(1, 4): A(f"v_fmac_f32 v{g4+1}, v{tp+2*k}, v{tp+2*k+1}")
    A(f"v_mov_b32 v{g4+2}, v{g4}"); A(f"v_mov_b32 v{g4+3}, v{g4+1}")
    A(f"v_permlane32_swap_b32 v{g4}, v{g4+2}"); A(f"v_permlane32_swap_b32 v{g4+1}, v{g4+3}")
    tag(g4)
    A(f"s_mul_i32 s{sT0}, s{sBOX}, {H2S}"); A(f"s_add_u32 s{sT0}, s{sT0}, {WS_H2}")
    A(f"s_add_u32 s{sT1}, s{sT0}, 1024")
    A(f"v_cmp_eq_u32 vcc, 0, v0"); A(f"v_mov_b32 v{t0}, {hex(OOB)}"); A(f"v_mov_b32 v{t1}, s{sT1}")
    A(f"v_cndmask_b32 v{t0}, v{t0}, v{t1}, vcc")
    A.vmem(f"buffer_store_dwordx4 {vr(g4,4)}, v{t0}, {sr(dWS,4)}, 0 offen sc1")
    V.put(pc, 2); V.put(tp, 8); V.put(ml, 2); V.put(pl, 2); V.put(pn, 2)
    stepV(1)
    oacc = V.get(4, 4); NQ = 8; aq = V.get(4 * NQ, 4)
    built = [0]; done = [0]
    def build(n=1):
        for _ in range(n):
            j = built[0]
            if j >= 32: return
            assert j - done[0] < NQ
            for k in range(4): A(f"v_and_b32 v{aq+4*(j%NQ)+k}, v{S+j}, v{vM+k}")
            built[0] += 1
    def pv(wait=True):
        j = done[0]
        assert built[0] > j
        if wait: A.wait_vm(vseq[j])
        c = "0" if j == 0 else vr(oacc, 4)
        A(f"v_mfma_f32_16x16x32_bf16 {vr(oacc,4)}, {vr(aq+4*(j%NQ),4)}, {ar(4*j,4)}, {c}")
        done[0] += 1
    aOPw = V.get(); aOPr = V.get(); aH2 = V.get(); aG2 = V.get(); aGm = V.get(); aOw = V.get(); aOr = V.get(); aHr = V.get()
    aW = V.get(); aW8 = V.get(); aH3 = V.get()
    def addr_block1():
        A(f"v_lshrrev_b32 v{t0}, 1, v{vG}"); A(f"v_lshlrev_b32 v{t0}, 9, v{t0}"); A(f"v_lshl_add_u32 v{t0}, v{vI}, 5, v{t0}")
        A(f"v_and_b32 v{t1}, 1, v{vG}"); A(f"v_lshl_add_u32 v{t0}, v{t1}, 4, v{t0}"); A(f"v_add_u32 v{aOPw}, s{sM}, v{t0}")
        A(f"s_lshl_b32 s{sT1}, s{sW}, 8"); A(f"v_lshl_add_u32 v{aOPr}, v{vI}, 4, s{sT1}")
        A(f"s_mul_i32 s{sT0}, s{sBOX}, {H2S}"); A(f"s_add_u32 s{sT0}, s{sT0}, {WS_H2}"); A(f"v_add_u32 v{aH2}, s{sT0}, v{aOPr}")
        A(f"v_and_b32 v{t0}, 12, v{vL}"); A(f"v_add_u32 v{t0}, v{t0}, v{vG}"); A(f"v_mul_u32_u24 v{t0}, {H2S}, v{t0}")
        A(f"s_mul_i32 s{sT0}, s{sHKV}, {16*H2S}"); A(f"s_add_u32 s{sT0}, s{sT0}, {WS_H2}")
        A(f"s_add_u32 s{sT1}, s{sT0}, 1024"); A(f"v_add_u32 v{aGm}, s{sT1}, v{t0}")
        A(f"s_lshl2_add_u32 s{sT1}, s{sB}, s{sW}"); A(f"s_lshl_b32 s{sT1}, s{sT1}, 6"); A(f"s_add_u32 s{sT0}, s{sT0}, s{sT1}")
        A(f"v_lshl_add_u32 v{t0}, v{vB3}, 4, v{t0}"); A(f"v_add_u32 v{aG2}, s{sT0}, v{t0}")
    def addr_block2():
        A(f"s_lshr_b32 s{sT0}, s{sW}, 1"); A(f"s_lshl_b32 s{sT0}, s{sT0}, 6"); A(f"s_and_b32 s{sT1}, s{sW}, 1"); A(f"s_lshl3_add_u32 s{sT0}, s{sT1}, s{sT0}"); A(f"s_add_u32 s{sT0}, s{sT0}, {L_O}")
        A(f"v_and_b32 v{t0}, 12, v{vL}"); A(f"v_lshlrev_b32 v{t0}, 5, v{t0}"); A(f"v_lshl_add_u32 v{t0}, v{vB3}, 4, v{t0}"); A(f"v_lshl_add_u32 v{t0}, v{vG}, 1, v{t0}")
        A(f"v_add_u32 v{aOw}, s{sT0}, v{t0}")
        A(f"v_lshlrev_b32 v{t0}, 7, v{vB3}"); A(f"v_lshl_add_u32 v{t0}, v{vG}, 4, v{t0}"); A(f"v_add_u32 v{aOr}, {L_O}, v{t0}")
        A(f"v_mul_u32_u24 v{t0}, 160, v{vB3}"); A(f"v_lshl_add_u32 v{t0}, v{vG}, 3, v{t0}"); A(f"v_add_u32 v{aHr}, {L_H}, v{t0}")
        A(f"v_mul_u32_u24 v{t0}, 288, v{vQ4}"); A(f"v_lshl_add_u32 v{t0}, v{vB3}, 3, v{t0}"); A(f"v_add_u32 v{aW8}, {L_WO}, v{t0}")
        A(f"s_lshl_b32 s{sT0}, s{sW}, 5"); A(f"v_add_u32 v{aW}, s{sT0}, v{aW8}")
    def addr_block3():
        A(f"v_lshlrev_b32 v{t0}, 6, v{vB3}"); A(f"v_lshl_add_u32 v{t0}, v{vG}, 4, v{t0}")
        A(f"s_mul_i32 s{sT0}, s{sBOX}, {H3S}"); A(f"s_add_u32 s{sT0}, s{sT0}, {WS_H3}"); A(f"v_add_u32 v{t0}, s{sT0}, v{t0}")
        A(f"s_lshl_b32 s{sT0}, s{sW}, 8"); A(f"v_add_u32 v{aH3}, s{sT0}, v{t0}"); A(f"v_add_u32 v{t1}, 1024, v{aH3}")
        A(f"v_cndmask_b32 v{aH3}, v{aH3}, v{t1}, {sr(sU1,2)}"); A(f"v_add_u32 v{t1}, 2048, v{t0}"); A(f"v_cndmask_b32 v{aH3}, v{aH3}, v{t1}, {sr(sU2,2)}")
        A(f"s_lshl_b32 s{sT0}, 0x01000100, s{sW}"); A(f"s_or_b32 vcc_lo, s{sT0}, 0x00ff00ff"); A(f"s_or_b32 vcc_hi, s{sT0}, 0x00ff00ff")
        A(f"v_mov_b32 v{t0}, {hex(OOB)}"); A(f"v_cndmask_b32 v{aH3}, v{t0}, v{aH3}, vcc")
        A(f"s_mul_i32 s{sT1}, s{sS}, 288")
        A(f"s_mul_i32 s{sT0}, s{sG}, {72*1152}"); A(f"s_add_u32 s{sT0}, s{sT0}, s{sT1}"); srd(dW2, pW2, sT0, 71 * 1152 + 288)
        A(f"s_mul_i32 s{sT0}, s{sG}, {64*1152}"); A(f"s_add_u32 s{sT0}, s{sT0}, s{sT1}"); srd(dWO, pWO, sT0, 63 * 1152 + 288)
    aR = V.get(); aOut = V.get(); vXo = V.get()
    def addr_block4():
        A(f"s_lshr_b32 s{sT0}, s2, 2"); A(f"s_mul_i32 s{sT1}, s{sT0}, 57"); A(f"s_lshr_b32 s{sT1}, s{sT1}, 9")
        A(f"s_lshl_b32 s{sT2}, s2, 6")
        A(f"s_add_u32 s{sT2}, s{sT2}, {WS_H3}")
        A(f"v_mul_u32_u24 v{t0}, {4*H3S}, v{vQ4}"); A(f"v_lshl_add_u32 v{t0}, v{vB3}, 4, v{t0}"); A(f"v_add_u32 v{aR}, s{sT2}, v{t0}")
        A(f"s_and_b32 s{sT1}, s2, 3"); A(f"s_mul_i32 s{sT1}, s{sT1}, 1152"); A(f"s_lshl_b32 s{sT0}, s{sT0}, 5"); A(f"s_add_u32 s{sT0}, s{sT0}, s{sT1}")
        A(f"v_lshl_add_u32 v{t0}, v{vB3}, 2, v{vG}"); A(f"v_lshl_add_u32 v{aOut}, v{t0}, 1, s{sT0}")
        A(f"v_and_b32 v{t0}, 12, v{vL}"); A(f"v_cmp_eq_u32 vcc, 0, v{t0}"); A(f"v_mov_b32 v{t0}, {hex(OOB)}"); A(f"v_cndmask_b32 v{aOut}, v{t0}, v{aOut}, vcc")
        srd(dX, pX, None, 4608); srd(dOUT, pOUT, None, 4608)
        A.vmem(f"buffer_load_ushort v{vXo}, v{aOut}, {sr(dX,4)}, 0 offen")
    assert H3S == 2304
    blocks = [addr_block1, addr_block2, addr_block3, addr_block4]
    build(2)
    while len(vseq) < 32:
        stepV(1)
        n = 0
        while done[0] < len(vseq) - D - 1 and n < 3:
            pv(); build(1); n += 1
        if n < 3 and blocks: blocks.pop(0)()
    while blocks: blocks.pop(0)()
    V.put(g4, 4)
    stamp()
    gm = V.get(4, 4)
    def gatherML(): return A.vmem(f"buffer_load_dwordx4 {vr(gm,4)}, v{aGm}, {sr(dWS,4)}, 0 offen sc1")
    gml = gatherML()
    tail = ragged_dma(dW2, L_W2, 6, 3641, 864, wnt) + ragged_dma(dWO, L_WO, 5, 3641, 864, wnt)
    lastW = None
    while done[0] < 32:
        left = 32 - done[0]
        if left > 1:
            n = -(-len(tail) // (left - 1))
            for _ in range(n): lastW = tail.pop(0)()
        build(NQ - (built[0] - done[0]))
        pv()
    assert not tail
    stamp()
    A(f"v_pk_mul_f32 {vr(oacc,2)}, {vr(oacc,2)}, {vr(vF,2)} op_sel_hi:[1,0]")
    A(f"v_pk_mul_f32 {vr(oacc+2,2)}, {vr(oacc+2,2)}, {vr(vF,2)} op_sel_hi:[1,0]")
    A(f"ds_write_b128 v{aOPw}, {vr(oacc,4)}")
    A("s_waitcnt lgkmcnt(0)")
    A("s_barrier")
    V.put(S, 32); V.put(aq, 4 * NQ); V.put(vM, 4)
    r16 = V.get(16, 4)
    A("s_mov_b64 exec, 0xffff")
    for k in range(4): A(f"ds_read_b128 {vr(r16+4*k,4)}, v{aOPr} offset:{L_OP + 1024*k}")
    A("s_waitcnt lgkmcnt(2)")
    for h in range(2): A(f"v_pk_add_f32 {vr(r16+2*h,2)}, {vr(r16+2*h,2)}, {vr(r16+4+2*h,2)}")
    A("s_waitcnt lgkmcnt(0)")
    for h in range(2): A(f"v_pk_add_f32 {vr(r16+8+2*h,2)}, {vr(r16+8+2*h,2)}, {vr(r16+12+2*h,2)}")
    for h in range(2): A(f"v_pk_add_f32 {vr(r16+2*h,2)}, {vr(r16+2*h,2)}, {vr(r16+8+2*h,2)}")
    tag(r16)
    A.vmem(f"buffer_store_dwordx4 {vr(r16,4)}, v{aH2}, {sr(dWS,4)}, 0 offen sc1")
    A("s_mov_b64 exec, -1")
    stamp()
    A.wait_vm(gml)
    A.label("L_chk2")
    chk(gm, "vcc")
    A("s_cbranch_vccnz L_slow2")
    A.label("L_ok2")
    def slow2():
        A.label("L_slow2")
        A(f"s_sub_u32 s{sSpin}, s{sSpin}, 1"); A("s_cbranch_scc1 L_end")
        n = len(A.vm); gatherML(); del A.vm[n:]
        A("s_waitcnt vmcnt(0)"); A("s_branch L_chk2")
    slow.append(slow2)
    vWg = V.get(2)
    A(f"s_cmp_ge_u32 s{sB}, 2"); A(f"s_cselect_b64 vcc, -1, 0")
    A(f"v_cndmask_b32 v{t2}, v{gm}, v{gm+2}, vcc"); A(f"v_cndmask_b32 v{t3}, v{gm+1}, v{gm+3}, vcc")
    A(f"v_and_b32 v{t2}, 0xffffff00, v{t2}"); A(f"v_and_b32 v{t3}, 0xffffff00, v{t3}")
    A(f"v_mov_b32 v{vWg}, v{t2}"); allred_groups(vWg, t0, "v_max_f32")
    A(f"v_sub_f32 v{t2}, v{t2}, v{vWg}"); A(f"v_mul_f32 v{t2}, {hex(LOG2E)}, v{t2}"); A(f"v_exp_f32 v{t2}, v{t2}")
    A(f"v_mul_f32 v{t3}, v{t2}, v{t3}"); allred_groups(t3, t0, "v_add_f32")
    A(f"v_rcp_f32 v{t3}, v{t3}"); A(f"v_mul_f32 v{vWg}, v{t2}, v{t3}")
    go = V.get(4, 4)
    def gatherO(): return A.vmem(f"buffer_load_dwordx4 {vr(go,4)}, v{aG2}, {sr(dWS,4)}, 0 offen sc1")
    g2 = gatherO()
    A.wait_vm(lastW)
    A("s_barrier")
    stamp()
    hf = V.get(10); w2f = V.get(30); wof = V.get(24, 4); yacc = V.get(12, 4)
    W2D = L_W2 - L_WO
    def rdW2(st):
        A(f"ds_read_b64 {vr(hf+2*st,2)}, v{aHr} offset:{st*32}")
        A(f"ds_read_b64_tr_b16 {vr(w2f+6*st,2)}, v{aW} offset:{W2D+st*4608}")
        A(f"ds_read_b64_tr_b16 {vr(w2f+6*st+2,2)}, v{aW} offset:{W2D+st*4608+128}")
        A(f"ds_read_b64_tr_b16 {vr(w2f+6*st+4,2)}, v{aW8} offset:{W2D+st*4608+256}")
    def mfW2(st):
        for tl in range(3):
            c = "0" if st == 0 else vr(yacc+4*tl, 4)
            A(f"v_mfma_f32_16x16x16_bf16 {vr(yacc+4*tl,4)}, {vr(w2f+6*st+2*tl,2)}, {vr(hf+2*st,2)}, {c}")
    def rdWO(st):
        for tl, (a, o) in enumerate(((aW, 0), (aW, 128), (aW8, 256))):
            A(f"ds_read_b64_tr_b16 {vr(wof+8*tl+2*st,2)}, v{a} offset:{st*4608+o}")
    rdW2(0); rdW2(1); rdW2(2)
    A("s_waitcnt lgkmcnt(8)"); mfW2(0); rdW2(3)
    A("s_waitcnt lgkmcnt(8)"); mfW2(1); rdW2(4)
    A("s_waitcnt lgkmcnt(8)"); mfW2(2); rdWO(0)
    A("s_waitcnt lgkmcnt(7)"); mfW2(3); rdWO(1); rdWO(2)
    A("s_waitcnt lgkmcnt(9)"); mfW2(4); rdWO(3)
    A("s_waitcnt vmcnt(0)")
    stamp()
    A.label("L_chk3")
    chk(go, "vcc")
    A("s_cbranch_vccnz L_slow3")
    A.label("L_ok3")
    def slow3():
        A.label("L_slow3")
        A(f"s_sub_u32 s{sSpin}, s{sSpin}, 1"); A("s_cbranch_scc1 L_end")
        A("s_mov_b64 exec, vcc")
        n = len(A.vm); gatherO(); del A.vm[n:]
        A("s_mov_b64 exec, -1")
        A("s_waitcnt vmcnt(0)"); A("s_branch L_chk3")
    slow.append(slow3)
    stamp()
    untag(go, go)
    A(f"v_pk_mul_f32 {vr(go,2)}, {vr(go,2)}, {vr(vWg,2)} op_sel_hi:[1,0]")
    A(f"v_pk_mul_f32 {vr(go+2,2)}, {vr(go+2,2)}, {vr(vWg,2)} op_sel_hi:[1,0]")
    tred(go)
    A(f"v_cvt_pk_bf16_f32 v{go}, v{go}, v{go}")
    A(f"ds_write_b16 v{aOw}, v{go}")
    A("s_waitcnt lgkmcnt(0)")
    A("s_barrier")
    of = V.get(8, 4)
    A(f"ds_read_b128 {vr(of,4)}, v{aOr}"); A(f"ds_read_b128 {vr(of+4,4)}, v{aOr} offset:64")
    for st in range(2):
        A(f"s_waitcnt lgkmcnt({1-st})")
        for tl in range(3):
            A(f"v_mfma_f32_16x16x32_bf16 {vr(yacc+4*tl,4)}, {vr(wof+8*tl+4*st,4)}, {vr(of+4*st,4)}, {vr(yacc+4*tl,4)}")
    o4 = V.get(4, 4)
    select3(o4, yacc, yacc + 4, yacc + 8); tag(o4)
    A.vmem(f"buffer_store_dwordx4 {vr(o4,4)}, v{aH3}, {sr(dWS,4)}, 0 offen sc1")
    stamp()
    A(f"s_cmp_lg_u32 s{sW}, 0"); A("s_cbranch_scc1 L_fin"); A("s_cmp_ge_u32 s2, 144"); A("s_cbranch_scc1 L_fin")
    y = V.get(16, 4); z = V.get(16, 4)
    for k in range(4): A(f"s_mov_b64 {sr(sP+2*k,2)}, -1")
    A(f"s_mov_b32 s{sT0}, {16*4*H3S}"); A(f"s_mov_b32 s{sT1}, {32*4*H3S}"); A(f"s_mov_b32 s{sT2}, {48*4*H3S}")
    A.label("L_poll4")
    for k, sof in enumerate(("0", f"s{sT0}", f"s{sT1}", f"s{sT2}")):
        A(f"s_mov_b64 exec, {sr(sP+2*k,2)}")
        A(f"s_cbranch_execz L_skip4_{k}")
        A.vmem(f"buffer_load_dwordx4 {vr(y+4*k,4)}, v{aR}, {sr(dWS,4)}, {sof} offen sc1")
        A.label(f"L_skip4_{k}")
    A("s_mov_b64 exec, -1")
    A(f"s_sub_u32 s{sSpin}, s{sSpin}, 1"); A("s_cbranch_scc1 L_end")
    A("s_waitcnt vmcnt(0)")
    for k in range(4): chk(y + 4 * k, sr(sP + 2 * k, 2))
    A(f"s_or_b64 vcc, {sr(sP,2)}, {sr(sP+2,2)}"); A(f"s_or_b64 vcc, vcc, {sr(sP+4,2)}"); A(f"s_or_b64 vcc, vcc, {sr(sP+6,2)}")
    A("s_cbranch_scc1 L_poll4")
    A.label("L_ok4")
    stamp()
    for k in range(4): untag(z + 4 * k, y + 4 * k)
    for h in range(2):
        A(f"v_pk_add_f32 {vr(z+2*h,2)}, {vr(z+2*h,2)}, {vr(z+4+2*h,2)}"); A(f"v_pk_add_f32 {vr(z+8+2*h,2)}, {vr(z+8+2*h,2)}, {vr(z+12+2*h,2)}")
    for h in range(2): A(f"v_pk_add_f32 {vr(z+2*h,2)}, {vr(z+2*h,2)}, {vr(z+8+2*h,2)}")
    A(f"v_lshlrev_b32 v{vXo}, 16, v{vXo}")
    tred(z)
    for k in (8, 4): A(f"v_add_f32_dpp v{z}, v{z}, v{z} row_ror:{k} row_mask:0xf bank_mask:0xf")
    A(f"v_add_f32 v{z}, v{z}, v{vXo}")
    A(f"v_cvt_pk_bf16_f32 v{z}, v{z}, v{z}")
    A.vmem(f"buffer_store_short v{z}, v{aOut}, {sr(dOUT,4)}, 0 offen")
    A("s_cmp_lg_u32 s2, 0"); A("s_cbranch_scc1 L_fin")
    A(f"v_mov_b32 v{t0}, s{sE}"); A(f"v_mov_b32 v{t1}, 0"); A("s_mov_b64 exec, 1")
    A.vmem(f"buffer_store_dword v{t0}, v{t1}, {sr(dWS,4)}, 0 offen")
    A("s_mov_b64 exec, -1")
    A.label("L_fin")
    if stamps:
        A("s_waitcnt vmcnt(0)")
        A(f"s_memrealtime s[{sSt}:{sSt+1}]"); A("s_waitcnt lgkmcnt(0)"); A(f"v_writelane_b32 v{vSt}, s{sSt}, 62")
        A(f"v_writelane_b32 v{vSt}, s{sSpin}, 61")
        A(f"s_getreg_b32 s{sSt}, hwreg(HW_REG_XCC_ID, 0, 4)"); A(f"v_writelane_b32 v{vSt}, s{sSt}, 63")
        A(f"s_lshl_b32 s{sT0}, s2, 10"); A(f"s_add_u32 s{sT0}, s{sT0}, {WS_ST}"); A(f"v_lshl_add_u32 v{t0}, v0, 2, s{sT0}")
        A.vmem(f"buffer_store_dword v{vSt}, v{t0}, {sr(dWS,4)}, 0 offen")
    A("s_endpgm")
    for f in slow: f()
    A.label("L_end")
    A("s_endpgm")
    acc_off = (V.top + 3) // 4 * 4
    A.raw('.section .rodata,"a"'); A.raw(".p2align 6"); A.raw(f".amdhsa_kernel {NAME}_kernel")
    A.raw(f"  .amdhsa_next_free_vgpr {acc_off + 128}"); A.raw("  .amdhsa_next_free_sgpr 102"); A.raw(f"  .amdhsa_accum_offset {acc_off}")
    A.raw("  .amdhsa_group_segment_fixed_size 0"); A.raw("  .amdhsa_kernarg_size 88"); A.raw("  .amdhsa_user_sgpr_count 2")
    A.raw("  .amdhsa_user_sgpr_kernarg_segment_ptr 1"); A.raw("  .amdhsa_system_sgpr_workgroup_id_x 1"); A.raw(".end_amdhsa_kernel")
    return A.text(), nst[0]

if __name__ == "__main__":
    kw = eval("dict(" + (sys.argv[2] if len(sys.argv) > 2 else "") + ")")
    s, n = gen(**kw)
    open(sys.argv[1], "w").write(s)
    print("stamps", n)
```

```python
import sys, struct
from asmlib import *
NAME = "parallel_sum__sliding_block_cached__dense_activation_silu__decode"

def f2u(x): return struct.unpack("<I", struct.pack("<f", x))[0]
LOG2E = f2u(1.4426950408889634)
SCALE = f2u(128 ** -0.5)
OOB = 0x40000000
WS_H1, H1S = 0x1000, 2304
WS_H2, H2S = 0x100000, 1152
WS_H3, H3S = 0x180000, 2304
WS_ST = 0x400000
L_WQ = 131072 - 20480; L_WO = L_WQ
L_XN = 131072; L_Q = L_XN + 1152; L_H = L_Q + 512; L_ML = L_H + 640; L_O = L_ML + 128
L_W1 = 134144; L_W2 = L_W1
L_OP = 0
LDS_BYTES = L_W1 + 24576

HEADER = open("cdna_kernels/" + NAME + ".s.ref").read().split("; Override launch")[0]

def gen(D=8, nt="nt", stamps=False, rot=True, scramble=False, spin=20000, wnt=None, probe=None, pmul=4):
    if wnt is None: wnt = nt
    A = Asm(); V = VAlloc(1, 256)
    A.raw(HEADER.rstrip("\n"))
    A.raw(f"; @launch grid=(256,1,1) block=(256,1,1) lds={LDS_BYTES}")
    A.raw('.amdgcn_target "amdgcn-amd-amdhsa--gfx950"')
    A.raw(".text"); A.raw(f".globl {NAME}_kernel"); A.raw(".p2align 8"); A.raw(f".type {NAME}_kernel,@function")
    A.label(f"{NAME}_kernel")
    sW = 3
    pX, pK, pV, pWQ, pWO, pW1, pW2, pOUT, pWS = 4, 6, 8, 10, 12, 16, 18, 20, 24
    dX, dK, dV, dWQ, dW1, dW2, dWO, dWS, dOUT = 28, 32, 36, 40, 44, 48, 52, 56, 60
    sG, sS, sB, sHKV, sBOX, sRot, sSo, sE, sT0, sT1, sT2 = 64, 65, 66, 67, 68, 69, 70, 71, 72, 73, 74
    sSel = 76
    sSelA, sSelB = 80, 81
    sU1, sU2 = 82, 84
    sSpin = 86; sC = 87; sPC = 26; sM = 88; sP = 90
    sSt = 98
    vSt = V.get() if stamps else None
    nst = [0]
    def stamp():
        if probe is not None:
            if nst[0] == probe: A("s_memrealtime s[100:101]"); A("s_waitcnt lgkmcnt(0)")
            nst[0] += 1
        if stamps:
            A(f"s_memrealtime s[{sSt}:{sSt+1}]"); A("s_waitcnt lgkmcnt(0)"); A(f"v_writelane_b32 v{vSt}, s{sSt}, {nst[0]}"); nst[0] += 1
    def srd(d, p, off_s, nrec):
        if off_s is None:
            A(f"s_mov_b32 s{d}, s{p}"); A(f"s_mov_b32 s{d+1}, s{p+1}")
        else:
            A(f"s_add_u32 s{d}, s{p}, s{off_s}"); A(f"s_addc_u32 s{d+1}, s{p+1}, 0")
        A(f"s_mov_b32 s{d+2}, {nrec}"); A(f"s_mov_b32 s{d+3}, 0x20000")

    A("s_cmp_ge_u32 s2, 256"); A("s_cbranch_scc1 L_end")
    A("s_load_dwordx16 s[4:19], s[0:1], 0")
    A("s_load_dwordx2 s[20:21], s[0:1], 64")
    A("s_load_dwordx2 s[24:25], s[0:1], 80")
    if stamps or probe is not None: A(f"s_memrealtime s[{sSt}:{sSt+1}]")
    vJ = V.get(); vPa = V.get(2)
    A(f"s_getpc_b64 s[{sPC}:{sPC+1}]")
    A.label("L_pc")
    A(f"v_lshlrev_b32 v{vPa}, 6, v0")
    A(f"v_min_u32 v{vPa}, L_end-L_pc, v{vPa}")
    A(f"v_mov_b32 v{vPa+1}, s{sPC+1}")
    A(f"v_add_co_u32 v{vPa}, vcc, s{sPC}, v{vPa}")
    A(f"v_addc_co_u32 v{vPa+1}, vcc, 0, v{vPa+1}, vcc")
    A.vmem(f"global_load_dword v{vJ}, {vr(vPa,2)}, off")
    vL = V.get(); t0 = V.get(); t1 = V.get(); t2 = V.get(); t3 = V.get()
    A(f"v_lshrrev_b32 v{t0}, 6, v0")
    A(f"v_and_b32 v{vL}, 63, v0")
    A(f"v_readfirstlane_b32 s{sW}, v{t0}")
    if scramble:
        A(f"s_lshr_b32 s{sG}, s2, 2"); A(f"s_and_b32 s{sS}, s2, 3")
    else:
        A(f"s_and_b32 s{sT0}, s2, 7"); A(f"s_bfe_u32 s{sT1}, s2, 0x30003"); A(f"s_lshl3_add_u32 s{sG}, s{sT0}, s{sT1}")
        A(f"s_lshr_b32 s{sS}, s2, 6")
    vX = V.get(); vWq = V.get()
    A(f"v_lshlrev_b32 v{vX}, 5, v{vL}")
    A(f"v_lshrrev_b32 v{t0}, 3, v0"); A(f"v_and_b32 v{t1}, 7, v0"); A(f"v_lshlrev_b32 v{t1}, 4, v{t1}")
    A(f"v_lshl_or_b32 v{vWq}, v{t0}, 13, v{t1}")
    A(f"s_mul_i32 s{sT0}, s{sW}, 1152")
    A(f"s_mul_i32 s{sT1}, s{sS}, {144*8192}"); A(f"s_lshl_b32 s{sT2}, s{sG}, 7"); A(f"s_add_u32 s{sT1}, s{sT1}, s{sT2}")
    A(f"s_lshl_b32 s{sM}, s{sW}, 10")
    A(f"s_add_u32 m0, s{sM}, {L_WQ}")
    A("s_waitcnt lgkmcnt(0)")
    if stamps: A(f"v_writelane_b32 v{vSt}, s{sSt}, 0"); nst[0] = 1
    if probe is not None: A(f"s_mov_b32 s100, s{sSt}"); nst[0] = 1
    srd(dX, pX, sT0, 1152)
    xr = V.get(8, 4)
    x0 = A.vmem(f"buffer_load_dwordx4 {vr(xr,4)}, v{vX}, {sr(dX,4)}, 0 offen")
    x1 = A.vmem(f"buffer_load_dwordx4 {vr(xr+4,4)}, v{vX}, {sr(dX,4)}, 0 offen offset:16")
    srd(dWQ, pWQ, sT1, 143 * 8192 + 128)
    for r in range(5):
        if r:
            A("s_addk_i32 m0, 0x1000"); A(f"v_add_u32 v{vWq}, 0x40000, v{vWq}")
        A.vmem(f"buffer_load_dwordx4 v{vWq}, {sr(dWQ,4)}, 0 offen {wnt} lds")
    A(f"s_load_dword s{sE}, s[{pWS}:{pWS+1}], 0")
    A(f"s_mul_i32 s{sT1}, s{sS}, {144*9216}"); A(f"s_mul_i32 s{sT2}, s{sG}, 144"); A(f"s_add_u32 s{sT1}, s{sT1}, s{sT2}")
    srd(dW1, pW1, sT1, 143 * 9216 + 144)
    def ragged_dma(d, lbase, rounds, magic, rowpad, flags):
        vP16 = V.get(); vMul = V.get(); vo = V.get()
        def mk(r):
            def f():
                if r == 0:
                    A(f"v_lshlrev_b32 v{vP16}, 4, v0"); A(f"v_mul_u32_u24 v{vMul}, {magic}, v0")
                else:
                    A(f"v_add_u32 v{vP16}, 0x1000, v{vP16}"); A(f"v_add_u32 v{vMul}, {magic*256}, v{vMul}")
                A(f"s_movk_i32 s{sC}, {rowpad}")
                A(f"v_lshrrev_b32 v{vo}, 16, v{vMul}")
                A(f"s_add_u32 m0, s{sM}, {lbase + r*4096}")
                A(f"v_mad_u32_u24 v{vo}, v{vo}, s{sC}, v{vP16}")
                q = A.vmem(f"buffer_load_dwordx4 v{vo}, {sr(d,4)}, 0 offen {flags} lds")
                if r == rounds - 1:
                    V.put(vP16); V.put(vMul); V.put(vo)
                return q
            return f
        return [mk(r) for r in range(rounds)]
    for f in ragged_dma(dW1, L_W1, 6, 7282, 9072, wnt): lastA = f()
    V.put(vWq); V.put(vX); V.put(vPa, 2)
    stamp()
    A(f"s_and_b32 s{sB}, s{sG}, 3"); A(f"s_lshr_b32 s{sHKV}, s{sG}, 2")
    A(f"s_lshl4_add_u32 s{sT0}, s{sB}, s{sHKV}"); A(f"s_lshl_b32 s{sT0}, s{sT0}, 21")
    A(f"s_lshl_b32 s{sT1}, s{sS}, 17"); A(f"s_add_u32 s{sT0}, s{sT0}, s{sT1}"); A(f"s_add_u32 s{sT0}, s{sT0}, {6144*256}")
    srd(dK, pK, sT0, 131072); srd(dV, pV, sT0, 131072)
    srd(dWS, pWS, None, 0x800000)
    A(f"s_lshl2_add_u32 s{sBOX}, s{sG}, s{sS}")
    if rot: A(f"s_lshl_b32 s{sRot}, s2, 12"); A(f"s_and_b32 s{sRot}, s{sRot}, 0x1f000")
    else: A(f"s_mov_b32 s{sRot}, 0")
    vG = V.get(); vI = V.get()
    A(f"v_lshrrev_b32 v{vG}, 4, v{vL}"); A(f"v_and_b32 v{vI}, 15, v{vL}")
    vKo = V.get(4); vVo = V.get()
    A(f"v_lshlrev_b32 v{vVo}, 4, v0")
    A(f"v_lshlrev_b32 v{t0}, 6, v{vG}"); A(f"v_xor_b32 v{vKo}, v{vVo}, v{t0}")
    for i in range(1, 4): A(f"v_xor_b32 v{vKo+i}, {i*16}, v{vKo}")
    kseq = []; vseq = []
    def pace(d=None): A(f"s_waitcnt vmcnt({(d or D)-1})")
    def so(j):
        if j == 0: A(f"s_mov_b32 s{sSo}, s{sRot}")
        else: A(f"s_addk_i32 s{sSo}, 0x1000"); A(f"s_and_b32 s{sSo}, s{sSo}, 0x1f000")
    def stepK(n=1):
        for _ in range(n):
            j = len(kseq)
            A(f"s_add_u32 m0, s{sM}, {j*4096}"); so(j); pace()
            kseq.append(A.vmem(f"buffer_load_dwordx4 v{vKo + (j & 3)}, {sr(dK,4)}, s{sSo} offen {nt} lds"))
    def stepV(n=1, d=None):
        for _ in range(n):
            j = len(vseq)
            so(j); pace(d)
            vseq.append(A.vmem(f"buffer_load_dwordx4 {ar(4*j,4)}, v{vVo}, {sr(dV,4)}, s{sSo} offen {nt}"))
    def allred_groups(v, t, op):
        A(f"v_mov_b32 v{t}, v{v}"); A(f"v_permlane16_swap_b32 v{v}, v{t}"); A(f"{op} v{v}, v{v}, v{t}")
        A(f"v_mov_b32 v{t}, v{v}"); A(f"v_permlane32_swap_b32 v{v}, v{t}"); A(f"{op} v{v}, v{v}, v{t}")
    def allred64(v, t):
        for k in (8, 4, 2, 1): A(f"v_add_f32_dpp v{v}, v{v}, v{v} row_ror:{k} row_mask:0xf bank_mask:0xf")
        allred_groups(v, t, "v_add_f32")
    def unpack(dst, src, n):
        for k in range(n):
            A(f"v_and_b32 v{dst+2*k+1}, 0xffff0000, v{src+k}"); A(f"v_lshlrev_b32 v{dst+2*k}, 16, v{src+k}")
    A.wait_vm(x1)
    stamp()
    xf = V.get(16); d16 = V.get(16); p2 = V.get(2); pm = V.get(2)
    unpack(xf, xr, 8)
    A(f"v_pk_add_f32 {vr(p2,2)}, {vr(xf,2)}, {vr(xf+2,2)}")
    for k in range(2, 8): A(f"v_pk_add_f32 {vr(p2,2)}, {vr(p2,2)}, {vr(xf+2*k,2)}")
    A(f"v_add_f32 v{pm}, v{p2}, v{p2+1}")
    allred64(pm, t0)
    A(f"v_mul_f32 v{pm}, {hex(f2u(1/576))}, v{pm}")
    for k in range(8): A(f"v_pk_add_f32 {vr(d16+2*k,2)}, {vr(xf+2*k,2)}, {vr(pm,2)} op_sel_hi:[1,0] neg_lo:[0,1] neg_hi:[0,1]")
    A(f"v_pk_mul_f32 {vr(p2,2)}, {vr(d16,2)}, {vr(d16,2)}")
    for k in range(1, 8): A(f"v_pk_fma_f32 {vr(p2,2)}, {vr(d16+2*k,2)}, {vr(d16+2*k,2)}, {vr(p2,2)}")
    A(f"v_cmp_gt_u32 vcc, 36, v{vL}")
    A(f"v_add_f32 v{t1}, v{p2}, v{p2+1}")
    A(f"v_cndmask_b32 v{t1}, 0, v{t1}, vcc")
    allred64(t1, t0)
    A(f"v_mul_f32 v{t1}, {hex(f2u(1/576))}, v{t1}")
    A(f"v_cvt_pk_bf16_f32 v{t0}, v{pm}, v{t1}")
    A(f"v_lshlrev_b32 v{pm}, 16, v{t0}"); A(f"v_and_b32 v{t1}, 0xffff0000, v{t0}")
    A(f"v_add_f32 v{t1}, {hex(f2u(1e-5))}, v{t1}")
    A(f"v_cvt_pk_bf16_f32 v{t1}, v{t1}, v{t1}"); A(f"v_lshlrev_b32 v{t1}, 16, v{t1}")
    A(f"v_sqrt_f32 v{t1}, v{t1}")
    A(f"v_cvt_pk_bf16_f32 v{t1}, v{t1}, v{t1}"); A(f"v_lshlrev_b32 v{t1}, 16, v{t1}")
    A(f"v_rcp_f32 v{p2}, v{t1}")
    stepK(1)
    for k in range(8): A(f"v_pk_add_f32 {vr(d16+2*k,2)}, {vr(xf+2*k,2)}, {vr(pm,2)} op_sel_hi:[1,0] neg_lo:[0,1] neg_hi:[0,1]")
    for k in range(8): A(f"v_cvt_pk_bf16_f32 v{xr+k}, v{d16+2*k}, v{d16+2*k+1}")
    unpack(xf, xr, 8)
    for k in range(8): A(f"v_pk_mul_f32 {vr(xf+2*k,2)}, {vr(xf+2*k,2)}, {vr(p2,2)} op_sel_hi:[1,0]")
    for k in range(8): A(f"v_cvt_pk_bf16_f32 v{xr+k}, v{xf+2*k}, v{xf+2*k+1}")
    A(f"s_mul_i32 s{sT0}, s{sS}, 9"); A(f"s_sub_u32 s{sT1}, s{sW}, s{sS}"); A(f"s_mul_i32 s{sT1}, s{sT1}, 288"); A(f"s_add_u32 s{sT1}, s{sT1}, {L_XN}")
    A(f"v_lshl_add_u32 v{t0}, v{vL}, 5, s{sT1}")
    A(f"s_lshl_b64 exec, 0x1ff, s{sT0}")
    A(f"ds_write_b128 v{t0}, {vr(xr,4)}"); A(f"ds_write_b128 v{t0}, {vr(xr+4,4)} offset:16")
    A("s_mov_b64 exec, -1")
    V.put(xf, 16); V.put(d16, 16); V.put(p2, 2); V.put(pm, 2)
    stepK(1)
    A("s_waitcnt lgkmcnt(0)")
    V.put(xr, 8)
    vT = V.get()
    A(f"s_add_u32 s{sE}, s{sE}, 1"); A(f"s_mul_i32 s{sT0}, s{sE}, 0x9E3779B1"); A(f"v_mov_b32 v{vT}, s{sT0}")
    for r in range(4): A(f"s_mov_b32 s{sSel+r}, {hex(0x07060500 + r)}")
    A(f"s_mov_b32 s{sSelA}, 0x0c0c0400"); A(f"s_mov_b32 s{sSelB}, 0x04000c0c")
    A(f"s_mov_b32 s{sU1}, 0x00f000f0"); A(f"s_mov_b32 s{sU1+1}, 0x00f000f0")
    A(f"s_mov_b32 s{sU2}, 0x0f000f00"); A(f"s_mov_b32 s{sU2+1}, 0x0f000f00")
    A(f"s_mov_b32 s{sSpin}, {spin}")
    def tag(v):
        for r in range(4): A(f"v_perm_b32 v{v+r}, v{v+r}, v{vT}, s{sSel+r}")
    def chk(v, dst):
        A(f"v_perm_b32 v{t0}, v{v+1}, v{v}, s{sSelA}"); A(f"v_perm_b32 v{t1}, v{v+3}, v{v+2}, s{sSelB}")
        A(f"v_or_b32 v{t0}, v{t0}, v{t1}"); A(f"v_cmp_ne_u32 {dst}, v{t0}, v{vT}")
    def untag(d, v):
        for r in range(4): A(f"v_and_b32 v{d+r}, 0xffffff00, v{v+r}")
    def tred(v):
        A(f"v_permlane32_swap_b32 v{v}, v{v+2}"); A(f"v_permlane32_swap_b32 v{v+1}, v{v+3}")
        A(f"v_add_f32 v{v}, v{v}, v{v+2}"); A(f"v_add_f32 v{v+1}, v{v+1}, v{v+3}")
        A(f"v_permlane16_swap_b32 v{v}, v{v+1}"); A(f"v_add_f32 v{v}, v{v}, v{v+1}")
    def select3(o, d0, d1, d2):
        for r in range(4): A(f"v_cndmask_b32 v{o+r}, v{d0+r}, v{d1+r}, {sr(sU1,2)}")
        for r in range(4): A(f"v_cndmask_b32 v{o+r}, v{o+r}, v{d2+r}, {sr(sU2,2)}")
    vB3 = V.get(); vQ4 = V.get()
    A(f"v_and_b32 v{vB3}, 3, v{vL}"); A(f"v_lshrrev_b32 v{vQ4}, 2, v{vL}")
    aXb = V.get(); aWq = V.get(); aW1 = V.get(); aW1h = V.get(); aH1 = V.get()
    A(f"v_mul_u32_u24 v{aXb}, 288, v{vB3}"); A(f"v_lshl_add_u32 v{aXb}, v{vG}, 3, v{aXb}"); A(f"v_add_u32 v{aXb}, {L_XN}, v{aXb}")
    A(f"s_lshl_b32 s{sT0}, s{sW}, 5")
    A(f"v_lshlrev_b32 v{t2}, 3, v{vB3}")
    A(f"v_lshl_add_u32 v{aWq}, v{vQ4}, 7, v{t2}"); A(f"s_add_u32 s{sT1}, s{sT0}, {L_WQ}"); A(f"v_add_u32 v{aWq}, s{sT1}, v{aWq}")
    A(f"v_mul_u32_u24 v{aW1h}, 144, v{vQ4}"); A(f"v_add_u32 v{aW1h}, v{aW1h}, v{t2}"); A(f"v_add_u32 v{aW1h}, {L_W1}, v{aW1h}")
    A(f"v_add_u32 v{aW1}, s{sT0}, v{aW1h}")
    stepK(1)
    A(f"s_lshl_b32 s{sT0}, s{sW}, 6")
    A(f"v_lshlrev_b32 v{t2}, 4, v{vG}")
    A(f"v_lshl_add_u32 v{aH1}, v{vB3}, 8, v{t2}"); A(f"v_add_u32 v{aH1}, s{sT0}, v{aH1}")
    A(f"v_mul_u32_u24 v{t3}, 288, v{vB3}"); A(f"v_add_u32 v{t3}, v{t3}, v{t2}")
    A(f"s_add_u32 s{sT0}, s{sT0}, 1024"); A(f"v_add_u32 v{t0}, s{sT0}, v{t3}")
    A(f"v_cndmask_b32 v{aH1}, v{aH1}, v{t0}, {sr(sU1,2)}")
    A(f"v_add_u32 v{t0}, {1024+256}, v{t3}")
    A(f"v_cndmask_b32 v{aH1}, v{aH1}, v{t0}, {sr(sU2,2)}")
    A(f"s_lshl_b32 s{sT0}, 0x01000100, s{sW}"); A(f"s_or_b32 vcc_lo, s{sT0}, 0x00ff00ff"); A("s_mov_b32 vcc_hi, 0x00ff00ff")
    A(f"s_mul_i32 s{sT0}, s{sBOX}, {H1S}"); A(f"s_add_u32 s{sT0}, s{sT0}, {WS_H1}")
    A(f"v_add_u32 v{aH1}, s{sT0}, v{aH1}")
    A(f"v_mov_b32 v{t0}, {hex(OOB)}")
    A(f"v_cndmask_b32 v{aH1}, v{t0}, v{aH1}, vcc")
    while len(kseq) < D: stepK(1)
    A.wait_vm(lastA)
    A("s_barrier")
    stamp()
    fr = [V.get(24), V.get(24)]; acc = V.get(12, 4)
    def batchA(bi):
        f = fr[bi & 1]
        for k in range(3):
            st = 3 * bi + k
            A(f"ds_read_b64 {vr(f+8*k,2)}, v{aXb} offset:{st*32}")
            A(f"ds_read_b64_tr_b16 {vr(f+8*k+2,2)}, v{aWq} offset:{st*2048}")
            A(f"ds_read_b64_tr_b16 {vr(f+8*k+4,2)}, v{aW1} offset:{st*2304}")
            A(f"ds_read_b64_tr_b16 {vr(f+8*k+6,2)}, v{aW1h} offset:{st*2304+128}")
    def mfmaA(bi):
        f = fr[bi & 1]
        for k in range(3):
            for tl in range(3):
                c = "0" if (bi == 0 and k == 0) else vr(acc+4*tl, 4)
                A(f"v_mfma_f32_16x16x16_bf16 {vr(acc+4*tl,4)}, {vr(f+8*k+2+2*tl,2)}, {vr(f+8*k,2)}, {c}")
    batchA(0); stepK(1); A("s_waitcnt lgkmcnt(0)")
    batchA(1); mfmaA(0); A("s_waitcnt lgkmcnt(0)")
    A("s_nop 7")
    batchA(2); mfmaA(1); A("s_waitcnt lgkmcnt(0)")
    mfmaA(2); stepK(1)
    o4 = V.get(4, 4)
    select3(o4, acc, acc + 4, acc + 8); tag(o4)
    A.vmem(f"buffer_store_dwordx4 {vr(o4,4)}, v{aH1}, {sr(dWS,4)}, 0 offen sc1")
    stamp()
    V.put(fr[0], 24); V.put(fr[1], 24); V.put(acc, 12)
    for r in (aXb, aWq, aW1, aW1h): V.put(r)
    stepK(2)
    A("s_barrier")
    V.put(aH1); V.put(o4, 4)
    aGq = V.get(); aGh = V.get(); aGh2 = V.get()
    A(f"v_mul_u32_u24 v{t2}, {H1S}, v{vG}"); A(f"v_lshl_add_u32 v{t2}, v{vI}, 4, v{t2}")
    A(f"s_lshl2_add_u32 s{sT0}, s{sHKV}, s{sW}"); A(f"s_mul_i32 s{sT0}, s{sT0}, {4*H1S}"); A(f"s_lshl_b32 s{sT1}, s{sB}, 8"); A(f"s_add_u32 s{sT0}, s{sT0}, s{sT1}"); A(f"s_add_u32 s{sT0}, s{sT0}, {WS_H1}")
    A(f"v_add_u32 v{aGq}, s{sT0}, v{t2}")
    A(f"s_mul_i32 s{sT0}, s{sG}, {4*H1S}"); A(f"s_mul_i32 s{sT1}, s{sW}, 288"); A(f"s_add_u32 s{sT0}, s{sT0}, s{sT1}"); A(f"s_add_u32 s{sT0}, s{sT0}, {WS_H1+1024}")
    A(f"v_add_u32 v{aGh}, s{sT0}, v{t2}")
    A(f"v_cmp_gt_u32 vcc, 2, v{vI}"); A(f"v_add_u32 v{aGh2}, 256, v{aGh}"); A(f"v_mov_b32 v{t0}, {hex(OOB)}")
    A(f"v_cndmask_b32 v{aGh2}, v{t0}, v{aGh2}, vcc")
    stepK(2)
    vM = V.get(4)
    A(f"v_and_b32 v{t0}, 1, v{vL}"); A(f"v_lshlrev_b32 v{t0}, 4, v{t0}"); A(f"v_mov_b32 v{t1}, 0xffff"); A(f"v_lshlrev_b32 v{t1}, v{t0}, v{t1}")
    A(f"v_bfe_u32 v{t0}, v{vL}, 1, 2")
    for k in range(4):
        A(f"v_cmp_eq_u32 vcc, {k}, v{t0}"); A(f"v_cndmask_b32 v{vM+k}, 0, v{t1}, vcc")
    stepK(1)
    aQw = V.get(); aHw = V.get(); aQr = V.get(); aKr = V.get(4)
    A(f"v_lshl_add_u32 v{t0}, v{vI}, 2, v{vG}"); A(f"v_lshlrev_b32 v{t0}, 1, v{t0}")
    A(f"s_lshl_b32 s{sT0}, s{sW}, 7"); A(f"s_add_u32 s{sT0}, s{sT0}, {L_Q}"); A(f"v_add_u32 v{aQw}, s{sT0}, v{t0}")
    A(f"s_mul_i32 s{sT0}, s{sW}, 160"); A(f"s_add_u32 s{sT0}, s{sT0}, {L_H}"); A(f"v_add_u32 v{aHw}, s{sT0}, v{t0}")
    A(f"v_lshrrev_b32 v{t0}, 3, v{vI}"); A(f"v_lshlrev_b32 v{t0}, 8, v{t0}"); A(f"v_lshl_add_u32 v{aQr}, v{vG}, 4, v{t0}"); A(f"v_add_u32 v{aQr}, {L_Q}, v{aQr}")
    A(f"v_xor_b32 v{t0}, v{vG}, v{vI}"); A(f"v_lshlrev_b32 v{t0}, 4, v{t0}")
    A(f"v_lshl_add_u32 v{t0}, v{vB3}, 12, v{t0}"); A(f"v_lshrrev_b32 v{t1}, 2, v{vI}"); A(f"v_lshl_add_u32 v{t0}, v{t1}, 8, v{t0}")
    A(f"v_add_u32 v{aKr}, s{sM}, v{t0}")
    for k in range(1, 4): A(f"v_xor_b32 v{aKr+k}, {k*64}, v{aKr}")
    while len(kseq) < 32: stepK(1)
    V.put(vKo, 4)
    stamp()
    gq = V.get(4, 4); gh = V.get(4, 4); gh2 = V.get(4, 4)
    def gatherH1():
        A.vmem(f"buffer_load_dwordx4 {vr(gq,4)}, v{aGq}, {sr(dWS,4)}, 0 offen sc1")
        A.vmem(f"buffer_load_dwordx4 {vr(gh,4)}, v{aGh}, {sr(dWS,4)}, 0 offen sc1")
        return A.vmem(f"buffer_load_dwordx4 {vr(gh2,4)}, v{aGh2}, {sr(dWS,4)}, 0 offen sc1")
    g1 = gatherH1()
    stepV(3, D + 3); stepV(D - 3, D + 2)
    A.wait_vm(g1)
    stamp()
    slow = []
    A.label("L_chk1")
    chk(gq, sr(sP, 2)); chk(gh, sr(sP + 2, 2)); chk(gh2, "vcc")
    A(f"s_and_b32 vcc_lo, vcc_lo, 0x00030003"); A(f"s_and_b32 vcc_hi, vcc_hi, 0x00030003")
    A(f"s_or_b64 vcc, vcc, {sr(sP,2)}"); A(f"s_or_b64 vcc, vcc, {sr(sP+2,2)}")
    A("s_cbranch_scc1 L_slow1")
    A.label("L_ok1")
    def slow1():
        A.label("L_slow1")
        A(f"s_sub_u32 s{sSpin}, s{sSpin}, 1"); A("s_cbranch_scc1 L_end")
        n = len(A.vm); gatherH1(); del A.vm[n:]
        A("s_waitcnt vmcnt(0)"); A("s_branch L_chk1")
    slow.append(slow1)
    for v in (gq, gh, gh2): untag(v, v)
    for v in (gq, gh, gh2): tred(v)
    A(f"v_cvt_pk_bf16_f32 v{gq}, v{gq}, v{gq}")
    A(f"ds_write_b16 v{aQw}, v{gq}")
    A(f"v_cvt_pk_bf16_f32 v{t0}, v{gh}, v{gh2}")
    A(f"v_lshlrev_b32 v{gh}, 16, v{t0}"); A(f"v_and_b32 v{gh2}, 0xffff0000, v{t0}")
    for v in (gh, gh2): A(f"v_mul_f32 v{v+1}, {hex(LOG2E | 0x80000000)}, v{v}")
    for v in (gh, gh2): A(f"v_exp_f32 v{v+1}, v{v+1}")
    for v in (gh, gh2): A(f"v_add_f32 v{v+1}, 1.0, v{v+1}")
    for v in (gh, gh2): A(f"v_rcp_f32 v{v+1}, v{v+1}")
    for v in (gh, gh2): A(f"v_mul_f32 v{v}, v{v}, v{v+1}")
    A(f"v_cvt_pk_bf16_f32 v{t0}, v{gh}, v{gh2}")
    A(f"ds_write_b16 v{aHw}, v{t0}")
    A("s_mov_b32 exec_lo, 0x000f000f"); A("s_mov_b32 exec_hi, 0x000f000f")
    A(f"ds_write_b16_d16_hi v{aHw}, v{t0} offset:128")
    A("s_mov_b64 exec, -1")
    stepV(1)
    A("s_waitcnt lgkmcnt(0)")
    A("s_barrier")
    stamp()
    for v in (gq, gh, gh2): V.put(v, 4)
    V.put(aQw); V.put(aHw)
    qf = V.get(16, 4); kf = [V.get(16, 4), V.get(16, 4)]; S = V.get(32, 4)
    for st in range(4): A(f"ds_read_b128 {vr(qf+4*st,4)}, v{aQr} offset:{st*64}")
    def rdK(t):
        if t == 4:
            for k in range(4): A(f"v_add_u32 v{aKr+k}, 0x10000, v{aKr+k}")
        for st in range(4): A(f"ds_read_b128 {vr(kf[t&1]+4*st,4)}, v{aKr+st} offset:{(t&3)*16384}")
    rdK(0)
    for t in range(8):
        if t < 7:
            rdK(t + 1); A("s_waitcnt lgkmcnt(4)")
        else: A("s_waitcnt lgkmcnt(0)")
        for st in range(4):
            c = "0" if st == 0 else vr(S+4*t, 4)
            A(f"v_mfma_f32_16x16x32_bf16 {vr(S+4*t,4)}, {vr(kf[t&1]+4*st,4)}, {vr(qf+4*st,4)}, {c}")
        if t < 7: A("s_nop 3")
        if t in (2, 6): stepV(1)
    V.put(qf, 16); V.put(kf[0], 16); V.put(kf[1], 16); V.put(aQr); V.put(aKr, 4)
    pc = V.get(2); tp = V.get(8)
    A(f"v_mov_b32 v{pc}, {hex(SCALE)}")
    for h in range(2):
        for k in range(8): A(f"v_cvt_pk_bf16_f32 v{tp+k}, v{S+16*h+2*k}, v{S+16*h+2*k+1}")
        unpack(S + 16 * h, tp, 8)
        for k in range(8): A(f"v_pk_mul_f32 {vr(S+16*h+2*k,2)}, {vr(S+16*h+2*k,2)}, {vr(pc,2)} op_sel_hi:[1,0]")
        for k in range(8): A(f"v_cvt_pk_bf16_f32 v{tp+k}, v{S+16*h+2*k}, v{S+16*h+2*k+1}")
        unpack(S + 16 * h, tp, 8)
        stepV(1)
    ml = V.get(2); pl = V.get(2); pn = V.get(2)
    A(f"v_max_f32 v{ml}, v{S}, v{S+1}")
    for k in range(1, 16): A(f"v_max3_f32 v{ml}, v{S+2*k}, v{S+2*k+1}, v{ml}")
    allred_groups(ml, t0, "v_max_f32")
    A(f"v_mov_b32 v{pc}, {hex(LOG2E)}")
    A(f"v_mul_f32 v{pn}, {hex(LOG2E | 0x80000000)}, v{ml}")
    for k in range(16): A(f"v_pk_fma_f32 {vr(S+2*k,2)}, {vr(S+2*k,2)}, {vr(pc,2)}, {vr(pn,2)} op_sel_hi:[1,0,0]")
    stepV(1)
    for k in range(32): A(f"v_exp_f32 v{S+k}, v{S+k}")
    stepV(1)
    A(f"v_pk_add_f32 {vr(pl,2)}, {vr(S,2)}, {vr(S+2,2)}")
    for k in range(2, 16): A(f"v_pk_add_f32 {vr(pl,2)}, {vr(pl,2)}, {vr(S+2*k,2)}")
    A(f"v_add_f32 v{ml+1}, v{pl}, v{pl+1}")
    allred_groups(ml + 1, t0, "v_add_f32")
    A(f"s_lshl_b32 s{sT0}, s{sW}, 4"); A(f"s_add_u32 s{sT0}, s{sT0}, {L_ML}")
    A(f"v_and_b32 v{t0}, 8, v{vL}"); A(f"v_add_u32 v{t0}, s{sT0}, v{t0}")
    A(f"ds_write_b64 v{t0}, {vr(ml,2)}")
    for k in range(32): A(f"v_cvt_pk_bf16_f32 v{S+k}, v{S+k}, v{S+k}")
    stepV(1)
    A("s_waitcnt lgkmcnt(0)")
    A("s_barrier")
    stamp()
    A(f"v_lshrrev_b32 v{t0}, 5, v{vL}"); A(f"v_lshlrev_b32 v{t0}, 3, v{t0}"); A(f"v_add_u32 v{t1}, s{sT0}, v{t0}"); A(f"v_add_u32 v{t0}, {L_ML}, v{t0}")
    for k in range(4): A(f"ds_read_b64 {vr(tp+2*k,2)}, v{t0} offset:{16*k}")
    A(f"ds_read_b32 v{pl}, v{t1}")
    A("s_waitcnt lgkmcnt(0)")
    vF = V.get(2); g4 = V.get(4, 4)
    A(f"v_max3_f32 v{g4}, v{tp}, v{tp+2}, v{tp+4}"); A(f"v_max_f32 v{g4}, v{g4}, v{tp+6}")
    for r in (tp, tp + 2, tp + 4, tp + 6, pl): A(f"v_sub_f32 v{r}, v{r}, v{g4}")
    for r in (tp, tp + 2, tp + 4, tp + 6, pl): A(f"v_mul_f32 v{r}, {hex(LOG2E)}, v{r}")
    for r in (tp, tp + 2, tp + 4, tp + 6): A(f"v_exp_f32 v{r}, v{r}")
    A(f"v_exp_f32 v{vF}, v{pl}")
    A(f"v_mul_f32 v{g4+1}, v{tp}, v{tp+1}")
    for k in range(1, 4): A(f"v_fmac_f32 v{g4+1}, v{tp+2*k}, v{tp+2*k+1}")
    A(f"v_mov_b32 v{g4+2}, v{g4}"); A(f"v_mov_b32 v{g4+3}, v{g4+1}")
    A(f"v_permlane32_swap_b32 v{g4}, v{g4+2}"); A(f"v_permlane32_swap_b32 v{g4+1}, v{g4+3}")
    tag(g4)
    A(f"s_mul_i32 s{sT0}, s{sBOX}, {H2S}"); A(f"s_add_u32 s{sT0}, s{sT0}, {WS_H2}")
    A(f"s_add_u32 s{sT1}, s{sT0}, 1024")
    A(f"v_cmp_eq_u32 vcc, 0, v0"); A(f"v_mov_b32 v{t0}, {hex(OOB)}"); A(f"v_mov_b32 v{t1}, s{sT1}")
    A(f"v_cndmask_b32 v{t0}, v{t0}, v{t1}, vcc")
    A.vmem(f"buffer_store_dwordx4 {vr(g4,4)}, v{t0}, {sr(dWS,4)}, 0 offen sc1")
    V.put(pc, 2); V.put(tp, 8); V.put(ml, 2); V.put(pl, 2); V.put(pn, 2)
    stepV(1)
    oacc = V.get(4, 4); NQ = 8; aq = V.get(4 * NQ, 4)
    built = [0]; done = [0]
    def build(n=1):
        for _ in range(n):
            j = built[0]
            if j >= 32: return
            assert j - done[0] < NQ
            for k in range(4): A(f"v_and_b32 v{aq+4*(j%NQ)+k}, v{S+j}, v{vM+k}")
            built[0] += 1
    def pv(wait=True):
        j = done[0]
        assert built[0] > j
        if wait: A.wait_vm(vseq[j])
        c = "0" if j == 0 else vr(oacc, 4)
        A(f"v_mfma_f32_16x16x32_bf16 {vr(oacc,4)}, {vr(aq+4*(j%NQ),4)}, {ar(4*j,4)}, {c}")
        done[0] += 1
    aOPw = V.get(); aOPr = V.get(); aH2 = V.get(); aG2 = V.get(); aGm = V.get(); aOw = V.get(); aOr = V.get(); aHr = V.get()
    aW = V.get(); aW8 = V.get(); aH3 = V.get()
    def addr_block1():
        A(f"v_lshrrev_b32 v{t0}, 1, v{vG}"); A(f"v_lshlrev_b32 v{t0}, 9, v{t0}"); A(f"v_lshl_add_u32 v{t0}, v{vI}, 5, v{t0}")
        A(f"v_and_b32 v{t1}, 1, v{vG}"); A(f"v_lshl_add_u32 v{t0}, v{t1}, 4, v{t0}"); A(f"v_add_u32 v{aOPw}, s{sM}, v{t0}")
        A(f"s_lshl_b32 s{sT1}, s{sW}, 8"); A(f"v_lshl_add_u32 v{aOPr}, v{vI}, 4, s{sT1}")
        A(f"s_mul_i32 s{sT0}, s{sBOX}, {H2S}"); A(f"s_add_u32 s{sT0}, s{sT0}, {WS_H2}"); A(f"v_add_u32 v{aH2}, s{sT0}, v{aOPr}")
        A(f"v_and_b32 v{t0}, 12, v{vL}"); A(f"v_add_u32 v{t0}, v{t0}, v{vG}"); A(f"v_mul_u32_u24 v{t0}, {H2S}, v{t0}")
        A(f"s_mul_i32 s{sT0}, s{sHKV}, {16*H2S}"); A(f"s_add_u32 s{sT0}, s{sT0}, {WS_H2}")
        A(f"s_add_u32 s{sT1}, s{sT0}, 1024"); A(f"v_add_u32 v{aGm}, s{sT1}, v{t0}")
        A(f"s_lshl2_add_u32 s{sT1}, s{sB}, s{sW}"); A(f"s_lshl_b32 s{sT1}, s{sT1}, 6"); A(f"s_add_u32 s{sT0}, s{sT0}, s{sT1}")
        A(f"v_lshl_add_u32 v{t0}, v{vB3}, 4, v{t0}"); A(f"v_add_u32 v{aG2}, s{sT0}, v{t0}")
    def addr_block2():
        A(f"s_lshr_b32 s{sT0}, s{sW}, 1"); A(f"s_lshl_b32 s{sT0}, s{sT0}, 6"); A(f"s_and_b32 s{sT1}, s{sW}, 1"); A(f"s_lshl3_add_u32 s{sT0}, s{sT1}, s{sT0}"); A(f"s_add_u32 s{sT0}, s{sT0}, {L_O}")
        A(f"v_and_b32 v{t0}, 12, v{vL}"); A(f"v_lshlrev_b32 v{t0}, 5, v{t0}"); A(f"v_lshl_add_u32 v{t0}, v{vB3}, 4, v{t0}"); A(f"v_lshl_add_u32 v{t0}, v{vG}, 1, v{t0}")
        A(f"v_add_u32 v{aOw}, s{sT0}, v{t0}")
        A(f"v_lshlrev_b32 v{t0}, 7, v{vB3}"); A(f"v_lshl_add_u32 v{t0}, v{vG}, 4, v{t0}"); A(f"v_add_u32 v{aOr}, {L_O}, v{t0}")
        A(f"v_mul_u32_u24 v{t0}, 160, v{vB3}"); A(f"v_lshl_add_u32 v{t0}, v{vG}, 3, v{t0}"); A(f"v_add_u32 v{aHr}, {L_H}, v{t0}")
        A(f"v_mul_u32_u24 v{t0}, 288, v{vQ4}"); A(f"v_lshl_add_u32 v{t0}, v{vB3}, 3, v{t0}"); A(f"v_add_u32 v{aW8}, {L_WO}, v{t0}")
        A(f"s_lshl_b32 s{sT0}, s{sW}, 5"); A(f"v_add_u32 v{aW}, s{sT0}, v{aW8}")
    def addr_block3():
        A(f"v_lshlrev_b32 v{t0}, 6, v{vB3}"); A(f"v_lshl_add_u32 v{t0}, v{vG}, 4, v{t0}")
        A(f"s_mul_i32 s{sT0}, s{sBOX}, {H3S}"); A(f"s_add_u32 s{sT0}, s{sT0}, {WS_H3}"); A(f"v_add_u32 v{t0}, s{sT0}, v{t0}")
        A(f"s_lshl_b32 s{sT0}, s{sW}, 8"); A(f"v_add_u32 v{aH3}, s{sT0}, v{t0}"); A(f"v_add_u32 v{t1}, 1024, v{aH3}")
        A(f"v_cndmask_b32 v{aH3}, v{aH3}, v{t1}, {sr(sU1,2)}"); A(f"v_add_u32 v{t1}, 2048, v{t0}"); A(f"v_cndmask_b32 v{aH3}, v{aH3}, v{t1}, {sr(sU2,2)}")
        A(f"s_lshl_b32 s{sT0}, 0x01000100, s{sW}"); A(f"s_or_b32 vcc_lo, s{sT0}, 0x00ff00ff"); A(f"s_or_b32 vcc_hi, s{sT0}, 0x00ff00ff")
        A(f"v_mov_b32 v{t0}, {hex(OOB)}"); A(f"v_cndmask_b32 v{aH3}, v{t0}, v{aH3}, vcc")
        A(f"s_mul_i32 s{sT1}, s{sS}, 288")
        A(f"s_mul_i32 s{sT0}, s{sG}, {72*1152}"); A(f"s_add_u32 s{sT0}, s{sT0}, s{sT1}"); srd(dW2, pW2, sT0, 71 * 1152 + 288)
        A(f"s_mul_i32 s{sT0}, s{sG}, {64*1152}"); A(f"s_add_u32 s{sT0}, s{sT0}, s{sT1}"); srd(dWO, pWO, sT0, 63 * 1152 + 288)
    aR = V.get(); aOut = V.get(); vXo = V.get()
    def addr_block4():
        A(f"s_lshr_b32 s{sT0}, s2, 2"); A(f"s_mul_i32 s{sT1}, s{sT0}, 57"); A(f"s_lshr_b32 s{sT1}, s{sT1}, 9")
        A(f"s_lshl_b32 s{sT2}, s2, 6")
        A(f"s_add_u32 s{sT2}, s{sT2}, {WS_H3}")
        A(f"v_mul_u32_u24 v{t0}, {4*H3S}, v{vQ4}"); A(f"v_lshl_add_u32 v{t0}, v{vB3}, 4, v{t0}"); A(f"v_add_u32 v{aR}, s{sT2}, v{t0}")
        A(f"s_and_b32 s{sT1}, s2, 3"); A(f"s_mul_i32 s{sT1}, s{sT1}, 1152"); A(f"s_lshl_b32 s{sT0}, s{sT0}, 5"); A(f"s_add_u32 s{sT0}, s{sT0}, s{sT1}")
        A(f"v_lshl_add_u32 v{t0}, v{vB3}, 2, v{vG}"); A(f"v_lshl_add_u32 v{aOut}, v{t0}, 1, s{sT0}")
        A(f"v_and_b32 v{t0}, 12, v{vL}"); A(f"v_cmp_eq_u32 vcc, 0, v{t0}"); A(f"v_mov_b32 v{t0}, {hex(OOB)}"); A(f"v_cndmask_b32 v{aOut}, v{t0}, v{aOut}, vcc")
        srd(dX, pX, None, 4608); srd(dOUT, pOUT, None, 4608)
        A.vmem(f"buffer_load_ushort v{vXo}, v{aOut}, {sr(dX,4)}, 0 offen")
    assert H3S == 2304
    blocks = [addr_block1, addr_block2, addr_block3, addr_block4]
    build(2)
    while len(vseq) < 32:
        stepV(1)
        n = 0
        while done[0] < len(vseq) - D - 1 and n < 3:
            pv(); build(1); n += 1
        if n < 3 and blocks: blocks.pop(0)()
    while blocks: blocks.pop(0)()
    V.put(g4, 4)
    stamp()
    gm = V.get(4, 4)
    def gatherML(): return A.vmem(f"buffer_load_dwordx4 {vr(gm,4)}, v{aGm}, {sr(dWS,4)}, 0 offen sc1")
    gml = gatherML()
    tail = ragged_dma(dW2, L_W2, 6, 3641, 864, wnt) + ragged_dma(dWO, L_WO, 5, 3641, 864, wnt)
    lastW = None
    while done[0] < 32:
        left = 32 - done[0]
        if left > 1:
            n = -(-len(tail) // (left - 1))
            for _ in range(n): lastW = tail.pop(0)()
        build(NQ - (built[0] - done[0]))
        pv()
    assert not tail
    stamp()
    A(f"v_pk_mul_f32 {vr(oacc,2)}, {vr(oacc,2)}, {vr(vF,2)} op_sel_hi:[1,0]")
    A(f"v_pk_mul_f32 {vr(oacc+2,2)}, {vr(oacc+2,2)}, {vr(vF,2)} op_sel_hi:[1,0]")
    A(f"ds_write_b128 v{aOPw}, {vr(oacc,4)}")
    A("s_waitcnt lgkmcnt(0)")
    A("s_barrier")
    V.put(S, 32); V.put(aq, 4 * NQ); V.put(vM, 4)
    r16 = V.get(16, 4)
    A("s_mov_b64 exec, 0xffff")
    for k in range(4): A(f"ds_read_b128 {vr(r16+4*k,4)}, v{aOPr} offset:{L_OP + 1024*k}")
    A("s_waitcnt lgkmcnt(2)")
    for h in range(2): A(f"v_pk_add_f32 {vr(r16+2*h,2)}, {vr(r16+2*h,2)}, {vr(r16+4+2*h,2)}")
    A("s_waitcnt lgkmcnt(0)")
    for h in range(2): A(f"v_pk_add_f32 {vr(r16+8+2*h,2)}, {vr(r16+8+2*h,2)}, {vr(r16+12+2*h,2)}")
    for h in range(2): A(f"v_pk_add_f32 {vr(r16+2*h,2)}, {vr(r16+2*h,2)}, {vr(r16+8+2*h,2)}")
    tag(r16)
    A.vmem(f"buffer_store_dwordx4 {vr(r16,4)}, v{aH2}, {sr(dWS,4)}, 0 offen sc1")
    A("s_mov_b64 exec, -1")
    stamp()
    A.wait_vm(gml)
    A.label("L_chk2")
    chk(gm, "vcc")
    A("s_cbranch_vccnz L_slow2")
    A.label("L_ok2")
    def slow2():
        A.label("L_slow2")
        A(f"s_sub_u32 s{sSpin}, s{sSpin}, 1"); A("s_cbranch_scc1 L_end")
        n = len(A.vm); gatherML(); del A.vm[n:]
        A("s_waitcnt vmcnt(0)"); A("s_branch L_chk2")
    slow.append(slow2)
    vWg = V.get(2)
    A(f"s_cmp_ge_u32 s{sB}, 2"); A(f"s_cselect_b64 vcc, -1, 0")
    A(f"v_cndmask_b32 v{t2}, v{gm}, v{gm+2}, vcc"); A(f"v_cndmask_b32 v{t3}, v{gm+1}, v{gm+3}, vcc")
    A(f"v_and_b32 v{t2}, 0xffffff00, v{t2}"); A(f"v_and_b32 v{t3}, 0xffffff00, v{t3}")
    A(f"v_mov_b32 v{vWg}, v{t2}"); allred_groups(vWg, t0, "v_max_f32")
    A(f"v_sub_f32 v{t2}, v{t2}, v{vWg}"); A(f"v_mul_f32 v{t2}, {hex(LOG2E)}, v{t2}"); A(f"v_exp_f32 v{t2}, v{t2}")
    A(f"v_mul_f32 v{t3}, v{t2}, v{t3}"); allred_groups(t3, t0, "v_add_f32")
    A(f"v_rcp_f32 v{t3}, v{t3}"); A(f"v_mul_f32 v{vWg}, v{t2}, v{t3}")
    go = V.get(4, 4)
    def gatherO(): return A.vmem(f"buffer_load_dwordx4 {vr(go,4)}, v{aG2}, {sr(dWS,4)}, 0 offen sc1")
    g2 = gatherO()
    A.wait_vm(lastW)
    A("s_barrier")
    stamp()
    hf = V.get(10); w2f = V.get(30); wof = V.get(24, 4); yacc = V.get(12, 4)
    W2D = L_W2 - L_WO
    def rdW2(st):
        A(f"ds_read_b64 {vr(hf+2*st,2)}, v{aHr} offset:{st*32}")
        A(f"ds_read_b64_tr_b16 {vr(w2f+6*st,2)}, v{aW} offset:{W2D+st*4608}")
        A(f"ds_read_b64_tr_b16 {vr(w2f+6*st+2,2)}, v{aW} offset:{W2D+st*4608+128}")
        A(f"ds_read_b64_tr_b16 {vr(w2f+6*st+4,2)}, v{aW8} offset:{W2D+st*4608+256}")
    def mfW2(st):
        for tl in range(3):
            c = "0" if st == 0 else vr(yacc+4*tl, 4)
            A(f"v_mfma_f32_16x16x16_bf16 {vr(yacc+4*tl,4)}, {vr(w2f+6*st+2*tl,2)}, {vr(hf+2*st,2)}, {c}")
    def rdWO(st):
        for tl, (a, o) in enumerate(((aW, 0), (aW, 128), (aW8, 256))):
            A(f"ds_read_b64_tr_b16 {vr(wof+8*tl+2*st,2)}, v{a} offset:{st*4608+o}")
    rdW2(0); rdW2(1); rdW2(2)
    A("s_waitcnt lgkmcnt(8)"); mfW2(0); rdW2(3)
    A("s_waitcnt lgkmcnt(8)"); mfW2(1); rdW2(4)
    A("s_waitcnt lgkmcnt(8)"); mfW2(2); rdWO(0)
    A("s_waitcnt lgkmcnt(7)"); mfW2(3); rdWO(1); rdWO(2)
    A("s_waitcnt lgkmcnt(9)"); mfW2(4); rdWO(3)
    A("s_waitcnt vmcnt(0)")
    stamp()
    A.label("L_chk3")
    chk(go, "vcc")
    A("s_cbranch_vccnz L_slow3")
    A.label("L_ok3")
    def slow3():
        A.label("L_slow3")
        A(f"s_sub_u32 s{sSpin}, s{sSpin}, 1"); A("s_cbranch_scc1 L_end")
        A("s_mov_b64 exec, vcc")
        n = len(A.vm); gatherO(); del A.vm[n:]
        A("s_mov_b64 exec, -1")
        A("s_waitcnt vmcnt(0)"); A("s_branch L_chk3")
    slow.append(slow3)
    stamp()
    untag(go, go)
    A(f"v_pk_mul_f32 {vr(go,2)}, {vr(go,2)}, {vr(vWg,2)} op_sel_hi:[1,0]")
    A(f"v_pk_mul_f32 {vr(go+2,2)}, {vr(go+2,2)}, {vr(vWg,2)} op_sel_hi:[1,0]")
    tred(go)
    A(f"v_cvt_pk_bf16_f32 v{go}, v{go}, v{go}")
    A(f"ds_write_b16 v{aOw}, v{go}")
    A("s_waitcnt lgkmcnt(0)")
    A("s_barrier")
    of = V.get(8, 4)
    A(f"ds_read_b128 {vr(of,4)}, v{aOr}"); A(f"ds_read_b128 {vr(of+4,4)}, v{aOr} offset:64")
    for st in range(2):
        A(f"s_waitcnt lgkmcnt({1-st})")
        for tl in range(3):
            A(f"v_mfma_f32_16x16x32_bf16 {vr(yacc+4*tl,4)}, {vr(wof+8*tl+4*st,4)}, {vr(of+4*st,4)}, {vr(yacc+4*tl,4)}")
    o4 = V.get(4, 4)
    select3(o4, yacc, yacc + 4, yacc + 8); tag(o4)
    A.vmem(f"buffer_store_dwordx4 {vr(o4,4)}, v{aH3}, {sr(dWS,4)}, 0 offen sc1")
    stamp()
    A(f"s_cmp_lg_u32 s{sW}, 0"); A("s_cbranch_scc1 L_fin"); A("s_cmp_ge_u32 s2, 144"); A("s_cbranch_scc1 L_fin")
    y = V.get(16, 4); z = V.get(16, 4)
    for k in range(4): A(f"s_mov_b64 {sr(sP+2*k,2)}, -1")
    A(f"s_mov_b32 s{sT0}, {16*4*H3S}"); A(f"s_mov_b32 s{sT1}, {32*4*H3S}"); A(f"s_mov_b32 s{sT2}, {48*4*H3S}")
    A.label("L_poll4")
    for k, sof in enumerate(("0", f"s{sT0}", f"s{sT1}", f"s{sT2}")):
        A(f"s_mov_b64 exec, {sr(sP+2*k,2)}")
        A(f"s_cbranch_execz L_skip4_{k}")
        A.vmem(f"buffer_load_dwordx4 {vr(y+4*k,4)}, v{aR}, {sr(dWS,4)}, {sof} offen sc1")
        A.label(f"L_skip4_{k}")
    A("s_mov_b64 exec, -1")
    A(f"s_sub_u32 s{sSpin}, s{sSpin}, 1"); A("s_cbranch_scc1 L_end")
    A("s_waitcnt vmcnt(0)")
    for k in range(4): chk(y + 4 * k, sr(sP + 2 * k, 2))
    A(f"s_or_b64 vcc, {sr(sP,2)}, {sr(sP+2,2)}"); A(f"s_or_b64 vcc, vcc, {sr(sP+4,2)}"); A(f"s_or_b64 vcc, vcc, {sr(sP+6,2)}")
    A("s_cbranch_scc1 L_poll4")
    A.label("L_ok4")
    stamp()
    for k in range(4): untag(z + 4 * k, y + 4 * k)
    for h in range(2):
        A(f"v_pk_add_f32 {vr(z+2*h,2)}, {vr(z+2*h,2)}, {vr(z+4+2*h,2)}"); A(f"v_pk_add_f32 {vr(z+8+2*h,2)}, {vr(z+8+2*h,2)}, {vr(z+12+2*h,2)}")
    for h in range(2): A(f"v_pk_add_f32 {vr(z+2*h,2)}, {vr(z+2*h,2)}, {vr(z+8+2*h,2)}")
    A(f"v_lshlrev_b32 v{vXo}, 16, v{vXo}")
    tred(z)
    for k in (8, 4): A(f"v_add_f32_dpp v{z}, v{z}, v{z} row_ror:{k} row_mask:0xf bank_mask:0xf")
    A(f"v_add_f32 v{z}, v{z}, v{vXo}")
    A(f"v_cvt_pk_bf16_f32 v{z}, v{z}, v{z}")
    A.vmem(f"buffer_store_short v{z}, v{aOut}, {sr(dOUT,4)}, 0 offen")
    A("s_cmp_lg_u32 s2, 0"); A("s_cbranch_scc1 L_fin")
    A(f"v_mov_b32 v{t0}, s{sE}"); A(f"v_mov_b32 v{t1}, 0"); A("s_mov_b64 exec, 1")
    A.vmem(f"buffer_store_dword v{t0}, v{t1}, {sr(dWS,4)}, 0 offen")
    A("s_mov_b64 exec, -1")
    if probe is not None:
        A(f"s_sub_u32 s100, s100, s{sSt}"); A(f"s_mul_i32 s{sT0}, s100, {pmul}"); A(f"s_add_u32 s{sT0}, s{sT0}, 4000"); A(f"s_min_u32 s{sT0}, s{sT0}, 100000")
        A.label("L_probe")
        A("s_memrealtime s[100:101]"); A("s_waitcnt lgkmcnt(0)"); A(f"s_sub_u32 s100, s100, s{sSt}"); A(f"s_cmp_lt_u32 s100, s{sT0}"); A("s_cbranch_scc1 L_probe")
    A.label("L_fin")
    if stamps:
        A("s_waitcnt vmcnt(0)")
        A(f"s_memrealtime s[{sSt}:{sSt+1}]"); A("s_waitcnt lgkmcnt(0)"); A(f"v_writelane_b32 v{vSt}, s{sSt}, 62")
        A(f"v_writelane_b32 v{vSt}, s{sSpin}, 61")
        A(f"s_getreg_b32 s{sSt}, hwreg(HW_REG_XCC_ID, 0, 4)"); A(f"v_writelane_b32 v{vSt}, s{sSt}, 63")
        A(f"s_lshl_b32 s{sT0}, s2, 10"); A(f"s_add_u32 s{sT0}, s{sT0}, {WS_ST}"); A(f"v_lshl_add_u32 v{t0}, v0, 2, s{sT0}")
        A.vmem(f"buffer_store_dword v{vSt}, v{t0}, {sr(dWS,4)}, 0 offen")
    A("s_endpgm")
    for f in slow: f()
    A.label("L_end")
    A("s_endpgm")
    acc_off = (V.top + 3) // 4 * 4
    A.raw('.section .rodata,"a"'); A.raw(".p2align 6"); A.raw(f".amdhsa_kernel {NAME}_kernel")
    A.raw(f"  .amdhsa_next_free_vgpr {acc_off + 128}"); A.raw("  .amdhsa_next_free_sgpr 102"); A.raw(f"  .amdhsa_accum_offset {acc_off}")
    A.raw("  .amdhsa_group_segment_fixed_size 0"); A.raw("  .amdhsa_kernarg_size 88"); A.raw("  .amdhsa_user_sgpr_count 2")
    A.raw("  .amdhsa_user_sgpr_kernarg_segment_ptr 1"); A.raw("  .amdhsa_system_sgpr_workgroup_id_x 1"); A.raw(".end_amdhsa_kernel")
    return A.text(), nst[0]

if __name__ == "__main__":
    kw = eval("dict(" + (sys.argv[2] if len(sys.argv) > 2 else "") + ")")
    s, n = gen(**kw)
    open(sys.argv[1], "w").write(s)
    print("stamps", n)
```

```python
import re

TRANS = ("v_exp_f32", "v_log_f32", "v_rcp_f32", "v_rsq_f32", "v_sqrt_f32", "v_sin_f32", "v_cos_f32")

def regs_of(tok):
    tok = tok.strip()
    tok = tok.lstrip("-")
    m = re.fullmatch(r"abs\((.*)\)", tok)
    if m: tok = m.group(1)
    tok = tok.strip("|")
    m = re.fullmatch(r"([vas])(\d+)", tok)
    if m: return {(m.group(1), int(m.group(2)))}
    m = re.fullmatch(r"([vas])\[(\d+):(\d+)\]", tok)
    if m: return {(m.group(1), i) for i in range(int(m.group(2)), int(m.group(3)) + 1)}
    if tok in ("vcc", "vcc_lo", "vcc_hi"): return {("s", "vcc")}
    if tok in ("exec", "exec_lo", "exec_hi"): return {("s", "exec")}
    if tok == "m0": return {("s", "m0")}
    return set()

class Ins:
    def __init__(self, text):
        self.text = text
        parts = text.split(None, 1)
        self.op = op = parts[0]
        rest = parts[1] if len(parts) > 1 else ""
        toks = [t.strip() for t in rest.split(",")]
        if toks:
            toks[-1] = toks[-1].split()[0] if toks[-1].split() else ""
        rest2 = re.split(r"\s(?:op_sel|op_sel_hi|neg_lo|neg_hi|row_|quad_perm|offset|offen|bitop3|nt\b|sc0|sc1|lds\b)", " " + rest, 1)[0]
        toks = [t.strip() for t in rest2.split(",") if t.strip()]
        R = [regs_of(t) for t in toks]
        self.w = set(); self.r = set(); self.c = set()
        self.valu = op.startswith("v_") and not op.startswith("v_mfma")
        self.mfma = op.startswith("v_mfma")
        self.salu = op.startswith("s_")
        self.vmem = op.startswith(("buffer_", "global_"))
        self.ds = op.startswith("ds_")
        self.dpp = "_dpp" in op or "row_" in rest or "quad_perm" in rest
        self.trans = op.replace("_e32", "").replace("_e64", "") in TRANS
        self.perml = op.startswith("v_permlane")
        self.dma = self.vmem and re.search(r"\blds\b", rest) is not None
        self.store = self.vmem and ("store" in op or "atomic" in op)
        self.wide_store = self.store and ("x4" in op or "x3" in op)
        self.states = 1
        if op == "s_nop": self.states = int(toks[0], 0) + 1
        U = lambda xs: set().union(*xs) if xs else set()
        if self.mfma:
            self.w = R[0]; self.r = U(R[1:]); self.ab = R[1] | R[2]; self.c = R[3] if len(R) > 3 else set()
        elif self.perml:
            self.w = U(R); self.r = U(R)
        elif self.valu:
            self.w = R[0]; self.r = U(R[1:])
            if op.startswith(("v_fmac", "v_writelane", "v_dot2c")) or self.dpp: self.r |= R[0]
            if op.startswith(("v_add_co", "v_addc_co", "v_sub_co")): self.w |= R[1]
            if op.startswith("v_cmpx"): self.w |= {("s", "exec")}
        elif self.vmem:
            if self.store or self.dma: self.r = U(R)
            else: self.w = R[0]; self.r = U(R[1:])
            if self.dma: self.r |= {("s", "m0")}
            self.data = R[0] if op.startswith("buffer_") else (R[1] if len(R) > 1 else set())
        elif self.ds:
            if "read" in op or "permute" in op or "swizzle" in op: self.w = R[0]; self.r = U(R[1:])
            else: self.r = U(R)
        elif self.salu:
            if op.startswith(("s_cmp", "s_cbranch", "s_branch", "s_waitcnt", "s_barrier", "s_nop", "s_sleep", "s_endpgm", "s_setprio")): self.r = U(R)
            else:
                self.w = R[0] if R else set(); self.r = U(R[1:])
                if "saveexec" in op: self.w |= {("s", "exec")}

def need(p, c):
    n = 0
    vw = {x for x in p.w if x[0] in "va"}; sw = {x for x in p.w if x[0] == "s"}
    if p.valu:
        if c.mfma and vw & c.r: n = max(n, 2)
        if c.perml and vw & c.r: n = max(n, 2)
        if c.valu and c.dpp and vw & c.r: n = max(n, 2)
        if c.op.startswith(("v_readlane", "v_readfirstlane")) and vw & c.r: n = max(n, 1)
        if p.trans and c.valu and vw & c.r: n = max(n, 1)
        if p.trans and (c.ds or c.vmem) and vw & c.r: n = max(n, 1)
        if sw & c.r:
            if c.valu: n = max(n, 4 if c.op.startswith(("v_readlane", "v_writelane")) else 2)
            if c.vmem: n = max(n, 5)
            if c.salu: n = max(n, 1)
        if ("s", "exec") in sw:
            if c.dpp: n = max(n, 5)
            if c.mfma or c.perml or c.op.startswith(("v_readlane", "v_readfirstlane", "v_writelane")): n = max(n, 4)
    if p.mfma:
        big = "32x32" in p.op
        if c.mfma:
            if vw & c.ab: n = max(n, 12 if big else 8)
            if vw & c.c and vw != c.c: n = max(n, 10 if big else 6)
            if vw & c.c and vw == c.c and p.op != c.op: n = max(n, 10 if big else 6)
        elif (c.valu or c.vmem or c.ds) and vw & (c.r | c.w): n = max(n, 12 if big else 8)
        if c.valu and p.c & c.w: n = max(n, 7 if big else 3)
    if p.salu and ("s", "m0") in p.w and (c.dma or c.op.startswith("v_writelane") or c.op.startswith("v_readlane")) and ("s", "m0") in c.r: n = max(n, 1)
    if p.wide_store and p.data & c.w: n = max(n, 2)
    return n

class Asm:
    def __init__(self):
        self.lines = []; self.hist = []; self.vm = []; self.nops = 0
        self.auto = None; self.cyc = 0; self.th = 200; self.drop = False
    def raw(self, t): self.lines.append(t)
    def label(self, name):
        self.lines.append(name + ":")
    def __call__(self, text):
        for t in text.split("\n"):
            t = t.strip()
            if t: self.ins(t)
    def ins(self, text):
        i = Ins(text)
        if self.drop and (i.valu or i.mfma or i.ds): return
        dist = 0; pad = 0
        for p in reversed(self.hist[-24:]):
            pad = max(pad, need(p, i) - dist)
            dist += p.states
        if pad > 0:
            n = Ins(f"s_nop {pad-1}"); self.lines.append("    " + n.text); self.hist.append(n); self.nops += 1
        self.lines.append("    " + text); self.hist.append(i)
        c = 4 + (pad * 2 if pad > 0 else 0)
        if i.trans or i.op.startswith("v_pk"): c += 4
        if i.mfma: c += 12
        if i.ds: c += 4
        if i.op == "s_waitcnt" and "lgkmcnt" in text: c += 60
        if i.op == "s_barrier": c += 40
        self.cyc += c
        if i.vmem:
            self.vm.append(i); return len(self.vm) - 1
        if self.auto and (i.valu or i.mfma or i.ds) and self.cyc >= self.th:
            f = self.auto; self.auto = None
            f(); self.cyc = 0
            self.auto = f
    def vmem(self, text):
        return self.ins(text)
    def wait_vm(self, seq, extra=""):
        n = sum(1 for x in self.vm[seq + 1:] if not x.store)
        assert n <= 63
        self.ins(f"s_waitcnt vmcnt({n}) {extra}".strip())
    def text(self): return "\n".join(self.lines) + "\n"

class VAlloc:
    def __init__(self, lo, hi):
        self.free = set(range(lo, hi)); self.top = 0
    def get(self, n=1, align=None):
        align = align or (1 if n == 1 else 2)
        for s in sorted(self.free):
            if s % align == 0 and all(s + k in self.free for k in range(n)):
                for k in range(n): self.free.remove(s + k)
                self.top = max(self.top, s + n)
                return s
        raise RuntimeError("out of vgprs")
    def put(self, s, n=1):
        for k in range(n):
            assert s + k not in self.free
            self.free.add(s + k)
def vr(s, n): return f"v[{s}:{s+n-1}]" if n > 1 else f"v{s}"
def ar(s, n): return f"a[{s}:{s+n-1}]" if n > 1 else f"a{s}"
def sr(s, n): return f"s[{s}:{s+n-1}]" if n > 1 else f"s{s}"
```

```python
import sys, struct
from asmlib import *
NAME = "parallel_sum__sliding_block_cached__dense_activation_silu__decode"

def f2u(x): return struct.unpack("<I", struct.pack("<f", x))[0]
LOG2E = f2u(1.4426950408889634)
SCALE = f2u(128 ** -0.5)
OOB = 0x40000000
WS_H1, H1S = 0x1000, 2304
MLO = 2176
WS_H3 = 0x100000
WS_ST = 0x400000
L_WQ = 131072 - 20480; L_WO = L_WQ
L_XN = 131072; L_Q = L_XN + 1152; L_H = L_Q + 512; L_ML = L_H + 640; L_O = L_ML + 128; L_FL = L_O + 512
L_W1 = 134144; L_W2 = L_W1
L_OP = 0
LDS_BYTES = L_W1 + 24576

HEADER = open("cdna_kernels/" + NAME + ".s.ref").read().split("; Override launch")[0]

def gen(D=8, nt="nt", stamps=False, rot=True, scramble=False, spin=20000, wnt=None, probe=None, pmul=4, TH=200, prime=1, GK=26, DV=None, PR=24, strip=False, linw=False, lina=False, nohand=False, noswz=False, nopf=False, off=(), ldf='sc1', GM=28, early=True, force1=False, pipe=0):
    if wnt is None: wnt = nt
    A = Asm(); V = VAlloc(1, 256); A.th = TH
    if DV is None: DV = D
    light = stamps == 'light'
    A.raw(HEADER.rstrip("\n"))
    A.raw(f"; @launch grid=(256,1,1) block=(256,1,1) lds={LDS_BYTES}")
    A.raw('.amdgcn_target "amdgcn-amd-amdhsa--gfx950"')
    A.raw(".text"); A.raw(f".globl {NAME}_kernel"); A.raw(".p2align 8"); A.raw(f".type {NAME}_kernel,@function")
    A.label(f"{NAME}_kernel")
    sW = 3
    pX, pK, pV, pWQ, pWO, pW1, pW2, pOUT, pWS = 4, 6, 8, 10, 12, 16, 18, 20, 24
    dX, dK, dV, dWQ, dW1, dW2, dWO, dWS, dOUT = 28, 32, 36, 40, 44, 48, 52, 56, 60
    sG, sS, sB, sHKV, sBOX, sRot, sSo, sE, sT0, sT1, sT2 = 64, 65, 66, 67, 68, 69, 70, 71, 72, 73, 74
    sSel = 76
    sSelA, sSelB = 80, 81
    sU1, sU2 = 82, 84
    sSpin = 86; sC = 87; sPC = 26; sM = 88; sP = 90
    sSt = 98; sR = 40; sMode = 41; sIt = 42
    vSt = V.get() if stamps else None
    nst = [0]
    def stamp():
        if probe is not None:
            if nst[0] == probe: A("s_memrealtime s[100:101]"); A("s_waitcnt lgkmcnt(0)")
            nst[0] += 1
        if stamps and not light:
            au = A.auto; A.auto = None
            A(f"s_memrealtime s[{sSt}:{sSt+1}]"); A("s_waitcnt lgkmcnt(0)"); A(f"v_writelane_b32 v{vSt}, s{sSt}, {nst[0]}"); nst[0] += 1
            A.auto = au
    def spinrec(k):
        if stamps: A(f"v_writelane_b32 v{vSt}, s{sSpin}, {k}")
    def srd(d, p, off_s, nrec):
        if off_s is None:
            A(f"s_mov_b32 s{d}, s{p}"); A(f"s_mov_b32 s{d+1}, s{p+1}")
        else:
            A(f"s_add_u32 s{d}, s{p}, s{off_s}"); A(f"s_addc_u32 s{d+1}, s{p+1}, 0")
        A(f"s_mov_b32 s{d+2}, {nrec}"); A(f"s_mov_b32 s{d+3}, 0x20000")

    A("s_cmp_ge_u32 s2, 256"); A("s_cbranch_scc1 L_end")
    A("s_load_dwordx16 s[4:19], s[0:1], 0")
    A("s_load_dwordx2 s[20:21], s[0:1], 64")
    A("s_load_dwordx2 s[24:25], s[0:1], 80")
    if stamps or probe is not None: A(f"s_memrealtime s[{sSt}:{sSt+1}]")
    vJ = V.get(); vPa = V.get(2)
    A(f"s_getpc_b64 s[{sPC}:{sPC+1}]")
    A.label("L_pc")
    A(f"v_lshlrev_b32 v{vPa}, 6, v0")
    A(f"v_min_u32 v{vPa}, L_end-L_pc, v{vPa}")
    A(f"v_mov_b32 v{vPa+1}, s{sPC+1}")
    A(f"v_add_co_u32 v{vPa}, vcc, s{sPC}, v{vPa}")
    A(f"v_addc_co_u32 v{vPa+1}, vcc, 0, v{vPa+1}, vcc")
    if not nopf: A.vmem(f"global_load_dword v{vJ}, {vr(vPa,2)}, off")
    vL = V.get(); t0 = V.get(); t1 = V.get(); t2 = V.get(); t3 = V.get()
    A(f"v_lshrrev_b32 v{t0}, 6, v0")
    A(f"v_and_b32 v{vL}, 63, v0")
    A(f"v_readfirstlane_b32 s{sW}, v{t0}")
    if scramble:
        A(f"s_lshr_b32 s{sG}, s2, 2"); A(f"s_and_b32 s{sS}, s2, 3")
    else:
        A(f"s_and_b32 s{sT0}, s2, 7"); A(f"s_bfe_u32 s{sT1}, s2, 0x30003"); A(f"s_lshl3_add_u32 s{sG}, s{sT0}, s{sT1}")
        A(f"s_lshr_b32 s{sS}, s2, 6")
    vX = V.get(); vWq = V.get()
    A(f"v_lshlrev_b32 v{vX}, 5, v{vL}")
    A(f"v_lshrrev_b32 v{t0}, 3, v0"); A(f"v_and_b32 v{t1}, 7, v0"); A(f"v_lshlrev_b32 v{t1}, 4, v{t1}")
    A(f"v_lshl_or_b32 v{vWq}, v{t0}, 13, v{t1}")
    A(f"s_mul_i32 s{sT0}, s{sW}, 1152")
    A(f"s_mul_i32 s{sT1}, s{sS}, {144*8192}"); A(f"s_lshl_b32 s{sT2}, s{sG}, 7"); A(f"s_add_u32 s{sT1}, s{sT1}, s{sT2}")
    A(f"s_lshl_b32 s{sM}, s{sW}, 10")
    A(f"s_add_u32 m0, s{sM}, {L_WQ}")
    A("s_waitcnt lgkmcnt(0)")
    if stamps: A(f"v_mov_b32 v{vSt}, 0"); A(f"v_writelane_b32 v{vSt}, s{sSt}, 0"); nst[0] = 1
    if probe is not None: A(f"s_mov_b32 s100, s{sSt}"); nst[0] = 1
    srd(dX, pX, sT0, 1152)
    xr = V.get(8, 4)
    x0 = A.vmem(f"buffer_load_dwordx4 {vr(xr,4)}, v{vX}, {sr(dX,4)}, 0 offen")
    x1 = A.vmem(f"buffer_load_dwordx4 {vr(xr+4,4)}, v{vX}, {sr(dX,4)}, 0 offen offset:16")
    if lina:
        A(f"s_mul_i32 s{sT1}, s2, 18432"); A(f"v_lshlrev_b32 v{vWq}, 4, v0")
    srd(dWQ, pWQ, sT1, 18432 if lina else 143 * 8192 + 128)
    for r in range(5):
        if r:
            A("s_addk_i32 m0, 0x1000"); A(f"v_add_u32 v{vWq}, {0x1000 if lina else 0x40000}, v{vWq}")
        A.vmem(f"buffer_load_dwordx4 v{vWq}, {sr(dWQ,4)}, 0 offen {wnt} lds")
    A(f"s_load_dword s{sE}, s[{pWS}:{pWS+1}], 0")
    A(f"s_mul_i32 s{sT1}, s{sS}, {144*9216}"); A(f"s_mul_i32 s{sT2}, s{sG}, 144"); A(f"s_add_u32 s{sT1}, s{sT1}, s{sT2}")
    if lina: A(f"s_mul_i32 s{sT1}, s2, 20736")
    srd(dW1, pW1, sT1, 20736 if lina else 143 * 9216 + 144)
    def ragged_dma(d, lbase, rounds, magic, rowpad, flags):
        vP16 = V.get(); vMul = V.get(); vo = V.get()
        def mk(r):
            def f():
                if r == 0:
                    A(f"v_lshlrev_b32 v{vP16}, 4, v0"); A(f"v_mul_u32_u24 v{vMul}, {magic}, v0")
                else:
                    A(f"v_add_u32 v{vP16}, 0x1000, v{vP16}"); A(f"v_add_u32 v{vMul}, {magic*256}, v{vMul}")
                A(f"s_movk_i32 s{sC}, {0 if (linw and rowpad == 864) or (lina and rowpad != 864) else rowpad}")
                A(f"v_lshrrev_b32 v{vo}, 16, v{vMul}")
                A(f"s_add_u32 m0, s{sM}, {lbase + r*4096}")
                A(f"v_mad_u32_u24 v{vo}, v{vo}, s{sC}, v{vP16}")
                q = A.vmem(f"buffer_load_dwordx4 v{vo}, {sr(d,4)}, 0 offen {flags} lds")
                if r == rounds - 1:
                    V.put(vP16); V.put(vMul); V.put(vo)
                return q
            return f
        return [mk(r) for r in range(rounds)]
    for f in ragged_dma(dW1, L_W1, 6, 7282, 9072, wnt): lastA = f()
    V.put(vWq); V.put(vX); V.put(vPa, 2)
    stamp()
    A(f"s_and_b32 s{sB}, s{sG}, 3"); A(f"s_lshr_b32 s{sHKV}, s{sG}, 2")
    A(f"s_lshl4_add_u32 s{sT0}, s{sB}, s{sHKV}"); A(f"s_lshl_b32 s{sT0}, s{sT0}, 21")
    A(f"s_lshl_b32 s{sT1}, s{sS}, 17"); A(f"s_add_u32 s{sT0}, s{sT0}, s{sT1}"); A(f"s_add_u32 s{sT0}, s{sT0}, {6144*256}")
    srd(dK, pK, sT0, 131072); srd(dV, pV, sT0, 131072)
    srd(dWS, pWS, None, 0x800000)
    dNUL = 44
    def W(name): return sr(dNUL, 4) if name in off else sr(dWS, 4)
    if off: srd(dNUL, pWS, None, 0)
    A(f"s_lshl2_add_u32 s{sBOX}, s{sG}, s{sS}")
    if rot: A(f"s_lshl_b32 s{sRot}, s2, 12"); A(f"s_and_b32 s{sRot}, s{sRot}, 0x1f000")
    else: A(f"s_mov_b32 s{sRot}, 0")
    def primebox():
        A(f"s_mul_i32 s{sT0}, s{sBOX}, {H1S}"); A(f"s_add_u32 s{sT0}, s{sT0}, {WS_H1}")
        A(f"v_lshl_add_u32 v{t0}, v0, 7, s{sT0}"); A(f"v_cmp_gt_u32 vcc, 18, v0"); A(f"v_mov_b32 v{t1}, {hex(OOB)}")
        A(f"v_cndmask_b32 v{t0}, v{t1}, v{t0}, vcc")
        A.vmem(f"buffer_load_dword v{vJ}, v{t0}, {sr(dWS,4)}, 0 offen sc1")
    if prime & 1: primebox()
    A(f"s_mov_b32 s{sMode}, {1 if force1 else 0}"); A(f"s_mov_b32 s{sIt}, 0")
    vG = V.get(); vI = V.get()
    A(f"v_lshrrev_b32 v{vG}, 4, v{vL}"); A(f"v_and_b32 v{vI}, 15, v{vL}")
    vKo = V.get(4); vVo = V.get()
    A(f"v_lshlrev_b32 v{vVo}, 4, v0")
    A(f"v_lshlrev_b32 v{t0}, 6, v{vG}"); A(f"v_xor_b32 v{vKo}, v{vVo}, v{t0}")
    for i in range(1, 4): A(f"v_xor_b32 v{vKo+i}, {i*16}, v{vKo}")
    if noswz:
        for i in range(4): A(f"v_mov_b32 v{vKo+i}, v{vVo}")
    kseq = []; vseq = []
    bump = [0]
    def pace(d=None): A(f"s_waitcnt vmcnt({(d or D)-1+bump[0]})")
    def so(j):
        if j == 0: A(f"s_mov_b32 s{sSo}, s{sRot}")
        else: A(f"s_addk_i32 s{sSo}, 0x1000"); A(f"s_and_b32 s{sSo}, s{sSo}, 0x1f000")
    def stepK(n=1):
        for _ in range(n):
            j = len(kseq)
            A(f"s_add_u32 m0, s{sM}, {j*4096}"); so(j); pace()
            kseq.append(A.vmem(f"buffer_load_dwordx4 v{vKo + (j & 3)}, {sr(dK,4)}, s{sSo} offen {nt} lds"))
    def stepV(n=1, d=None):
        for _ in range(n):
            j = len(vseq)
            so(j); pace(d or DV)
            vseq.append(A.vmem(f"buffer_load_dwordx4 {ar(4*j,4)}, v{vVo}, {sr(dV,4)}, s{sSo} offen {nt}"))
    lim = [0]
    def pos(): return len(kseq) + len(vseq)
    def step(n=1):
        for _ in range(n):
            if len(kseq) < 32: stepK(1)
            else: stepV(1)
    def autoK():
        if pos() < lim[0]: step(1)
    autoV = autoK
    def allred_groups(v, t, op):
        A(f"v_mov_b32 v{t}, v{v}"); A(f"v_permlane16_swap_b32 v{v}, v{t}"); A(f"{op} v{v}, v{v}, v{t}")
        A(f"v_mov_b32 v{t}, v{v}"); A(f"v_permlane32_swap_b32 v{v}, v{t}"); A(f"{op} v{v}, v{v}, v{t}")
    def allred64(v, t):
        for k in (8, 4, 2, 1): A(f"v_add_f32_dpp v{v}, v{v}, v{v} row_ror:{k} row_mask:0xf bank_mask:0xf")
        allred_groups(v, t, "v_add_f32")
    def unpack(dst, src, n):
        for k in range(n):
            A(f"v_and_b32 v{dst+2*k+1}, 0xffff0000, v{src+k}"); A(f"v_lshlrev_b32 v{dst+2*k}, 16, v{src+k}")
    A.wait_vm(x1)
    stamp()
    A.cyc = -200; lim[0] = D; A.auto = autoK
    xf = V.get(16); d16 = V.get(16); p2 = V.get(2); pm = V.get(2)
    unpack(xf, xr, 8)
    A(f"v_pk_add_f32 {vr(p2,2)}, {vr(xf,2)}, {vr(xf+2,2)}")
    for k in range(2, 8): A(f"v_pk_add_f32 {vr(p2,2)}, {vr(p2,2)}, {vr(xf+2*k,2)}")
    A(f"v_add_f32 v{pm}, v{p2}, v{p2+1}")
    allred64(pm, t0)
    A(f"v_mul_f32 v{pm}, {hex(f2u(1/576))}, v{pm}")
    for k in range(8): A(f"v_pk_add_f32 {vr(d16+2*k,2)}, {vr(xf+2*k,2)}, {vr(pm,2)} op_sel_hi:[1,0] neg_lo:[0,1] neg_hi:[0,1]")
    A(f"v_pk_mul_f32 {vr(p2,2)}, {vr(d16,2)}, {vr(d16,2)}")
    for k in range(1, 8): A(f"v_pk_fma_f32 {vr(p2,2)}, {vr(d16+2*k,2)}, {vr(d16+2*k,2)}, {vr(p2,2)}")
    A(f"v_cmp_gt_u32 vcc, 36, v{vL}")
    A(f"v_add_f32 v{t1}, v{p2}, v{p2+1}")
    A(f"v_cndmask_b32 v{t1}, 0, v{t1}, vcc")
    allred64(t1, t0)
    A(f"v_mul_f32 v{t1}, {hex(f2u(1/576))}, v{t1}")
    A(f"v_cvt_pk_bf16_f32 v{t0}, v{pm}, v{t1}")
    A(f"v_lshlrev_b32 v{pm}, 16, v{t0}"); A(f"v_and_b32 v{t1}, 0xffff0000, v{t0}")
    A(f"v_add_f32 v{t1}, {hex(f2u(1e-5))}, v{t1}")
    A(f"v_cvt_pk_bf16_f32 v{t1}, v{t1}, v{t1}"); A(f"v_lshlrev_b32 v{t1}, 16, v{t1}")
    A(f"v_sqrt_f32 v{t1}, v{t1}")
    A(f"v_cvt_pk_bf16_f32 v{t1}, v{t1}, v{t1}"); A(f"v_lshlrev_b32 v{t1}, 16, v{t1}")
    A(f"v_rcp_f32 v{p2}, v{t1}")
    for k in range(8): A(f"v_pk_add_f32 {vr(d16+2*k,2)}, {vr(xf+2*k,2)}, {vr(pm,2)} op_sel_hi:[1,0] neg_lo:[0,1] neg_hi:[0,1]")
    for k in range(8): A(f"v_cvt_pk_bf16_f32 v{xr+k}, v{d16+2*k}, v{d16+2*k+1}")
    unpack(xf, xr, 8)
    for k in range(8): A(f"v_pk_mul_f32 {vr(xf+2*k,2)}, {vr(xf+2*k,2)}, {vr(p2,2)} op_sel_hi:[1,0]")
    for k in range(8): A(f"v_cvt_pk_bf16_f32 v{xr+k}, v{xf+2*k}, v{xf+2*k+1}")
    A(f"s_mul_i32 s{sT0}, s{sS}, 9"); A(f"s_sub_u32 s{sT1}, s{sW}, s{sS}"); A(f"s_mul_i32 s{sT1}, s{sT1}, 288"); A(f"s_add_u32 s{sT1}, s{sT1}, {L_XN}")
    A(f"v_lshl_add_u32 v{t0}, v{vL}, 5, s{sT1}")
    A.auto = None
    A(f"s_lshl_b64 exec, 0x1ff, s{sT0}")
    A(f"ds_write_b128 v{t0}, {vr(xr,4)}"); A(f"ds_write_b128 v{t0}, {vr(xr+4,4)} offset:16")
    A("s_mov_b64 exec, -1")
    V.put(xf, 16); V.put(d16, 16); V.put(p2, 2); V.put(pm, 2)
    A.auto = autoK
    A("s_waitcnt lgkmcnt(0)")
    V.put(xr, 8)
    vT1 = V.get(); vT2 = V.get()
    A(f"s_add_u32 s{sE}, s{sE}, 1"); A(f"s_mul_i32 s{sT0}, s{sE}, 0x9E3779B1")
    A(f"s_getreg_b32 s{sT1}, hwreg(HW_REG_XCC_ID, 0, 4)"); A(f"s_lshl_b32 s{sT1}, s{sT1}, 28")
    A(f"s_add_u32 s{sT2}, s{sT0}, 0x4a3c5e12"); A(f"s_xor_b32 s{sT0}, s{sT0}, s{sT1}")
    A(f"v_mov_b32 v{vT1}, s{sT0}"); A(f"v_mov_b32 v{vT2}, s{sT2}")
    for r in range(4): A(f"s_mov_b32 s{sSel+r}, {hex(0x07060500 + r)}")
    A(f"s_mov_b32 s{sSelA}, 0x0c0c0400"); A(f"s_mov_b32 s{sSelB}, 0x04000c0c")
    A(f"s_mov_b32 s{sU1}, 0x00f000f0"); A(f"s_mov_b32 s{sU1+1}, 0x00f000f0")
    A(f"s_mov_b32 s{sU2}, 0x0f000f00"); A(f"s_mov_b32 s{sU2+1}, 0x0f000f00")
    A(f"s_mov_b32 s{sSpin}, {spin}")
    def tag(v, vT=None):
        vT = vT or vT2
        for r in range(4): A(f"v_perm_b32 v{v+r}, v{v+r}, v{vT}, s{sSel+r}")
    def chk(v, dst, vT=None):
        vT = vT or vT2
        A(f"v_perm_b32 v{t0}, v{v+1}, v{v}, s{sSelA}"); A(f"v_perm_b32 v{t1}, v{v+3}, v{v+2}, s{sSelB}")
        A(f"v_or_b32 v{t0}, v{t0}, v{t1}"); A(f"v_cmp_ne_u32 {dst}, v{vT if nohand else t0}, v{vT}")
    def untag(d, v):
        for r in range(4): A(f"v_and_b32 v{d+r}, 0xffffff00, v{v+r}")
    def tred(v):
        A(f"v_permlane32_swap_b32 v{v}, v{v+2}"); A(f"v_permlane32_swap_b32 v{v+1}, v{v+3}")
        A(f"v_add_f32 v{v}, v{v}, v{v+2}"); A(f"v_add_f32 v{v+1}, v{v+1}, v{v+3}")
        A(f"v_permlane16_swap_b32 v{v}, v{v+1}"); A(f"v_add_f32 v{v}, v{v}, v{v+1}")
    def select3(o, d0, d1, d2):
        for r in range(4): A(f"v_cndmask_b32 v{o+r}, v{d0+r}, v{d1+r}, {sr(sU1,2)}")
        for r in range(4): A(f"v_cndmask_b32 v{o+r}, v{o+r}, v{d2+r}, {sr(sU2,2)}")
    vB3 = V.get(); vQ4 = V.get()
    A(f"v_and_b32 v{vB3}, 3, v{vL}"); A(f"v_lshrrev_b32 v{vQ4}, 2, v{vL}")
    aXb = V.get(); aWq = V.get(); aW1 = V.get(); aW1h = V.get(); aH1 = V.get()
    A(f"v_mul_u32_u24 v{aXb}, 288, v{vB3}"); A(f"v_lshl_add_u32 v{aXb}, v{vG}, 3, v{aXb}"); A(f"v_add_u32 v{aXb}, {L_XN}, v{aXb}")
    A(f"s_lshl_b32 s{sT0}, s{sW}, 5")
    A(f"v_lshlrev_b32 v{t2}, 3, v{vB3}")
    A(f"v_lshl_add_u32 v{aWq}, v{vQ4}, 7, v{t2}"); A(f"s_add_u32 s{sT1}, s{sT0}, {L_WQ}"); A(f"v_add_u32 v{aWq}, s{sT1}, v{aWq}")
    A(f"v_mul_u32_u24 v{aW1h}, 144, v{vQ4}"); A(f"v_add_u32 v{aW1h}, v{aW1h}, v{t2}"); A(f"v_add_u32 v{aW1h}, {L_W1}, v{aW1h}")
    A(f"v_add_u32 v{aW1}, s{sT0}, v{aW1h}")
    A(f"s_lshl_b32 s{sT0}, s{sW}, 6")
    A(f"v_lshlrev_b32 v{t2}, 4, v{vG}")
    A(f"v_lshl_add_u32 v{aH1}, v{vB3}, 8, v{t2}"); A(f"v_add_u32 v{aH1}, s{sT0}, v{aH1}")
    A(f"v_mul_u32_u24 v{t3}, 288, v{vB3}"); A(f"v_add_u32 v{t3}, v{t3}, v{t2}")
    A(f"s_add_u32 s{sT0}, s{sT0}, 1024"); A(f"v_add_u32 v{t0}, s{sT0}, v{t3}")
    A(f"v_cndmask_b32 v{aH1}, v{aH1}, v{t0}, {sr(sU1,2)}")
    A(f"v_add_u32 v{t0}, {1024+256}, v{t3}")
    A(f"v_cndmask_b32 v{aH1}, v{aH1}, v{t0}, {sr(sU2,2)}")
    A(f"s_lshl_b32 s{sT0}, 0x01000100, s{sW}"); A(f"s_or_b32 vcc_lo, s{sT0}, 0x00ff00ff"); A("s_mov_b32 vcc_hi, 0x00ff00ff")
    A(f"s_mul_i32 s{sT0}, s{sBOX}, {H1S}"); A(f"s_add_u32 s{sT0}, s{sT0}, {WS_H1}")
    A(f"v_add_u32 v{aH1}, s{sT0}, v{aH1}")
    A(f"v_mov_b32 v{t0}, {hex(OOB)}")
    A(f"v_cndmask_b32 v{aH1}, v{t0}, v{aH1}, vcc")
    while len(kseq) < D: stepK(1)
    A.wait_vm(lastA)
    A("s_barrier")
    stepK(1); A.cyc = 0; lim[0] = 24
    stamp()
    fr = [V.get(24), V.get(24)]; acc = V.get(12, 4)
    def batchA(bi):
        f = fr[bi & 1]
        for k in range(3):
            st = 3 * bi + k
            A(f"ds_read_b64 {vr(f+8*k,2)}, v{aXb} offset:{st*32}")
            A(f"ds_read_b64_tr_b16 {vr(f+8*k+2,2)}, v{aWq} offset:{st*2048}")
            A(f"ds_read_b64_tr_b16 {vr(f+8*k+4,2)}, v{aW1} offset:{st*2304}")
            A(f"ds_read_b64_tr_b16 {vr(f+8*k+6,2)}, v{aW1h} offset:{st*2304+128}")
    def mfmaA(bi):
        f = fr[bi & 1]
        for k in range(3):
            for tl in range(3):
                c = "0" if (bi == 0 and k == 0) else vr(acc+4*tl, 4)
                A(f"v_mfma_f32_16x16x16_bf16 {vr(acc+4*tl,4)}, {vr(f+8*k+2+2*tl,2)}, {vr(f+8*k,2)}, {c}")
    batchA(0); A("s_waitcnt lgkmcnt(0)")
    batchA(1); mfmaA(0); A("s_waitcnt lgkmcnt(0)")
    A("s_nop 7")
    batchA(2); mfmaA(1); A("s_waitcnt lgkmcnt(0)")
    mfmaA(2)
    o4 = V.get(4, 4)
    select3(o4, acc, acc + 4, acc + 8); tag(o4, vT1)
    A.vmem(f"buffer_store_dwordx4 {vr(o4,4)}, v{aH1}, {W('h1s')}, 0 offen")
    stamp()
    V.put(fr[0], 24); V.put(fr[1], 24); V.put(acc, 12)
    for r in (aXb, aWq, aW1, aW1h): V.put(r)
    stepK(1)
    assert len(kseq) <= 27
    A("s_barrier")
    V.put(aH1); V.put(o4, 4)
    aGq = V.get(); aGh = V.get(); aGh2 = V.get()
    A(f"v_mul_u32_u24 v{t2}, {H1S}, v{vG}"); A(f"v_lshl_add_u32 v{t2}, v{vI}, 4, v{t2}")
    A(f"s_lshl2_add_u32 s{sT0}, s{sHKV}, s{sW}"); A(f"s_mul_i32 s{sT0}, s{sT0}, {4*H1S}"); A(f"s_lshl_b32 s{sT1}, s{sB}, 8"); A(f"s_add_u32 s{sT0}, s{sT0}, s{sT1}"); A(f"s_add_u32 s{sT0}, s{sT0}, {WS_H1}")
    A(f"v_add_u32 v{aGq}, s{sT0}, v{t2}")
    A(f"s_mul_i32 s{sT0}, s{sG}, {4*H1S}"); A(f"s_mul_i32 s{sT1}, s{sW}, 288"); A(f"s_add_u32 s{sT0}, s{sT0}, s{sT1}"); A(f"s_add_u32 s{sT0}, s{sT0}, {WS_H1+1024}")
    A(f"v_add_u32 v{aGh}, s{sT0}, v{t2}")
    A(f"v_cmp_gt_u32 vcc, 2, v{vI}"); A(f"v_add_u32 v{aGh2}, 256, v{aGh}"); A(f"v_mov_b32 v{t0}, {hex(OOB)}")
    A(f"v_cndmask_b32 v{aGh2}, v{t0}, v{aGh2}, vcc")
    vM = V.get(4)
    A(f"v_and_b32 v{t0}, 1, v{vL}"); A(f"v_lshlrev_b32 v{t0}, 4, v{t0}"); A(f"v_mov_b32 v{t1}, 0xffff"); A(f"v_lshlrev_b32 v{t1}, v{t0}, v{t1}")
    A(f"v_bfe_u32 v{t0}, v{vL}, 1, 2")
    for k in range(4):
        A(f"v_cmp_eq_u32 vcc, {k}, v{t0}"); A(f"v_cndmask_b32 v{vM+k}, 0, v{t1}, vcc")
    aQw = V.get(); aHw = V.get(); aQr = V.get(); aKr = V.get(4)
    A(f"v_lshl_add_u32 v{t0}, v{vI}, 2, v{vG}"); A(f"v_lshlrev_b32 v{t0}, 1, v{t0}")
    A(f"s_lshl_b32 s{sT0}, s{sW}, 7"); A(f"s_add_u32 s{sT0}, s{sT0}, {L_Q}"); A(f"v_add_u32 v{aQw}, s{sT0}, v{t0}")
    A(f"s_mul_i32 s{sT0}, s{sW}, 160"); A(f"s_add_u32 s{sT0}, s{sT0}, {L_H}"); A(f"v_add_u32 v{aHw}, s{sT0}, v{t0}")
    A(f"v_lshrrev_b32 v{t0}, 3, v{vI}"); A(f"v_lshlrev_b32 v{t0}, 8, v{t0}"); A(f"v_lshl_add_u32 v{aQr}, v{vG}, 4, v{t0}"); A(f"v_add_u32 v{aQr}, {L_Q}, v{aQr}")
    A(f"v_xor_b32 v{t0}, v{vG}, v{vI}"); A(f"v_lshlrev_b32 v{t0}, 4, v{t0}")
    A(f"v_lshl_add_u32 v{t0}, v{vB3}, 12, v{t0}"); A(f"v_lshrrev_b32 v{t1}, 2, v{vI}"); A(f"v_lshl_add_u32 v{t0}, v{t1}, 8, v{t0}")
    A(f"v_add_u32 v{aKr}, s{sM}, v{t0}")
    for k in range(1, 4): A(f"v_xor_b32 v{aKr+k}, {k*64}, v{aKr}")
    aOPw = V.get(); aOPr = V.get(); aH2 = V.get(); aG2 = V.get(); aGm = V.get(); aOw = V.get(); aOr = V.get(); aHr = V.get()
    aW = V.get(); aW8 = V.get(); aH3 = V.get()
    def addr_block1():
        A(f"v_lshrrev_b32 v{t0}, 1, v{vG}"); A(f"v_lshlrev_b32 v{t0}, 9, v{t0}"); A(f"v_lshl_add_u32 v{t0}, v{vI}, 5, v{t0}")
        A(f"v_and_b32 v{t1}, 1, v{vG}"); A(f"v_lshl_add_u32 v{t0}, v{t1}, 4, v{t0}"); A(f"v_add_u32 v{aOPw}, s{sM}, v{t0}")
        A(f"s_lshl_b32 s{sT1}, s{sW}, 8"); A(f"v_lshl_add_u32 v{aOPr}, v{vI}, 4, s{sT1}")
        A(f"s_mul_i32 s{sT0}, s{sBOX}, {H1S}"); A(f"s_add_u32 s{sT0}, s{sT0}, {WS_H1}"); A(f"v_add_u32 v{aH2}, s{sT0}, v{aOPr}")
        A(f"v_and_b32 v{t0}, 12, v{vL}"); A(f"v_add_u32 v{t0}, v{t0}, v{vG}"); A(f"v_mul_u32_u24 v{t0}, {H1S}, v{t0}")
        A(f"s_mul_i32 s{sT0}, s{sHKV}, {16*H1S}"); A(f"s_add_u32 s{sT0}, s{sT0}, {WS_H1}")
        A(f"s_add_u32 s{sT1}, s{sT0}, {MLO}"); A(f"v_add_u32 v{aGm}, s{sT1}, v{t0}")
        A(f"s_lshl2_add_u32 s{sT1}, s{sB}, s{sW}"); A(f"s_lshl_b32 s{sT1}, s{sT1}, 6"); A(f"s_add_u32 s{sT0}, s{sT0}, s{sT1}")
        A(f"v_lshl_add_u32 v{t0}, v{vB3}, 4, v{t0}"); A(f"v_add_u32 v{aG2}, s{sT0}, v{t0}")
    def addr_block2():
        A(f"s_lshr_b32 s{sT0}, s{sW}, 1"); A(f"s_lshl_b32 s{sT0}, s{sT0}, 6"); A(f"s_and_b32 s{sT1}, s{sW}, 1"); A(f"s_lshl3_add_u32 s{sT0}, s{sT1}, s{sT0}"); A(f"s_add_u32 s{sT0}, s{sT0}, {L_O}")
        A(f"v_and_b32 v{t0}, 12, v{vL}"); A(f"v_lshlrev_b32 v{t0}, 5, v{t0}"); A(f"v_lshl_add_u32 v{t0}, v{vB3}, 4, v{t0}"); A(f"v_lshl_add_u32 v{t0}, v{vG}, 1, v{t0}")
        A(f"v_add_u32 v{aOw}, s{sT0}, v{t0}")
        A(f"v_lshlrev_b32 v{t0}, 7, v{vB3}"); A(f"v_lshl_add_u32 v{t0}, v{vG}, 4, v{t0}"); A(f"v_add_u32 v{aOr}, {L_O}, v{t0}")
        A(f"v_mul_u32_u24 v{t0}, 160, v{vB3}"); A(f"v_lshl_add_u32 v{t0}, v{vG}, 3, v{t0}"); A(f"v_add_u32 v{aHr}, {L_H}, v{t0}")
        A(f"v_mul_u32_u24 v{t0}, 288, v{vQ4}"); A(f"v_lshl_add_u32 v{t0}, v{vB3}, 3, v{t0}"); A(f"v_add_u32 v{aW8}, {L_WO}, v{t0}")
        A(f"s_lshl_b32 s{sT0}, s{sW}, 5"); A(f"v_add_u32 v{aW}, s{sT0}, v{aW8}")
    def addr_block3():
        A(f"s_mul_i32 s{sT0}, s{sS}, {18*8192}"); A(f"s_lshl_b32 s{sT1}, s{sG}, 7"); A(f"s_add_u32 s{sT0}, s{sT0}, s{sT1}"); A(f"s_add_u32 s{sT0}, s{sT0}, {WS_H3}")
        A(f"s_lshl_b32 s{sT1}, s{sW}, 15"); A(f"s_add_u32 s{sT1}, s{sT1}, s{sT0}")
        A(f"v_lshlrev_b32 v{t0}, 13, v{vG}"); A(f"v_lshl_add_u32 v{t0}, v{vI}, 4, v{t0}"); A(f"v_add_u32 v{aH3}, s{sT1}, v{t0}")
        A(f"s_lshl_b32 s{sT1}, s{sW}, 13"); A(f"s_add_u32 s{sT1}, s{sT1}, s{sT0}"); A(f"s_add_u32 s{sT1}, s{sT1}, {16*8192}")
        A(f"v_and_b32 v{t0}, 1, v{vG}"); A(f"v_lshlrev_b32 v{t0}, 6, v{t0}"); A(f"v_lshl_add_u32 v{t0}, v{vB3}, 4, v{t0}"); A(f"v_add_u32 v{t0}, s{sT1}, v{t0}")
        A(f"v_cndmask_b32 v{aH3}, v{aH3}, v{t0}, {sr(sU2,2)}")
        A(f"s_cmp_eq_u32 s{sW}, 0"); A(f"s_cselect_b32 s{sT0}, 0x0f000f00, 0"); A(f"s_or_b32 vcc_lo, s{sT0}, 0x00ff00ff")
        A(f"s_cmp_eq_u32 s{sW}, 1"); A(f"s_cselect_b32 s{sT0}, 0x0f000f00, 0"); A(f"s_or_b32 vcc_hi, s{sT0}, 0x00ff00ff")
        A(f"v_mov_b32 v{t0}, {hex(OOB)}"); A(f"v_cndmask_b32 v{aH3}, v{t0}, v{aH3}, vcc")
        if linw:
            A(f"s_mul_i32 s{sT0}, s{sBOX}, {18*1152}"); srd(dW2, pW2, sT0, 18 * 1152)
            A(f"s_mul_i32 s{sT0}, s{sBOX}, {16*1152}"); srd(dWO, pWO, sT0, 16 * 1152)
        else:
            A(f"s_mul_i32 s{sT1}, s{sS}, 288")
            A(f"s_mul_i32 s{sT0}, s{sG}, {72*1152}"); A(f"s_add_u32 s{sT0}, s{sT0}, s{sT1}"); srd(dW2, pW2, sT0, 71 * 1152 + 288)
            A(f"s_mul_i32 s{sT0}, s{sG}, {64*1152}"); A(f"s_add_u32 s{sT0}, s{sT0}, s{sT1}"); srd(dWO, pWO, sT0, 63 * 1152 + 288)
    aR = V.get(); aOut = V.get(); vXo = V.get()
    def addr_block4():
        A(f"s_lshl_b32 s{sT0}, s2, 13"); A(f"s_lshl_b32 s{sT1}, s{sW}, 5"); A(f"s_add_u32 s{sT0}, s{sT0}, s{sT1}"); A(f"s_add_u32 s{sT0}, s{sT0}, {WS_H3}")
        A(f"v_lshrrev_b32 v{t0}, 1, v{vL}"); A(f"v_lshlrev_b32 v{t0}, 7, v{t0}"); A(f"v_and_b32 v{t1}, 1, v{vL}"); A(f"v_lshl_add_u32 v{t0}, v{t1}, 4, v{t0}")
        A(f"v_add_u32 v{aR}, s{sT0}, v{t0}")
        A(f"s_mul_i32 s{sT0}, s2, 3641"); A(f"s_lshr_b32 s{sT0}, s{sT0}, 16")
        A(f"s_mul_i32 s{sT1}, s{sT0}, 18"); A(f"s_sub_u32 s{sT1}, s2, s{sT1}")
        A(f"s_lshr_b32 s{sT2}, s{sW}, 1")
        A(f"s_lshl4_add_u32 s{sC}, s{sT2}, s{sT1}")
        A(f"s_lshl1_add_u32 s{sT2}, s{sT1}, s{sT2}")
        A(f"s_cmp_lt_u32 s{sT1}, 16"); A(f"s_cselect_b32 s{sT1}, s{sC}, s{sT2}")
        A(f"s_mul_i32 s{sT0}, s{sT0}, 288"); A(f"s_lshl3_add_u32 s{sT0}, s{sT1}, s{sT0}")
        A(f"s_and_b32 s{sT1}, s{sW}, 1"); A(f"s_mul_i32 s{sT1}, s{sT1}, 2304"); A(f"s_add_u32 s{sT0}, s{sT0}, s{sT1}")
        A(f"v_mul_u32_u24 v{t1}, 1152, v{t1}"); A(f"v_lshl_add_u32 v{t1}, v{vG}, 1, v{t1}"); A(f"v_add_u32 v{aOut}, s{sT0}, v{t1}")
        A(f"v_cmp_gt_u32 vcc, 2, v{vI}"); A(f"v_mov_b32 v{t0}, {hex(OOB)}"); A(f"v_cndmask_b32 v{aOut}, v{t0}, v{aOut}, vcc")
        srd(dX, pX, None, 4608); srd(dOUT, pOUT, None, 4608)
        A(f"s_movk_i32 s{sR}, 0x1000")
        A.vmem(f"buffer_load_ushort v{vXo}, v{aOut}, {sr(dX,4)}, 0 offen")
    lim[0] = GK
    for f in (addr_block1, addr_block2, addr_block3, addr_block4): f()
    A.auto = None
    print("K steps issued after address blocks:", len(kseq), file=sys.stderr)
    while len(kseq) < GK: stepK(1)
    stamp()
    gq = V.get(4, 4); gh = V.get(4, 4); gh2 = V.get(4, 4)
    def gatherH1():
        A.vmem(f"buffer_load_dwordx4 {vr(gq,4)}, v{aGq}, {W('h1g')}, 0 offen {ldf}")
        A.vmem(f"buffer_load_dwordx4 {vr(gh,4)}, v{aGh}, {W('h1g')}, 0 offen {ldf}")
        return A.vmem(f"buffer_load_dwordx4 {vr(gh2,4)}, v{aGh2}, {W('h1g')}, 0 offen {ldf}")
    g1 = gatherH1()
    bump[0] = 2
    step(D)
    bump[0] = 0
    A.wait_vm(g1)
    stamp()
    slow = []
    A.label("L_chk1")
    chk(gq, sr(sP, 2), vT1); chk(gh, sr(sP + 2, 2), vT1); chk(gh2, "vcc", vT1)
    A(f"s_and_b32 vcc_lo, vcc_lo, 0x00030003"); A(f"s_and_b32 vcc_hi, vcc_hi, 0x00030003")
    A(f"s_or_b64 vcc, vcc, {sr(sP,2)}"); A(f"s_or_b64 vcc, vcc, {sr(sP+2,2)}")
    A("s_cbranch_scc1 L_slow1")
    A.label("L_ok1")
    spinrec(58)
    def slow1():
        A.label("L_slow1")
        A(f"s_sub_u32 s{sSpin}, s{sSpin}, 1"); A("s_cbranch_scc1 L_end")
        A(f"s_mov_b64 {sr(sP,2)}, 0")
        for v in (gq, gh, gh2):
            if v == gh2: A("s_mov_b32 exec_lo, 0x00030003"); A("s_mov_b32 exec_hi, 0x00030003")
            chk(v, sr(sP + 2, 2), vT1)
            A(f"v_xor_b32 v{t0}, v{t0}, v{vT1}"); A(f"v_lshlrev_b32 v{t0}, 4, v{t0}"); A(f"v_cmp_ne_u32 vcc, 0, v{t0}")
            A(f"s_or_b64 {sr(sP,2)}, {sr(sP,2)}, vcc")
            A(f"s_andn2_b64 vcc, {sr(sP+2,2)}, vcc"); A(f"s_cselect_b32 s{sMode}, 1, s{sMode}")
        A("s_mov_b64 exec, -1")
        A(f"s_cmp_eq_u64 {sr(sP,2)}, 0"); A("s_cbranch_scc1 L_ok1")
        A(f"s_add_u32 s{sIt}, s{sIt}, 1"); A(f"s_cmp_lt_u32 s{sIt}, 4"); A("s_cbranch_scc1 L_slow1b")
        copybox("a")
        A.label("L_slow1b")
        n = len(A.vm); gatherH1(); del A.vm[n:]
        A("s_waitcnt vmcnt(0)"); A("s_branch L_chk1")
    slow.append(slow1)
    cp = V.get(4, 4); cpa = V.get()
    def copybox(nm):
        n = len(A.vm)
        A(f"s_mul_i32 s{sT0}, s{sBOX}, {H1S}"); A(f"s_add_u32 s{sT0}, s{sT0}, {WS_H1}"); A(f"v_lshl_add_u32 v{cpa}, v{vL}, 4, s{sT0}")
        for k in range(3):
            if k == 2: A("s_mov_b64 exec, 0xff")
            A.vmem(f"buffer_load_dwordx4 {vr(cp,4)}, v{cpa}, {sr(dWS,4)}, 0 offen offset:{k*1024} sc1")
            A("s_waitcnt vmcnt(0)")
            chk(cp, "vcc", vT1)
            A("s_andn2_b64 exec, exec, vcc"); A(f"s_cbranch_execz L_cp{nm}{k}")
            A.vmem(f"buffer_store_dwordx4 {vr(cp,4)}, v{cpa}, {sr(dWS,4)}, 0 offen offset:{k*1024} sc1")
            A.label(f"L_cp{nm}{k}")
            A("s_mov_b64 exec, -1")
            A("s_waitcnt vmcnt(0)")
        del A.vm[n:]
    def pubstore(nm, text):
        A(f"s_cmp_lg_u32 s{sMode}, 0"); A(f"s_cbranch_scc1 L_alt{nm}")
        A.vmem(text)
        A.label(f"L_altb{nm}")
        def alt():
            A.label(f"L_alt{nm}")
            n = len(A.vm); A.vmem(text + " sc1"); del A.vm[n:]
            A("s_nop 1"); A(f"s_branch L_altb{nm}")
        slow.append(alt)
    step(1); A.cyc = 0; lim[0] = 60; A.auto = autoV
    for v in (gq, gh, gh2): untag(v, v)
    for v in (gq, gh, gh2): tred(v)
    A(f"v_cvt_pk_bf16_f32 v{gq}, v{gq}, v{gq}")
    A(f"ds_write_b16 v{aQw}, v{gq}")
    A(f"s_lshl2_add_u32 s{sT0}, s{sW}, {L_FL}"); A(f"v_mov_b32 v{t2}, s{sT0}"); A(f"v_mov_b32 v{t3}, s{sMode}")
    A(f"ds_write_b32 v{t2}, v{t3}")
    A(f"v_cvt_pk_bf16_f32 v{t0}, v{gh}, v{gh2}")
    A(f"v_lshlrev_b32 v{gh}, 16, v{t0}"); A(f"v_and_b32 v{gh2}, 0xffff0000, v{t0}")
    for v in (gh, gh2): A(f"v_mul_f32 v{v+1}, {hex(LOG2E | 0x80000000)}, v{v}")
    for v in (gh, gh2): A(f"v_exp_f32 v{v+1}, v{v+1}")
    for v in (gh, gh2): A(f"v_add_f32 v{v+1}, 1.0, v{v+1}")
    for v in (gh, gh2): A(f"v_rcp_f32 v{v+1}, v{v+1}")
    for v in (gh, gh2): A(f"v_mul_f32 v{v}, v{v}, v{v+1}")
    A(f"v_cvt_pk_bf16_f32 v{t0}, v{gh}, v{gh2}")
    A(f"ds_write_b16 v{aHw}, v{t0}")
    A.auto = None
    A("s_mov_b32 exec_lo, 0x000f000f"); A("s_mov_b32 exec_hi, 0x000f000f")
    A(f"ds_write_b16_d16_hi v{aHw}, v{t0} offset:128")
    A("s_mov_b64 exec, -1")
    step(1); A.cyc = 0; A.auto = autoV
    A("s_waitcnt lgkmcnt(0)")
    A("s_barrier")
    stamp()
    A(f"v_mov_b32 v{t2}, {L_FL}"); A(f"ds_read_b128 {vr(gq,4)}, v{t2}")
    def modecheck():
        au = A.auto; A.auto = None
        A(f"v_or3_b32 v{t2}, v{gq}, v{gq+1}, v{gq+2}"); A(f"v_or_b32 v{t2}, v{t2}, v{gq+3}")
        A(f"v_readfirstlane_b32 s{sMode}, v{t2}")
        A(f"s_cmp_lg_u32 s{sMode}, 0"); A("s_cbranch_scc1 L_mode1")
        A.label("L_mode1b")
        def mode1():
            A.label("L_mode1"); copybox("b"); A("s_branch L_mode1b")
        slow.append(mode1)
        A.auto = au
    V.put(aQw); V.put(aHw)
    if strip: A.drop = True
    qf = V.get(16, 4); kf = [V.get(16, 4), V.get(16, 4)]; S = V.get(32, 4)
    for st in range(4): A(f"ds_read_b128 {vr(qf+4*st,4)}, v{aQr} offset:{st*64}")
    def rdK(t):
        if 4 * t + 3 >= GK:
            while pos() < 4 * t + 3 + D: step(1); A.cyc = 0
            A.wait_vm(kseq[4 * t + 3])
        if t == 4:
            for k in range(4): A(f"v_add_u32 v{aKr+k}, 0x10000, v{aKr+k}")
        for st in range(4): A(f"ds_read_b128 {vr(kf[t&1]+4*st,4)}, v{aKr+st} offset:{(t&3)*16384}")
    rdK(0)
    for t in range(8):
        if t < 7:
            rdK(t + 1); A("s_waitcnt lgkmcnt(4)")
        else: A("s_waitcnt lgkmcnt(0)")
        for st in range(4):
            c = "0" if st == 0 else vr(S+4*t, 4)
            A(f"v_mfma_f32_16x16x32_bf16 {vr(S+4*t,4)}, {vr(kf[t&1]+4*st,4)}, {vr(qf+4*st,4)}, {c}")
        if t < 7: A("s_nop 3")
        if t == 0: modecheck()
    V.put(qf, 16); V.put(kf[0], 16); V.put(kf[1], 16); V.put(aQr); V.put(aKr, 4); V.put(vKo, 4)
    for v in (gq, gh, gh2, cp): V.put(v, 4)
    V.put(cpa)
    pc = V.get(2); tp = V.get(8)
    A(f"v_mov_b32 v{pc}, {hex(SCALE)}")
    for h in range(2):
        for k in range(8): A(f"v_cvt_pk_bf16_f32 v{tp+k}, v{S+16*h+2*k}, v{S+16*h+2*k+1}")
        unpack(S + 16 * h, tp, 8)
        for k in range(8): A(f"v_pk_mul_f32 {vr(S+16*h+2*k,2)}, {vr(S+16*h+2*k,2)}, {vr(pc,2)} op_sel_hi:[1,0]")
        for k in range(8): A(f"v_cvt_pk_bf16_f32 v{tp+k}, v{S+16*h+2*k}, v{S+16*h+2*k+1}")
        unpack(S + 16 * h, tp, 8)
    ml = V.get(2); pl = V.get(2); pn = V.get(2)
    A(f"v_max_f32 v{ml}, v{S}, v{S+1}")
    for k in range(1, 16): A(f"v_max3_f32 v{ml}, v{S+2*k}, v{S+2*k+1}, v{ml}")
    allred_groups(ml, t0, "v_max_f32")
    A(f"v_mov_b32 v{pc}, {hex(LOG2E)}")
    A(f"v_mul_f32 v{pn}, {hex(LOG2E | 0x80000000)}, v{ml}")
    for k in range(16): A(f"v_pk_fma_f32 {vr(S+2*k,2)}, {vr(S+2*k,2)}, {vr(pc,2)}, {vr(pn,2)} op_sel_hi:[1,0,0]")
    for k in range(32): A(f"v_exp_f32 v{S+k}, v{S+k}")
    A(f"v_pk_add_f32 {vr(pl,2)}, {vr(S,2)}, {vr(S+2,2)}")
    for k in range(2, 16): A(f"v_pk_add_f32 {vr(pl,2)}, {vr(pl,2)}, {vr(S+2*k,2)}")
    A(f"v_add_f32 v{ml+1}, v{pl}, v{pl+1}")
    allred_groups(ml + 1, t0, "v_add_f32")
    A.drop = False
    A(f"s_lshl_b32 s{sT0}, s{sW}, 4"); A(f"s_add_u32 s{sT0}, s{sT0}, {L_ML}")
    A(f"v_and_b32 v{t0}, 8, v{vL}"); A(f"v_add_u32 v{t0}, s{sT0}, v{t0}")
    A(f"ds_write_b64 v{t0}, {vr(ml,2)}")
    for k in range(32): A(f"v_cvt_pk_bf16_f32 v{S+k}, v{S+k}, v{S+k}")
    A("s_waitcnt lgkmcnt(0)")
    A("s_barrier")
    stamp()
    A(f"v_lshrrev_b32 v{t0}, 5, v{vL}"); A(f"v_lshlrev_b32 v{t0}, 3, v{t0}"); A(f"v_add_u32 v{t1}, s{sT0}, v{t0}"); A(f"v_add_u32 v{t0}, {L_ML}, v{t0}")
    for k in range(4): A(f"ds_read_b64 {vr(tp+2*k,2)}, v{t0} offset:{16*k}")
    A(f"ds_read_b32 v{pl}, v{t1}")
    A("s_waitcnt lgkmcnt(0)")
    vF = V.get(2); g4 = V.get(4, 4)
    A(f"v_max3_f32 v{g4}, v{tp}, v{tp+2}, v{tp+4}"); A(f"v_max_f32 v{g4}, v{g4}, v{tp+6}")
    for r in (tp, tp + 2, tp + 4, tp + 6, pl): A(f"v_sub_f32 v{r}, v{r}, v{g4}")
    for r in (tp, tp + 2, tp + 4, tp + 6, pl): A(f"v_mul_f32 v{r}, {hex(LOG2E)}, v{r}")
    for r in (tp, tp + 2, tp + 4, tp + 6): A(f"v_exp_f32 v{r}, v{r}")
    A(f"v_exp_f32 v{vF}, v{pl}")
    A(f"v_mul_f32 v{g4+1}, v{tp}, v{tp+1}")
    for k in range(1, 4): A(f"v_fmac_f32 v{g4+1}, v{tp+2*k}, v{tp+2*k+1}")
    A(f"v_mov_b32 v{g4+2}, v{g4}"); A(f"v_mov_b32 v{g4+3}, v{g4+1}")
    A(f"v_permlane32_swap_b32 v{g4}, v{g4+2}"); A(f"v_permlane32_swap_b32 v{g4+1}, v{g4+3}")
    tag(g4)
    A(f"s_mul_i32 s{sT0}, s{sBOX}, {H1S}"); A(f"s_add_u32 s{sT1}, s{sT0}, {WS_H1+MLO}")
    A(f"v_cmp_gt_u32 vcc, 8, v0"); A(f"v_mov_b32 v{t0}, {hex(OOB)}"); A(f"v_lshl_add_u32 v{t1}, v0, 4, s{sT1}")
    A(f"v_cndmask_b32 v{t0}, v{t0}, v{t1}, vcc")
    A.auto = None
    pubstore("m", f"buffer_store_dwordx4 {vr(g4,4)}, v{t0}, {W('mls')}, 0 offen")
    V.put(pc, 2); V.put(tp, 8); V.put(ml, 2); V.put(pl, 2); V.put(pn, 2)
    A.auto = None
    print("V steps issued at end of softmax:", len(vseq), file=sys.stderr)
    oacc = V.get(4, 4); NQ = 8; aq = V.get(4 * NQ, 4)
    built = [0]; done = [0]
    def build(n=1):
        for _ in range(n):
            j = built[0]
            if j >= 32: return
            assert j - done[0] < NQ
            for k in range(4): A(f"v_and_b32 v{aq+4*(j%NQ)+k}, v{S+j}, v{vM+k}")
            built[0] += 1
    def pv(wait=True):
        j = done[0]
        assert built[0] > j
        if wait: A.wait_vm(vseq[j])
        c = "0" if j == 0 else vr(oacc, 4)
        A(f"v_mfma_f32_16x16x32_bf16 {vr(oacc,4)}, {vr(aq+4*(j%NQ),4)}, {ar(4*j,4)}, {c}")
        done[0] += 1
    go = V.get(4, 4); y = V.get(8, 4); gm = V.get(4, 4); vWg = V.get(2)
    def gatherO(): return A.vmem(f"buffer_load_dwordx4 {vr(go,4)}, v{aG2}, {W('og')}, 0 offen {ldf}")
    def gatherML(): return A.vmem(f"buffer_load_dwordx4 {vr(gm,4)}, v{aGm}, {W('mlg')}, 0 offen {ldf}")
    RSO = ("0", f"s{sR}")
    build(2)
    assert len(vseq) < GM
    while len(vseq) < 32:
        stepV(1)
        if len(vseq) == GM: gml = gatherML()
        n = 0
        while done[0] < len(vseq) - DV - 1 and n < 4:
            pv(); build(1); n += 1
    V.put(g4, 4)
    stamp()
    def weights():
        A.wait_vm(gml)
        A.label("L_chk2")
        chk(gm, "vcc")
        A("s_cbranch_vccnz L_slow2")
        spinrec(59)
        def slow2():
            A.label("L_slow2")
            A(f"s_sub_u32 s{sSpin}, s{sSpin}, 1"); A("s_cbranch_scc1 L_end")
            n = len(A.vm); gatherML(); del A.vm[n:]
            A("s_waitcnt vmcnt(0)"); A("s_branch L_chk2")
        slow.append(slow2)
        A(f"s_cmp_ge_u32 s{sB}, 2"); A(f"s_cselect_b64 vcc, -1, 0")
        A(f"v_cndmask_b32 v{t2}, v{gm}, v{gm+2}, vcc"); A(f"v_cndmask_b32 v{t3}, v{gm+1}, v{gm+3}, vcc")
        A(f"v_and_b32 v{t2}, 0xffffff00, v{t2}"); A(f"v_and_b32 v{t3}, 0xffffff00, v{t3}")
        A(f"v_mov_b32 v{vWg}, v{t2}"); allred_groups(vWg, t0, "v_max_f32")
        A(f"v_sub_f32 v{t2}, v{t2}, v{vWg}"); A(f"v_mul_f32 v{t2}, {hex(LOG2E)}, v{t2}"); A(f"v_exp_f32 v{t2}, v{t2}")
        A(f"v_mul_f32 v{t3}, v{t2}, v{t3}"); allred_groups(t3, t0, "v_add_f32")
        A(f"v_rcp_f32 v{t3}, v{t3}"); A(f"v_mul_f32 v{vWg}, v{t2}, v{t3}")
    tail = ragged_dma(dW2, L_W2, 6, 3641, 864, wnt) + ragged_dma(dWO, L_WO, 5, 3641, 864, wnt)
    lastW = None
    while done[0] < 32:
        left = 32 - done[0]
        if left > 1:
            n = -(-len(tail) // (left - 1))
            for _ in range(n):
                lastW = tail.pop(0)()
                if len(tail) == 5: lastW2 = lastW
        build(NQ - (built[0] - done[0]))
        pv()
        if done[0] == GM: weights()
    assert not tail
    stamp()
    A(f"v_pk_mul_f32 {vr(oacc,2)}, {vr(oacc,2)}, {vr(vF,2)} op_sel_hi:[1,0]")
    A(f"v_pk_mul_f32 {vr(oacc+2,2)}, {vr(oacc+2,2)}, {vr(vF,2)} op_sel_hi:[1,0]")
    A(f"ds_write_b128 v{aOPw}, {vr(oacc,4)}")
    A("s_waitcnt lgkmcnt(0)")
    A("s_barrier")
    V.put(S, 32); V.put(aq, 4 * NQ); V.put(vM, 4)
    r16 = V.get(16, 4)
    A("s_mov_b64 exec, 0xffff")
    for k in range(4): A(f"ds_read_b128 {vr(r16+4*k,4)}, v{aOPr} offset:{L_OP + 1024*k}")
    A("s_waitcnt lgkmcnt(2)")
    for h in range(2): A(f"v_pk_add_f32 {vr(r16+2*h,2)}, {vr(r16+2*h,2)}, {vr(r16+4+2*h,2)}")
    A("s_waitcnt lgkmcnt(0)")
    for h in range(2): A(f"v_pk_add_f32 {vr(r16+8+2*h,2)}, {vr(r16+8+2*h,2)}, {vr(r16+12+2*h,2)}")
    for h in range(2): A(f"v_pk_add_f32 {vr(r16+2*h,2)}, {vr(r16+2*h,2)}, {vr(r16+8+2*h,2)}")
    tag(r16)
    pubstore("o", f"buffer_store_dwordx4 {vr(r16,4)}, v{aH2}, {W('os')}, 0 offen")
    A("s_mov_b64 exec, -1")
    stamp()
    A.wait_vm(lastW2)
    A("s_barrier")
    stamp()
    hf = V.get(10); w2f = V.get(30); wof = V.get(24, 4); yacc = V.get(12, 4)
    W2D = L_W2 - L_WO
    def rdW2(st):
        A(f"ds_read_b64 {vr(hf+2*st,2)}, v{aHr} offset:{st*32}")
        A(f"ds_read_b64_tr_b16 {vr(w2f+6*st,2)}, v{aW} offset:{W2D+st*4608}")
        A(f"ds_read_b64_tr_b16 {vr(w2f+6*st+2,2)}, v{aW} offset:{W2D+st*4608+128}")
        A(f"ds_read_b64_tr_b16 {vr(w2f+6*st+4,2)}, v{aW8} offset:{W2D+st*4608+256}")
    def mfW2(st):
        for tl in range(3):
            c = "0" if st == 0 else vr(yacc+4*tl, 4)
            A(f"v_mfma_f32_16x16x16_bf16 {vr(yacc+4*tl,4)}, {vr(w2f+6*st+2*tl,2)}, {vr(hf+2*st,2)}, {c}")
    def rdWO(st):
        for tl, (a, o) in enumerate(((aW, 0), (aW, 128), (aW8, 256))):
            A(f"ds_read_b64_tr_b16 {vr(wof+8*tl+2*st,2)}, v{a} offset:{st*4608+o}")
    rdW2(0); rdW2(1); rdW2(2)
    A("s_waitcnt lgkmcnt(8)"); mfW2(0); rdW2(3)
    A("s_waitcnt lgkmcnt(8)"); mfW2(1); rdW2(4)
    A("s_waitcnt lgkmcnt(8)"); mfW2(2)
    A("s_waitcnt lgkmcnt(4)"); mfW2(3)
    A("s_waitcnt lgkmcnt(0)"); mfW2(4)
    g2 = gatherO()
    A.wait_vm(lastW)
    A("s_barrier")
    for st in range(4): rdWO(st)
    A("s_waitcnt vmcnt(0)")
    stamp()
    A.label("L_chk3")
    chk(go, "vcc")
    A("s_cbranch_vccnz L_slow3")
    A.label("L_ok3")
    spinrec(60)
    def slow3():
        A.label("L_slow3")
        A(f"s_sub_u32 s{sSpin}, s{sSpin}, 1"); A("s_cbranch_scc1 L_end")
        A("s_mov_b64 exec, vcc")
        n = len(A.vm); gatherO(); del A.vm[n:]
        A("s_mov_b64 exec, -1")
        A("s_waitcnt vmcnt(0)"); A("s_branch L_chk3")
    slow.append(slow3)
    stamp()
    def pollY():
        for k in range(2):
            A(f"s_or_b64 exec, {sr(sP+2*k,2)}, 1")
            A.vmem(f"buffer_load_dwordx4 {vr(y+4*k,4)}, v{aR}, {W('yg')}, {RSO[k]} offen sc1")
        A("s_mov_b64 exec, -1")
    for k in range(2): A(f"s_mov_b64 {sr(sP+2*k,2)}, -1")
    if early:
        A("s_cmp_ge_u32 s2, 72"); A("s_cbranch_scc1 L_noearly")
        pollY()
        A.label("L_noearly")
    untag(go, go)
    A(f"v_pk_mul_f32 {vr(go,2)}, {vr(go,2)}, {vr(vWg,2)} op_sel_hi:[1,0]")
    A(f"v_pk_mul_f32 {vr(go+2,2)}, {vr(go+2,2)}, {vr(vWg,2)} op_sel_hi:[1,0]")
    tred(go)
    A(f"v_cvt_pk_bf16_f32 v{go}, v{go}, v{go}")
    A(f"ds_write_b16 v{aOw}, v{go}")
    A("s_waitcnt lgkmcnt(0)")
    A("s_barrier")
    of = V.get(8, 4)
    A(f"ds_read_b128 {vr(of,4)}, v{aOr}"); A(f"ds_read_b128 {vr(of+4,4)}, v{aOr} offset:64")
    for st in range(2):
        A(f"s_waitcnt lgkmcnt({1-st})")
        for tl in range(3):
            A(f"v_mfma_f32_16x16x32_bf16 {vr(yacc+4*tl,4)}, {vr(wof+8*tl+4*st,4)}, {vr(of+4*st,4)}, {vr(yacc+4*tl,4)}")
    o4 = V.get(4, 4)
    select3(o4, yacc, yacc + 4, yacc + 8); tag(o4)
    A.vmem(f"buffer_store_dwordx4 {vr(o4,4)}, v{aH3}, {W('ys')}, 0 offen sc1")
    stamp()
    A("s_cmp_ge_u32 s2, 72"); A("s_cbranch_scc1 L_fin")
    z = V.get(8, 4)
    if early:
        A("s_waitcnt vmcnt(1)"); A("s_branch L_chk4")
    A.label("L_poll4")
    pollY()
    A(f"s_sub_u32 s{sSpin}, s{sSpin}, 1"); A("s_cbranch_scc1 L_end")
    A(f"s_waitcnt vmcnt({pipe})")
    A.label("L_chk4")
    for k in range(2): chk(y + 4 * k, sr(sP + 2 * k, 2))
    A(f"s_or_b64 vcc, {sr(sP,2)}, {sr(sP+2,2)}")
    A("s_cbranch_scc1 L_poll4")
    stamp()
    for k in range(2): untag(z + 4 * k, y + 4 * k)
    for h in range(2): A(f"v_pk_add_f32 {vr(z+2*h,2)}, {vr(z+2*h,2)}, {vr(z+4+2*h,2)}")
    A(f"v_lshlrev_b32 v{vXo}, 16, v{vXo}")
    tred(z)
    for k in (8, 4, 2): A(f"v_add_f32_dpp v{z}, v{z}, v{z} row_ror:{k} row_mask:0xf bank_mask:0xf")
    A(f"v_add_f32 v{z}, v{z}, v{vXo}")
    A(f"v_cvt_pk_bf16_f32 v{z}, v{z}, v{z}")
    A.vmem(f"buffer_store_short v{z}, v{aOut}, {sr(dOUT,4)}, 0 offen")
    A(f"s_or_b32 s{sT0}, s2, s{sW}"); A("s_cbranch_scc1 L_fin")
    A(f"v_mov_b32 v{t0}, s{sE}"); A(f"v_mov_b32 v{t1}, 0"); A("s_mov_b64 exec, 1")
    A.vmem(f"buffer_store_dword v{t0}, v{t1}, {sr(dWS,4)}, 0 offen")
    A("s_mov_b64 exec, -1")
    if probe is not None:
        A(f"s_sub_u32 s100, s100, s{sSt}"); A(f"s_mul_i32 s{sT0}, s100, {pmul}"); A(f"s_add_u32 s{sT0}, s{sT0}, 4000"); A(f"s_min_u32 s{sT0}, s{sT0}, 100000")
        A.label("L_probe")
        A("s_memrealtime s[100:101]"); A("s_waitcnt lgkmcnt(0)"); A(f"s_sub_u32 s100, s100, s{sSt}"); A(f"s_cmp_lt_u32 s100, s{sT0}"); A("s_cbranch_scc1 L_probe")
    A.label("L_fin")
    if stamps:
        A(f"s_mov_b32 s{dWS+2}, 0x800000")
        A("s_waitcnt vmcnt(0)")
        A(f"s_memrealtime s[{sSt}:{sSt+1}]"); A("s_waitcnt lgkmcnt(0)"); A(f"v_writelane_b32 v{vSt}, s{sSt}, 62")
        A(f"v_writelane_b32 v{vSt}, s{sSpin}, 61")
        A(f"s_getreg_b32 s{sSt}, hwreg(HW_REG_XCC_ID, 0, 4)"); A(f"v_writelane_b32 v{vSt}, s{sSt}, 63")
        A(f"s_lshl_b32 s{sT0}, s2, 10"); A(f"s_add_u32 s{sT0}, s{sT0}, {WS_ST}"); A(f"v_lshl_add_u32 v{t0}, v0, 2, s{sT0}")
        A.vmem(f"buffer_store_dword v{vSt}, v{t0}, {sr(dWS,4)}, 0 offen")
    A("s_endpgm")
    k = 0
    while k < len(slow):
        slow[k](); k += 1
    A.label("L_end")
    A("s_endpgm")
    acc_off = (V.top + 3) // 4 * 4
    A.raw('.section .rodata,"a"'); A.raw(".p2align 6"); A.raw(f".amdhsa_kernel {NAME}_kernel")
    A.raw(f"  .amdhsa_next_free_vgpr {acc_off + 128}"); A.raw("  .amdhsa_next_free_sgpr 102"); A.raw(f"  .amdhsa_accum_offset {acc_off}")
    A.raw("  .amdhsa_group_segment_fixed_size 0"); A.raw("  .amdhsa_kernarg_size 88"); A.raw("  .amdhsa_user_sgpr_count 2")
    A.raw("  .amdhsa_user_sgpr_kernarg_segment_ptr 1"); A.raw("  .amdhsa_system_sgpr_workgroup_id_x 1"); A.raw(".end_amdhsa_kernel")
    return A.text(), nst[0]

if __name__ == "__main__":
    kw = eval("dict(" + (sys.argv[2] if len(sys.argv) > 2 else "") + ")")
    s, n = gen(**kw)
    open(sys.argv[1], "w").write(s)
    print("stamps", n)
```

```python
import re

TRANS = ("v_exp_f32", "v_log_f32", "v_rcp_f32", "v_rsq_f32", "v_sqrt_f32", "v_sin_f32", "v_cos_f32")

def regs_of(tok):
    tok = tok.strip()
    tok = tok.lstrip("-")
    m = re.fullmatch(r"abs\((.*)\)", tok)
    if m: tok = m.group(1)
    tok = tok.strip("|")
    m = re.fullmatch(r"([vas])(\d+)", tok)
    if m: return {(m.group(1), int(m.group(2)))}
    m = re.fullmatch(r"([vas])\[(\d+):(\d+)\]", tok)
    if m: return {(m.group(1), i) for i in range(int(m.group(2)), int(m.group(3)) + 1)}
    if tok in ("vcc", "vcc_lo", "vcc_hi"): return {("s", "vcc")}
    if tok in ("exec", "exec_lo", "exec_hi"): return {("s", "exec")}
    if tok == "m0": return {("s", "m0")}
    return set()

class Ins:
    def __init__(self, text):
        self.text = text
        parts = text.split(None, 1)
        self.op = op = parts[0]
        rest = parts[1] if len(parts) > 1 else ""
        toks = [t.strip() for t in rest.split(",")]
        if toks:
            toks[-1] = toks[-1].split()[0] if toks[-1].split() else ""
        rest2 = re.split(r"\s(?:op_sel|op_sel_hi|neg_lo|neg_hi|row_|quad_perm|offset|offen|bitop3|nt\b|sc0|sc1|lds\b)", " " + rest, 1)[0]
        toks = [t.strip() for t in rest2.split(",") if t.strip()]
        R = [regs_of(t) for t in toks]
        self.w = set(); self.r = set(); self.c = set()
        self.valu = op.startswith("v_") and not op.startswith("v_mfma")
        self.mfma = op.startswith("v_mfma")
        self.salu = op.startswith("s_")
        self.vmem = op.startswith(("buffer_", "global_")) and op not in ("buffer_wbl2", "buffer_inv")
        self.ds = op.startswith("ds_")
        self.dpp = "_dpp" in op or "row_" in rest or "quad_perm" in rest
        self.trans = op.replace("_e32", "").replace("_e64", "") in TRANS
        self.perml = op.startswith("v_permlane")
        self.dma = self.vmem and re.search(r"\blds\b", rest) is not None
        self.store = self.vmem and ("store" in op or "atomic" in op)
        self.wide_store = self.store and ("x4" in op or "x3" in op)
        self.states = 1
        if op == "s_nop": self.states = int(toks[0], 0) + 1
        U = lambda xs: set().union(*xs) if xs else set()
        if self.mfma:
            self.w = R[0]; self.r = U(R[1:]); self.ab = R[1] | R[2]; self.c = R[3] if len(R) > 3 else set()
        elif self.perml:
            self.w = U(R); self.r = U(R)
        elif self.valu:
            self.w = R[0]; self.r = U(R[1:])
            if op.startswith(("v_fmac", "v_writelane", "v_dot2c")) or (self.dpp and not op.startswith("v_cmp")): self.r |= R[0]
            if op.startswith(("v_add_co", "v_addc_co", "v_sub_co")): self.w |= R[1]
            if op.startswith("v_cmpx"): self.w |= {("s", "exec")}
        elif self.vmem:
            if self.store or self.dma:
                self.r = U(R)
                if "atomic" in op and "sc0" in rest: self.w = R[0]
            else: self.w = R[0]; self.r = U(R[1:])
            if self.dma: self.r |= {("s", "m0")}
            self.data = R[0] if op.startswith("buffer_") else (R[1] if len(R) > 1 else set())
        elif self.ds:
            if "read" in op or "permute" in op or "swizzle" in op: self.w = R[0]; self.r = U(R[1:])
            else: self.r = U(R)
        elif self.salu:
            if op.startswith(("s_cmp", "s_cbranch", "s_branch", "s_waitcnt", "s_barrier", "s_nop", "s_sleep", "s_endpgm", "s_setprio", "s_bitcmp")): self.r = U(R)
            else:
                self.w = R[0] if R else set(); self.r = U(R[1:])
                if "saveexec" in op: self.w |= {("s", "exec")}

def need(p, c):
    n = 0
    vw = {x for x in p.w if x[0] in "va"}; sw = {x for x in p.w if x[0] == "s"}
    if p.valu:
        if c.mfma and vw & c.r: n = max(n, 2)
        if c.perml and vw & c.r: n = max(n, 2)
        if c.valu and c.dpp and vw & c.r: n = max(n, 2)
        if c.op.startswith(("v_readlane", "v_readfirstlane")) and vw & c.r: n = max(n, 1)
        if p.trans and c.valu and vw & c.r: n = max(n, 1)
        if p.trans and (c.ds or c.vmem) and vw & c.r: n = max(n, 1)
        if sw & c.r:
            if c.valu: n = max(n, 4 if c.op.startswith(("v_readlane", "v_writelane")) else 2)
            if c.vmem: n = max(n, 5)
            if c.salu: n = max(n, 1)
        if ("s", "exec") in sw:
            if c.dpp: n = max(n, 5)
            if c.mfma or c.perml or c.op.startswith(("v_readlane", "v_readfirstlane", "v_writelane")): n = max(n, 4)
    if p.mfma:
        big = "32x32" in p.op
        if c.mfma:
            if vw & c.ab: n = max(n, 12 if big else 8)
            if vw & c.c and vw != c.c: n = max(n, 10 if big else 6)
            if vw & c.c and vw == c.c and p.op != c.op: n = max(n, 10 if big else 6)
        elif (c.valu or c.vmem or c.ds) and vw & (c.r | c.w): n = max(n, 12 if big else 8)
        if c.valu and p.c & c.w: n = max(n, 7 if big else 3)
    if p.salu and ("s", "m0") in p.w and (c.dma or c.op.startswith("v_writelane") or c.op.startswith("v_readlane")) and ("s", "m0") in c.r: n = max(n, 1)
    if p.wide_store and p.data & c.w: n = max(n, 2)
    return n

class Asm:
    def __init__(self):
        self.lines = []; self.hist = []; self.vm = []; self.nops = 0
        self.auto = None; self.cyc = 0; self.th = 200; self.drop = False
    def raw(self, t): self.lines.append(t)
    def label(self, name):
        self.lines.append(name + ":")
    def __call__(self, text):
        for t in text.split("\n"):
            t = t.strip()
            if t: self.ins(t)
    def ins(self, text):
        i = Ins(text)
        if self.drop and (i.valu or i.mfma or i.ds): return
        dist = 0; pad = 0
        for p in reversed(self.hist[-24:]):
            pad = max(pad, need(p, i) - dist)
            dist += p.states
        if pad > 0:
            n = Ins(f"s_nop {pad-1}"); self.lines.append("    " + n.text); self.hist.append(n); self.nops += 1
        self.lines.append("    " + text); self.hist.append(i)
        c = 4 + (pad * 2 if pad > 0 else 0)
        if i.trans or i.op.startswith("v_pk"): c += 4
        if i.mfma: c += 12
        if i.ds: c += 4
        if i.op == "s_waitcnt" and "lgkmcnt" in text: c += 60
        if i.op == "s_barrier": c += 40
        self.cyc += c
        if i.vmem:
            self.vm.append(i); return len(self.vm) - 1
        if self.auto and (i.valu or i.mfma or i.ds) and self.cyc >= self.th:
            f = self.auto; self.auto = None
            f(); self.cyc = 0
            self.auto = f
    def vmem(self, text):
        return self.ins(text)
    def wait_vm(self, seq, extra="", trust=False):
        n = sum(1 for x in self.vm[seq + 1:] if trust or not x.store)
        assert n <= 63
        self.ins(f"s_waitcnt vmcnt({n}) {extra}".strip())
    def text(self): return "\n".join(self.lines) + "\n"

class VAlloc:
    def __init__(self, lo, hi):
        self.free = set(range(lo, hi)); self.top = 0
    def get(self, n=1, align=None):
        align = align or (1 if n == 1 else 2)
        for s in sorted(self.free):
            if s % align == 0 and all(s + k in self.free for k in range(n)):
                for k in range(n): self.free.remove(s + k)
                self.top = max(self.top, s + n)
                return s
        raise RuntimeError("out of vgprs")
    def put(self, s, n=1):
        for k in range(n):
            assert s + k not in self.free
            self.free.add(s + k)
def vr(s, n): return f"v[{s}:{s+n-1}]" if n > 1 else f"v{s}"
def ar(s, n): return f"a[{s}:{s+n-1}]" if n > 1 else f"a{s}"
def sr(s, n): return f"s[{s}:{s+n-1}]" if n > 1 else f"s{s}"
```

```python
import sys, struct
from asmlib import *
NAME = "parallel_sum__sliding_block_cached__dense_activation_silu__decode"

def f2u(x): return struct.unpack("<I", struct.pack("<f", x))[0]
LOG2E = f2u(1.4426950408889634)
SCALE = f2u(128 ** -0.5)
OOB = 0x40000000
WS_H1, H1S = 0x1000, 2304
MLO = 2176
WS_AC = 0x100000
WS_HT = 0x1a0000
WS_ST = 0x400000
L_WQ = 131072 - 20480; L_WO = L_WQ
L_XN = 131072; L_Q = L_XN + 1152; L_H = L_Q + 512; L_ML = L_H + 640; L_O = L_ML + 128; L_FL = L_O + 512
L_W1 = 134144; L_W2 = L_W1
L_OP = 0
LDS_BYTES = L_W1 + 24576

HEADER = open("cdna_kernels/" + NAME + ".s.ref").read().split("; Override launch")[0]

def gen(D=10, nt="nt", stamps=False, rot=True, scramble=False, spin=20000, wnt=None, probe=None, pmul=4, TH=320, prime=0, GK=28, DV=None, PR=24, strip=False, linw=False, lina=False, nohand=False, noswz=False, nopf=False, off=(), ldf='sc1', GM=31, early=False, force1=False, pipe=0, npoll=3, sel=None, hold=0, slp=0, slp0=-1, pf_first=True, rx=None, dirty=0, tail2=False, pp=1, hint=0, hw=5, wb=False, coop=False, early2=0, lateinit=False, tlb=0, ost=''):
    if wnt is None: wnt = nt
    A = Asm(); V = VAlloc(1, 256); A.th = TH
    if DV is None: DV = D
    light = stamps in ('light', 'fine')
    A.raw(HEADER.rstrip("\n"))
    A.raw(f"; @launch grid=(256,1,1) block=(256,1,1) lds={LDS_BYTES}")
    A.raw('.amdgcn_target "amdgcn-amd-amdhsa--gfx950"')
    A.raw(".text"); A.raw(f".globl {NAME}_kernel"); A.raw(".p2align 8"); A.raw(f".type {NAME}_kernel,@function")
    A.label(f"{NAME}_kernel")
    sW = 3
    pX, pK, pV, pWQ, pWO, pW1, pW2, pOUT, pWS = 4, 6, 8, 10, 12, 16, 18, 20, 24
    dX, dK, dV, dWQ, dW1, dW2, dWO, dWS, dOUT = 28, 32, 36, 40, 44, 48, 52, 56, 60
    sG, sS, sB, sHKV, sBOX, sRot, sSo, sE, sT0, sT1, sT2 = 64, 65, 66, 67, 68, 69, 70, 71, 72, 73, 74
    sSel = 76
    sSelA, sSelB = 80, 81
    sU1, sU2 = 82, 84
    sSpin = 86; sC = 87; sPC = 26; sM = 88; sP = 90
    sSt = 98; sR = 40; sMode = 41; sIt = 42; sS0 = 75
    vSt = V.get() if stamps else None
    nst = [0]; cnt = [0]
    def stamp():
        if probe is not None:
            if nst[0] == probe: A("s_memrealtime s[100:101]"); A("s_waitcnt lgkmcnt(0)")
            nst[0] += 1
        cnt[0] += 1
        if stamps and not light and (sel is None or cnt[0] in sel):
            au = A.auto; A.auto = None
            A(f"s_memrealtime s[{sSt}:{sSt+1}]"); A("s_waitcnt lgkmcnt(0)"); A(f"v_writelane_b32 v{vSt}, s{sSt}, {nst[0]}"); nst[0] += 1
            A.auto = au
    fine = []
    def fstamp():
        if stamps == 'fine':
            r = 76 + 2 * len(fine); fine.append(r); A(f"s_memrealtime s[{r}:{r+1}]")
    def fflush():
        if fine:
            A("s_waitcnt lgkmcnt(0)")
            for r in fine: A(f"v_writelane_b32 v{vSt}, s{r}, {nst[0]}"); nst[0] += 1
            fine.clear()
    def spinrec(k):
        if stamps: A(f"v_writelane_b32 v{vSt}, s{sSpin}, {k}")
    def srd(d, p, off_s, nrec):
        if off_s is None:
            A(f"s_mov_b32 s{d}, s{p}"); A(f"s_mov_b32 s{d+1}, s{p+1}")
        else:
            A(f"s_add_u32 s{d}, s{p}, s{off_s}"); A(f"s_addc_u32 s{d+1}, s{p+1}, 0")
        A(f"s_mov_b32 s{d+2}, {nrec}"); A(f"s_mov_b32 s{d+3}, 0x20000")

    vJ = V.get(); vPa = V.get(2); vL = V.get(); t0 = V.get(); t1 = V.get(); t2 = V.get(); t3 = V.get(); vX = V.get(); vWq = V.get()
    A("s_load_dwordx16 s[4:19], s[0:1], 0")
    if stamps or probe is not None: A(f"s_memrealtime s[{sSt}:{sSt+1}]")
    A("s_cmpk_ge_u32 s2, 256"); A("s_cbranch_scc1 L_end")
    A(f"v_readfirstlane_b32 s{sM}, v0")
    if scramble:
        A(f"s_lshr_b32 s{sG}, s2, 2"); A(f"s_and_b32 s{sS}, s2, 3")
    else:
        A(f"s_and_b32 s{sT0}, s2, 7"); A(f"s_bfe_u32 s{sT1}, s2, 0x30003"); A(f"s_lshl3_add_u32 s{sG}, s{sT0}, s{sT1}")
        A(f"s_lshr_b32 s{sS}, s2, 6")
    def prefetch():
        A(f"s_getpc_b64 s[{sPC}:{sPC+1}]")
        A.label("L_pc")
        A(f"v_lshlrev_b32 v{vPa}, 6, v0")
        A(f"v_min_u32 v{vPa}, L_end-L_pc, v{vPa}")
        A(f"v_mov_b32 v{vPa+1}, s{sPC+1}")
        A(f"v_add_co_u32 v{vPa}, vcc, s{sPC}, v{vPa}")
        A(f"v_and_b32 v{vL}, 63, v0"); A(f"s_lshr_b32 s{sW}, s{sM}, 6")
        A(f"v_addc_co_u32 v{vPa+1}, vcc, 0, v{vPa+1}, vcc")
        if not nopf: A.vmem(f"global_load_dword v{vJ}, {vr(vPa,2)}, off")
    if pf_first: prefetch()
    A(f"v_lshrrev_b32 v{t0}, 3, v0"); A(f"v_and_b32 v{t1}, 7, v0"); A(f"v_lshlrev_b32 v{t1}, 4, v{t1}")
    A(f"v_lshl_or_b32 v{vWq}, v{t0}, 13, v{t1}")
    A(f"s_lshl4_add_u32 m0, s{sM}, {L_WQ}")
    A(f"s_mul_i32 s{sT1}, s{sS}, {144*8192}"); A(f"s_lshl_b32 s{sT2}, s{sG}, 7"); A(f"s_add_u32 s{sT1}, s{sT1}, s{sT2}")
    A(f"s_mov_b32 s{dWQ+2}, {143*8192+128}"); A(f"s_mov_b32 s{dWQ+3}, 0x20000"); A(f"s_lshl_b32 s{sC}, s{dWQ+3}, 1")
    A("s_waitcnt lgkmcnt(0)")
    fstamp()
    A(f"s_add_u32 s{dWQ}, s{pWQ}, s{sT1}"); A(f"s_addc_u32 s{dWQ+1}, s{pWQ+1}, 0")
    for r in range(5):
        if r:
            A("s_addk_i32 m0, 0x1000"); A(f"v_add_u32 v{vWq}, s{sC}, v{vWq}")
        A.vmem(f"buffer_load_dwordx4 v{vWq}, {sr(dWQ,4)}, 0 offen {wnt} lds")
        if r in (0, 4): fstamp()
    A("s_load_dwordx2 s[20:21], s[0:1], 64")
    A("s_load_dwordx2 s[24:25], s[0:1], 80")
    if stamps: A(f"v_mov_b32 v{vSt}, 0"); A(f"v_writelane_b32 v{vSt}, s{sSt}, 0"); nst[0] = 1
    if probe is not None: A(f"s_mov_b32 s100, s{sSt}"); nst[0] = 1
    if not pf_first: prefetch()
    A(f"s_mul_i32 s{sT0}, s{sM}, 18"); A(f"s_lshl_b32 s{sM}, s{sM}, 4")
    A(f"v_lshlrev_b32 v{vX}, 5, v{vL}")
    srd(dX, pX, sT0, 1152)
    xr = V.get(8, 4)
    x0 = A.vmem(f"buffer_load_dwordx4 {vr(xr,4)}, v{vX}, {sr(dX,4)}, 0 offen")
    x1 = A.vmem(f"buffer_load_dwordx4 {vr(xr+4,4)}, v{vX}, {sr(dX,4)}, 0 offen offset:16")
    A(f"s_mul_i32 s{sT1}, s{sS}, {144*9216}"); A(f"s_mul_i32 s{sT2}, s{sG}, 144"); A(f"s_add_u32 s{sT1}, s{sT1}, s{sT2}")
    srd(dW1, pW1, sT1, 143 * 9216 + 144)
    def ragged_dma(d, lbase, rounds, magic, rowpad, flags):
        vP16 = V.get(); vMul = V.get(); vo = V.get()
        def mk(r):
            def f():
                if r == 0:
                    A(f"v_lshlrev_b32 v{vP16}, 4, v0"); A(f"v_mul_u32_u24 v{vMul}, {magic}, v0")
                else:
                    A(f"v_add_u32 v{vP16}, 0x1000, v{vP16}"); A(f"v_add_u32 v{vMul}, {magic*256}, v{vMul}")
                A(f"s_movk_i32 s{sC}, {0 if (linw and rowpad == 864) or (lina and rowpad != 864) else rowpad}")
                A(f"v_lshrrev_b32 v{vo}, 16, v{vMul}")
                A(f"s_add_u32 m0, s{sM}, {lbase + r*4096}")
                A(f"v_mad_u32_u24 v{vo}, v{vo}, s{sC}, v{vP16}")
                q = A.vmem(f"buffer_load_dwordx4 v{vo}, {sr(d,4)}, 0 offen {flags} lds")
                if r == rounds - 1:
                    V.put(vP16); V.put(vMul); V.put(vo)
                return q
            return f
        return [mk(r) for r in range(rounds)]
    for f in ragged_dma(dW1, L_W1, 6, 7282, 9072, wnt): lastA = f()
    fstamp()
    V.put(vWq); V.put(vX); V.put(vPa, 2)
    stamp()
    A(f"s_and_b32 s{sB}, s{sG}, 3"); A(f"s_lshr_b32 s{sHKV}, s{sG}, 2")
    A(f"s_lshl4_add_u32 s{sT0}, s{sB}, s{sHKV}"); A(f"s_lshl_b32 s{sT0}, s{sT0}, 21")
    A(f"s_lshl_b32 s{sT1}, s{sS}, 17"); A(f"s_add_u32 s{sT0}, s{sT0}, s{sT1}"); A(f"s_add_u32 s{sT0}, s{sT0}, {6144*256}")
    srd(dK, pK, sT0, 131072); srd(dV, pV, sT0, 131072)
    A("s_waitcnt lgkmcnt(0)")
    A(f"s_load_dword s{sE}, s[{pWS}:{pWS+1}], 0")
    srd(dWS, pWS, None, 0x800000)
    dNUL = 44
    def W(name): return sr(dNUL, 4) if name in off else sr(dWS, 4)
    if off: srd(dNUL, pWS, None, 0)
    A(f"s_lshl2_add_u32 s{sBOX}, s{sG}, s{sS}")
    if rot: A(f"s_lshl_b32 s{sRot}, s2, 12"); A(f"s_and_b32 s{sRot}, s{sRot}, 0x1f000")
    else: A(f"s_mov_b32 s{sRot}, 0")
    def primebox():
        A(f"s_mul_i32 s{sT0}, s{sBOX}, {H1S}"); A(f"s_add_u32 s{sT0}, s{sT0}, {WS_H1}")
        A(f"v_lshl_add_u32 v{t0}, v0, 7, s{sT0}"); A(f"v_cmp_gt_u32 vcc, 18, v0"); A(f"v_mov_b32 v{t1}, {hex(OOB)}")
        A(f"v_cndmask_b32 v{t0}, v{t1}, v{t0}, vcc")
        A.vmem(f"buffer_load_dword v{vJ}, v{t0}, {sr(dWS,4)}, 0 offen sc1")
    def primebox2():
        A(f"s_mul_i32 s{sT0}, s{sBOX}, {H1S}"); A(f"s_add_u32 s{sT0}, s{sT0}, {WS_H1}")
        A(f"v_lshl_add_u32 v{t0}, v0, 7, s{sT0}"); A(f"s_cmp_eq_u32 s{sW}, 0"); A(f"s_cselect_b64 vcc, 0x200ff, 0"); A(f"v_mov_b32 v{t1}, {hex(OOB)}")
        A(f"v_cndmask_b32 v{t0}, v{t1}, v{t0}, vcc")
        A.vmem(f"buffer_load_dword v{vJ}, v{t0}, {sr(dWS,4)}, 0 offen sc1")
    if prime & 1: primebox()
    A(f"s_mov_b32 s{sMode}, {1 if force1 else 0}"); A(f"s_mov_b32 s{sIt}, 0")
    vG = V.get(); vI = V.get()
    A(f"v_lshrrev_b32 v{vG}, 4, v{vL}"); A(f"v_and_b32 v{vI}, 15, v{vL}")
    vKo = V.get(4); vVo = V.get()
    A(f"v_lshlrev_b32 v{vVo}, 4, v0")
    A(f"v_lshlrev_b32 v{t0}, 6, v{vG}"); A(f"v_xor_b32 v{vKo}, v{vVo}, v{t0}")
    for i in range(1, 4): A(f"v_xor_b32 v{vKo+i}, {i*16}, v{vKo}")
    if noswz:
        for i in range(4): A(f"v_mov_b32 v{vKo+i}, v{vVo}")
    kseq = []; vseq = []
    bump = [0]
    def pace(d=None): A(f"s_waitcnt vmcnt({(d or D)-1+bump[0]})")
    def so(j):
        if j == 0: A(f"s_mov_b32 s{sSo}, s{sRot}")
        else: A(f"s_addk_i32 s{sSo}, 0x1000"); A(f"s_and_b32 s{sSo}, s{sSo}, 0x1f000")
    def stepK(n=1):
        for _ in range(n):
            j = len(kseq)
            A(f"s_add_u32 m0, s{sM}, {j*4096}"); so(j); pace()
            kseq.append(A.vmem(f"buffer_load_dwordx4 v{vKo + (j & 3)}, {sr(dK,4)}, s{sSo} offen {nt} lds"))
    def stepV(n=1, d=None):
        for _ in range(n):
            j = len(vseq)
            so(j); pace(d or DV)
            vseq.append(A.vmem(f"buffer_load_dwordx4 {ar(4*j,4)}, v{vVo}, {sr(dV,4)}, s{sSo} offen {nt}"))
    lim = [0]
    def pos(): return len(kseq) + len(vseq)
    def step(n=1):
        for _ in range(n):
            if len(kseq) < 32: stepK(1)
            else: stepV(1)
    def autoK():
        if pos() < lim[0]: step(1)
    autoV = autoK
    def allred_groups(v, t, op):
        A(f"v_mov_b32 v{t}, v{v}"); A(f"v_permlane16_swap_b32 v{v}, v{t}"); A(f"{op} v{v}, v{v}, v{t}")
        A(f"v_mov_b32 v{t}, v{v}"); A(f"v_permlane32_swap_b32 v{v}, v{t}"); A(f"{op} v{v}, v{v}, v{t}")
    def allred64(v, t):
        for k in (8, 4, 2, 1): A(f"v_add_f32_dpp v{v}, v{v}, v{v} row_ror:{k} row_mask:0xf bank_mask:0xf")
        allred_groups(v, t, "v_add_f32")
    def unpack(dst, src, n):
        for k in range(n):
            A(f"v_and_b32 v{dst+2*k+1}, 0xffff0000, v{src+k}"); A(f"v_lshlrev_b32 v{dst+2*k}, 16, v{src+k}")
    stepK(max(0, D - 6))
    A.wait_vm(x1)
    fstamp(); fflush()
    stamp()
    A.cyc = 0; lim[0] = D; A.auto = autoK
    xf = V.get(16); d16 = V.get(16); p2 = V.get(2); pm = V.get(2)
    unpack(xf, xr, 8)
    A(f"v_pk_add_f32 {vr(p2,2)}, {vr(xf,2)}, {vr(xf+2,2)}")
    for k in range(2, 8): A(f"v_pk_add_f32 {vr(p2,2)}, {vr(p2,2)}, {vr(xf+2*k,2)}")
    A(f"v_add_f32 v{pm}, v{p2}, v{p2+1}")
    allred64(pm, t0)
    A(f"v_mul_f32 v{pm}, {hex(f2u(1/576))}, v{pm}")
    for k in range(8): A(f"v_pk_add_f32 {vr(d16+2*k,2)}, {vr(xf+2*k,2)}, {vr(pm,2)} op_sel_hi:[1,0] neg_lo:[0,1] neg_hi:[0,1]")
    A(f"v_pk_mul_f32 {vr(p2,2)}, {vr(d16,2)}, {vr(d16,2)}")
    for k in range(1, 8): A(f"v_pk_fma_f32 {vr(p2,2)}, {vr(d16+2*k,2)}, {vr(d16+2*k,2)}, {vr(p2,2)}")
    A(f"v_cmp_gt_u32 vcc, 36, v{vL}")
    A(f"v_add_f32 v{t1}, v{p2}, v{p2+1}")
    A(f"v_cndmask_b32 v{t1}, 0, v{t1}, vcc")
    allred64(t1, t0)
    A(f"v_mul_f32 v{t1}, {hex(f2u(1/576))}, v{t1}")
    A(f"v_cvt_pk_bf16_f32 v{t0}, v{pm}, v{t1}")
    A(f"v_lshlrev_b32 v{pm}, 16, v{t0}"); A(f"v_and_b32 v{t1}, 0xffff0000, v{t0}")
    A(f"v_add_f32 v{t1}, {hex(f2u(1e-5))}, v{t1}")
    A(f"v_cvt_pk_bf16_f32 v{t1}, v{t1}, v{t1}"); A(f"v_lshlrev_b32 v{t1}, 16, v{t1}")
    A(f"v_sqrt_f32 v{t1}, v{t1}")
    A(f"v_cvt_pk_bf16_f32 v{t1}, v{t1}, v{t1}"); A(f"v_lshlrev_b32 v{t1}, 16, v{t1}")
    A(f"v_rcp_f32 v{p2}, v{t1}")
    for k in range(8): A(f"v_pk_add_f32 {vr(d16+2*k,2)}, {vr(xf+2*k,2)}, {vr(pm,2)} op_sel_hi:[1,0] neg_lo:[0,1] neg_hi:[0,1]")
    for k in range(8): A(f"v_cvt_pk_bf16_f32 v{xr+k}, v{d16+2*k}, v{d16+2*k+1}")
    unpack(xf, xr, 8)
    for k in range(8): A(f"v_pk_mul_f32 {vr(xf+2*k,2)}, {vr(xf+2*k,2)}, {vr(p2,2)} op_sel_hi:[1,0]")
    for k in range(8): A(f"v_cvt_pk_bf16_f32 v{xr+k}, v{xf+2*k}, v{xf+2*k+1}")
    A(f"s_mul_i32 s{sT0}, s{sS}, 9"); A(f"s_sub_u32 s{sT1}, s{sW}, s{sS}"); A(f"s_mul_i32 s{sT1}, s{sT1}, 288"); A(f"s_add_u32 s{sT1}, s{sT1}, {L_XN}")
    A(f"v_lshl_add_u32 v{t0}, v{vL}, 5, s{sT1}")
    A.auto = None
    A(f"s_lshl_b64 exec, 0x1ff, s{sT0}")
    A(f"ds_write_b128 v{t0}, {vr(xr,4)}"); A(f"ds_write_b128 v{t0}, {vr(xr+4,4)} offset:16")
    A("s_mov_b64 exec, -1")
    V.put(xf, 16); V.put(d16, 16); V.put(p2, 2); V.put(pm, 2)
    A.auto = autoK
    A("s_waitcnt lgkmcnt(0)")
    V.put(xr, 8)
    vT1 = V.get(); vT2 = V.get()
    A(f"s_add_u32 s{sE}, s{sE}, 1"); A(f"s_mul_i32 s{sT0}, s{sE}, 0x9E3779B1")
    A(f"s_getreg_b32 s{sT1}, hwreg(HW_REG_XCC_ID, 0, 4)"); A(f"s_lshl_b32 s{sT1}, s{sT1}, 28")
    A(f"s_add_u32 s{sT2}, s{sT0}, 0x4a3c5e12"); A(f"s_xor_b32 s{sT0}, s{sT0}, s{sT1}")
    A(f"v_mov_b32 v{vT1}, s{sT0}"); A(f"v_mov_b32 v{vT2}, s{sT2}")
    A(f"s_lshl_b32 s{sS0}, s{sE}, 8"); A(f"s_and_b32 s{sS0}, s{sS0}, 0x7fff00"); A(f"s_or_b32 s{sS0}, s{sS0}, 0x4b000000")
    def initacc():
        au = A.auto; A.auto = None
        i4 = V.get(4, 4)
        for r in range(3): A(f"v_mov_b32 v{i4+r}, 0")
        A(f"v_mov_b32 v{i4+3}, s{sS0}")
        A(f"s_mul_i32 s{sT0}, s{sS}, 48"); A(f"s_add_u32 s{sT0}, s{sT0}, s{sG}"); A(f"s_lshl_b32 s{sT0}, s{sT0}, 7"); A(f"s_add_u32 s{sT0}, s{sT0}, {WS_AC}")
        A(f"s_cmp_lt_u32 s{sG}, 48"); A(f"s_cselect_b32 s{sT1}, 4, 0")
        A(f"v_lshl_add_u32 v{t0}, v0, 4, s{sT0}"); A(f"v_cmp_gt_u32 vcc, s{sT1}, v0"); A(f"v_mov_b32 v{t1}, {hex(OOB)}")
        A(f"v_cndmask_b32 v{t0}, v{t1}, v{t0}, vcc")
        A.vmem(f"buffer_store_dwordx4 {vr(i4,4)}, v{t0}, {sr(dWS,4)}, 0 offen sc1")
        A("s_nop 1")
        V.put(i4, 4)
        A.auto = au
    if not lateinit: initacc()
    for r in range(4): A(f"s_mov_b32 s{sSel+r}, {hex(0x07060500 + r)}")
    A(f"s_mov_b32 s{sSelA}, 0x0c0c0400"); A(f"s_mov_b32 s{sSelB}, 0x04000c0c")
    A(f"s_mov_b32 s{sU1}, 0x00f000f0"); A(f"s_mov_b32 s{sU1+1}, 0x00f000f0")
    A(f"s_mov_b32 s{sU2}, 0x0f000f00"); A(f"s_mov_b32 s{sU2+1}, 0x0f000f00")
    A(f"s_mov_b32 s{sSpin}, {spin}")
    def tag(v, vT=None):
        vT = vT or vT2
        for r in range(4): A(f"v_perm_b32 v{v+r}, v{v+r}, v{vT}, s{sSel+r}")
    def chk(v, dst, vT=None):
        vT = vT or vT2
        A(f"v_perm_b32 v{t0}, v{v+1}, v{v}, s{sSelA}"); A(f"v_perm_b32 v{t1}, v{v+3}, v{v+2}, s{sSelB}")
        A(f"v_or_b32 v{t0}, v{t0}, v{t1}"); A(f"v_cmp_ne_u32 {dst}, v{vT if nohand else t0}, v{vT}")
    def untag(d, v):
        for r in range(4): A(f"v_and_b32 v{d+r}, 0xffffff00, v{v+r}")
    def tred(v):
        A(f"v_permlane32_swap_b32 v{v}, v{v+2}"); A(f"v_permlane32_swap_b32 v{v+1}, v{v+3}")
        A(f"v_add_f32 v{v}, v{v}, v{v+2}"); A(f"v_add_f32 v{v+1}, v{v+1}, v{v+3}")
        A(f"v_permlane16_swap_b32 v{v}, v{v+1}"); A(f"v_add_f32 v{v}, v{v}, v{v+1}")
    def select3(o, d0, d1, d2):
        for r in range(4): A(f"v_cndmask_b32 v{o+r}, v{d0+r}, v{d1+r}, {sr(sU1,2)}")
        for r in range(4): A(f"v_cndmask_b32 v{o+r}, v{o+r}, v{d2+r}, {sr(sU2,2)}")
    vB3 = V.get(); vQ4 = V.get()
    A(f"v_and_b32 v{vB3}, 3, v{vL}"); A(f"v_lshrrev_b32 v{vQ4}, 2, v{vL}")
    aXb = V.get(); aWq = V.get(); aW1 = V.get(); aW1h = V.get(); aH1 = V.get()
    A(f"v_mul_u32_u24 v{aXb}, 288, v{vB3}"); A(f"v_lshl_add_u32 v{aXb}, v{vG}, 3, v{aXb}"); A(f"v_add_u32 v{aXb}, {L_XN}, v{aXb}")
    A(f"s_lshl_b32 s{sT0}, s{sW}, 5")
    A(f"v_lshlrev_b32 v{t2}, 3, v{vB3}")
    A(f"v_lshl_add_u32 v{aWq}, v{vQ4}, 7, v{t2}"); A(f"s_add_u32 s{sT1}, s{sT0}, {L_WQ}"); A(f"v_add_u32 v{aWq}, s{sT1}, v{aWq}")
    A(f"v_mul_u32_u24 v{aW1h}, 144, v{vQ4}"); A(f"v_add_u32 v{aW1h}, v{aW1h}, v{t2}"); A(f"v_add_u32 v{aW1h}, {L_W1}, v{aW1h}")
    A(f"v_add_u32 v{aW1}, s{sT0}, v{aW1h}")
    A(f"s_lshl_b32 s{sT0}, s{sW}, 6")
    A(f"v_lshlrev_b32 v{t2}, 4, v{vG}")
    A(f"v_lshl_add_u32 v{aH1}, v{vB3}, 8, v{t2}"); A(f"v_add_u32 v{aH1}, s{sT0}, v{aH1}")
    A(f"v_mul_u32_u24 v{t3}, 288, v{vB3}"); A(f"v_add_u32 v{t3}, v{t3}, v{t2}")
    A(f"s_add_u32 s{sT0}, s{sT0}, 1024"); A(f"v_add_u32 v{t0}, s{sT0}, v{t3}")
    A(f"v_cndmask_b32 v{aH1}, v{aH1}, v{t0}, {sr(sU1,2)}")
    A(f"v_add_u32 v{t0}, {1024+256}, v{t3}")
    A(f"v_cndmask_b32 v{aH1}, v{aH1}, v{t0}, {sr(sU2,2)}")
    A(f"s_lshl_b32 s{sT0}, 0x01000100, s{sW}"); A(f"s_or_b32 vcc_lo, s{sT0}, 0x00ff00ff"); A("s_mov_b32 vcc_hi, 0x00ff00ff")
    A(f"s_mul_i32 s{sT0}, s{sBOX}, {H1S}"); A(f"s_add_u32 s{sT0}, s{sT0}, {WS_H1}")
    A(f"v_add_u32 v{aH1}, s{sT0}, v{aH1}")
    A(f"v_mov_b32 v{t0}, {hex(OOB)}")
    A(f"v_cndmask_b32 v{aH1}, v{t0}, v{aH1}, vcc")
    while len(kseq) < D: stepK(1)
    A.wait_vm(lastA)
    A("s_barrier")
    stepK(1); A.cyc = 0; lim[0] = 24
    stamp()
    fr = [V.get(24), V.get(24)]; acc = V.get(12, 4)
    def batchA(bi):
        f = fr[bi & 1]
        for k in range(3):
            st = 3 * bi + k
            A(f"ds_read_b64 {vr(f+8*k,2)}, v{aXb} offset:{st*32}")
            A(f"ds_read_b64_tr_b16 {vr(f+8*k+2,2)}, v{aWq} offset:{st*2048}")
            A(f"ds_read_b64_tr_b16 {vr(f+8*k+4,2)}, v{aW1} offset:{st*2304}")
            A(f"ds_read_b64_tr_b16 {vr(f+8*k+6,2)}, v{aW1h} offset:{st*2304+128}")
    def mfmaA(bi):
        f = fr[bi & 1]
        for k in range(3):
            for tl in range(3):
                c = "0" if (bi == 0 and k == 0) else vr(acc+4*tl, 4)
                A(f"v_mfma_f32_16x16x16_bf16 {vr(acc+4*tl,4)}, {vr(f+8*k+2+2*tl,2)}, {vr(f+8*k,2)}, {c}")
    batchA(0); A("s_waitcnt lgkmcnt(0)")
    batchA(1); mfmaA(0); A("s_waitcnt lgkmcnt(0)")
    A("s_nop 7")
    batchA(2); mfmaA(1); A("s_waitcnt lgkmcnt(0)")
    mfmaA(2)
    o4 = V.get(4, 4)
    select3(o4, acc, acc + 4, acc + 8); tag(o4, vT1)
    A.vmem(f"buffer_store_dwordx4 {vr(o4,4)}, v{aH1}, {W('h1s')}, 0 offen")
    stamp()
    V.put(fr[0], 24); V.put(fr[1], 24); V.put(acc, 12)
    for r in (aXb, aWq, aW1, aW1h): V.put(r)
    stepK(1)
    assert len(kseq) <= 27
    A("s_barrier")
    V.put(aH1); V.put(o4, 4)
    aGq = V.get(); aGh = V.get(); aGh2 = V.get()
    A(f"v_mul_u32_u24 v{t2}, {H1S}, v{vG}"); A(f"v_lshl_add_u32 v{t2}, v{vI}, 4, v{t2}")
    A(f"s_lshl2_add_u32 s{sT0}, s{sHKV}, s{sW}"); A(f"s_mul_i32 s{sT0}, s{sT0}, {4*H1S}"); A(f"s_lshl_b32 s{sT1}, s{sB}, 8"); A(f"s_add_u32 s{sT0}, s{sT0}, s{sT1}"); A(f"s_add_u32 s{sT0}, s{sT0}, {WS_H1}")
    A(f"v_add_u32 v{aGq}, s{sT0}, v{t2}")
    A(f"s_mul_i32 s{sT0}, s{sG}, {4*H1S}"); A(f"s_mul_i32 s{sT1}, s{sW}, 288"); A(f"s_add_u32 s{sT0}, s{sT0}, s{sT1}"); A(f"s_add_u32 s{sT0}, s{sT0}, {WS_H1+1024}")
    A(f"v_add_u32 v{aGh}, s{sT0}, v{t2}")
    A(f"v_cmp_gt_u32 vcc, 2, v{vI}"); A(f"v_add_u32 v{aGh2}, 256, v{aGh}"); A(f"v_mov_b32 v{t0}, {hex(OOB)}")
    A(f"v_cndmask_b32 v{aGh2}, v{t0}, v{aGh2}, vcc")
    vM = V.get(4)
    A(f"v_and_b32 v{t0}, 1, v{vL}"); A(f"v_lshlrev_b32 v{t0}, 4, v{t0}"); A(f"v_mov_b32 v{t1}, 0xffff"); A(f"v_lshlrev_b32 v{t1}, v{t0}, v{t1}")
    A(f"v_bfe_u32 v{t0}, v{vL}, 1, 2")
    for k in range(4):
        A(f"v_cmp_eq_u32 vcc, {k}, v{t0}"); A(f"v_cndmask_b32 v{vM+k}, 0, v{t1}, vcc")
    aQw = V.get(); aHw = V.get(); aQr = V.get(); aKr = V.get(4)
    A(f"v_lshl_add_u32 v{t0}, v{vI}, 2, v{vG}"); A(f"v_lshlrev_b32 v{t0}, 1, v{t0}")
    A(f"s_lshl_b32 s{sT0}, s{sW}, 7"); A(f"s_add_u32 s{sT0}, s{sT0}, {L_Q}"); A(f"v_add_u32 v{aQw}, s{sT0}, v{t0}")
    A(f"s_mul_i32 s{sT0}, s{sW}, 160"); A(f"s_add_u32 s{sT0}, s{sT0}, {L_H}"); A(f"v_add_u32 v{aHw}, s{sT0}, v{t0}")
    A(f"v_lshrrev_b32 v{t0}, 3, v{vI}"); A(f"v_lshlrev_b32 v{t0}, 8, v{t0}"); A(f"v_lshl_add_u32 v{aQr}, v{vG}, 4, v{t0}"); A(f"v_add_u32 v{aQr}, {L_Q}, v{aQr}")
    A(f"v_xor_b32 v{t0}, v{vG}, v{vI}"); A(f"v_lshlrev_b32 v{t0}, 4, v{t0}")
    A(f"v_lshl_add_u32 v{t0}, v{vB3}, 12, v{t0}"); A(f"v_lshrrev_b32 v{t1}, 2, v{vI}"); A(f"v_lshl_add_u32 v{t0}, v{t1}, 8, v{t0}")
    A(f"v_add_u32 v{aKr}, s{sM}, v{t0}")
    for k in range(1, 4): A(f"v_xor_b32 v{aKr+k}, {k*64}, v{aKr}")
    aOPw = V.get(); aOPr = V.get(); aH2 = V.get(); aG2 = V.get(); aGm = V.get(); aOw = V.get(); aOr = V.get(); aHr = V.get()
    aW = V.get(); aAc = V.get()
    def addr_block1():
        A(f"v_lshrrev_b32 v{t0}, 1, v{vG}"); A(f"v_lshlrev_b32 v{t0}, 9, v{t0}"); A(f"v_lshl_add_u32 v{t0}, v{vI}, 5, v{t0}")
        A(f"v_and_b32 v{t1}, 1, v{vG}"); A(f"v_lshl_add_u32 v{t0}, v{t1}, 4, v{t0}"); A(f"v_add_u32 v{aOPw}, s{sM}, v{t0}")
        A(f"s_lshl_b32 s{sT1}, s{sW}, 8"); A(f"v_lshl_add_u32 v{aOPr}, v{vI}, 4, s{sT1}")
        A(f"s_mul_i32 s{sT0}, s{sBOX}, {H1S}"); A(f"s_add_u32 s{sT0}, s{sT0}, {WS_H1}"); A(f"v_add_u32 v{aH2}, s{sT0}, v{aOPr}")
        A(f"v_and_b32 v{t0}, 12, v{vL}"); A(f"v_add_u32 v{t0}, v{t0}, v{vG}"); A(f"v_mul_u32_u24 v{t0}, {H1S}, v{t0}")
        A(f"s_mul_i32 s{sT0}, s{sHKV}, {16*H1S}"); A(f"s_add_u32 s{sT0}, s{sT0}, {WS_H1}")
        A(f"s_add_u32 s{sT1}, s{sT0}, {MLO}"); A(f"v_add_u32 v{aGm}, s{sT1}, v{t0}")
        A(f"s_lshl2_add_u32 s{sT1}, s{sB}, s{sW}"); A(f"s_lshl_b32 s{sT1}, s{sT1}, 6"); A(f"s_add_u32 s{sT0}, s{sT0}, s{sT1}")
        A(f"v_lshl_add_u32 v{t0}, v{vB3}, 4, v{t0}"); A(f"v_add_u32 v{aG2}, s{sT0}, v{t0}")
    def addr_block2():
        A(f"s_lshr_b32 s{sT0}, s{sW}, 1"); A(f"s_lshl_b32 s{sT0}, s{sT0}, 6"); A(f"s_and_b32 s{sT1}, s{sW}, 1"); A(f"s_lshl3_add_u32 s{sT0}, s{sT1}, s{sT0}"); A(f"s_add_u32 s{sT0}, s{sT0}, {L_O}")
        A(f"v_and_b32 v{t0}, 12, v{vL}"); A(f"v_lshlrev_b32 v{t0}, 5, v{t0}"); A(f"v_lshl_add_u32 v{t0}, v{vB3}, 4, v{t0}"); A(f"v_lshl_add_u32 v{t0}, v{vG}, 1, v{t0}")
        A(f"v_add_u32 v{aOw}, s{sT0}, v{t0}")
        A(f"v_and_b32 v{t1}, 3, v{vQ4}")
        A(f"v_lshlrev_b32 v{t0}, 7, v{t1}"); A(f"v_lshl_add_u32 v{t0}, v{vG}, 4, v{t0}"); A(f"v_add_u32 v{aOr}, {L_O}, v{t0}")
        A(f"v_mul_u32_u24 v{t0}, 160, v{t1}"); A(f"v_lshl_add_u32 v{t0}, v{vG}, 3, v{t0}"); A(f"v_add_u32 v{aHr}, {L_H}, v{t0}")
        A(f"v_mul_u32_u24 v{t0}, 288, v{vQ4}"); A(f"v_lshl_add_u32 v{t0}, v{vB3}, 3, v{t0}")
        A(f"s_mul_i32 s{sT0}, s{sW}, 96"); A(f"s_add_u32 s{sT0}, s{sT0}, {L_WO}"); A(f"v_add_u32 v{aW}, s{sT0}, v{t0}")
    def addr_block3():
        A(f"s_mul_i32 s{sT0}, s{sS}, 3"); A(f"s_add_u32 s{sT0}, s{sT0}, s{sW}"); A(f"s_lshl_b32 s{sT0}, s{sT0}, 11"); A(f"s_add_u32 s{sT0}, s{sT0}, {WS_AC}")
        A(f"v_lshlrev_b32 v{t0}, 9, v{vG}"); A(f"v_lshl_add_u32 v{t0}, v{vI}, 2, v{t0}"); A(f"v_add_u32 v{aAc}, s{sT0}, v{t0}")
        if linw:
            A(f"s_mul_i32 s{sT0}, s{sBOX}, {18*1152}"); srd(dW2, pW2, sT0, 18 * 1152)
            A(f"s_mul_i32 s{sT0}, s{sBOX}, {16*1152}"); srd(dWO, pWO, sT0, 16 * 1152)
        else:
            A(f"s_mul_i32 s{sT1}, s{sS}, 288")
            A(f"s_mul_i32 s{sT0}, s{sG}, {72*1152}"); A(f"s_add_u32 s{sT0}, s{sT0}, s{sT1}"); srd(dW2, pW2, sT0, 71 * 1152 + 288)
            A(f"s_mul_i32 s{sT0}, s{sG}, {64*1152}"); A(f"s_add_u32 s{sT0}, s{sT0}, s{sT1}"); srd(dWO, pWO, sT0, 63 * 1152 + 288)
    aOut = V.get(); xr2 = V.get(2); xq = [None]
    def addr_block4():
        A(f"s_mul_i32 s{sT0}, s{sS}, 288"); A(f"s_mul_i32 s{sT1}, s{sW}, 96"); A(f"s_add_u32 s{sT0}, s{sT0}, s{sT1}")
        A(f"v_and_b32 v{t1}, 3, v{vQ4}"); A(f"v_mul_u32_u24 v{t0}, 1152, v{t1}"); A(f"v_lshl_add_u32 v{t0}, v{vB3}, 5, v{t0}")
        A(f"v_lshl_add_u32 v{t0}, v{vG}, 3, v{t0}"); A(f"v_add_u32 v{aOut}, s{sT0}, v{t0}")
        srd(dX, pX, None, 4608); srd(dOUT, pOUT, None, 4608)
        A(f"s_cmp_eq_u32 s{sG}, 0"); A(f"s_cselect_b32 s{dX+2}, s{dX+2}, 0")
        xq[0] = A.vmem(f"buffer_load_dwordx2 {vr(xr2,2)}, v{aOut}, {sr(dX,4)}, 0 offen")
    lim[0] = GK
    for f in (addr_block1, addr_block2, addr_block3, addr_block4): f()
    A.auto = None
    print("K steps issued after address blocks:", len(kseq), file=sys.stderr)
    while len(kseq) < GK: stepK(1)
    stamp()
    gq = V.get(4, 4); gh = V.get(4, 4); gh2 = V.get(4, 4)
    def gatherH1():
        A.vmem(f"buffer_load_dwordx4 {vr(gq,4)}, v{aGq}, {W('h1g')}, 0 offen {ldf}")
        A.vmem(f"buffer_load_dwordx4 {vr(gh,4)}, v{aGh}, {W('h1g')}, 0 offen {ldf}")
        return A.vmem(f"buffer_load_dwordx4 {vr(gh2,4)}, v{aGh2}, {W('h1g')}, 0 offen {ldf}")
    g1 = gatherH1()
    bump[0] = 2
    step(D)
    bump[0] = 0
    A.wait_vm(g1)
    stamp()
    slow = []
    A.label("L_chk1")
    chk(gq, sr(sP, 2), vT1); chk(gh, sr(sP + 2, 2), vT1); chk(gh2, "vcc", vT1)
    A(f"s_and_b32 vcc_lo, vcc_lo, 0x00030003"); A(f"s_and_b32 vcc_hi, vcc_hi, 0x00030003")
    A(f"s_or_b64 vcc, vcc, {sr(sP,2)}"); A(f"s_or_b64 vcc, vcc, {sr(sP+2,2)}")
    A("s_cbranch_scc1 L_slow1")
    A.label("L_ok1")
    spinrec(58)
    def slow1():
        A.label("L_slow1")
        A(f"s_sub_u32 s{sSpin}, s{sSpin}, 1"); A("s_cbranch_scc1 L_end")
        A(f"s_mov_b64 {sr(sP,2)}, 0")
        for v in (gq, gh, gh2):
            if v == gh2: A("s_mov_b32 exec_lo, 0x00030003"); A("s_mov_b32 exec_hi, 0x00030003")
            chk(v, sr(sP + 2, 2), vT1)
            A(f"v_xor_b32 v{t0}, v{t0}, v{vT1}"); A(f"v_lshlrev_b32 v{t0}, 4, v{t0}"); A(f"v_cmp_ne_u32 vcc, 0, v{t0}")
            A(f"s_or_b64 {sr(sP,2)}, {sr(sP,2)}, vcc")
            A(f"s_andn2_b64 vcc, {sr(sP+2,2)}, vcc"); A(f"s_cselect_b32 s{sMode}, 1, s{sMode}")
        A("s_mov_b64 exec, -1")
        A(f"s_cmp_eq_u64 {sr(sP,2)}, 0"); A("s_cbranch_scc1 L_ok1")
        A(f"s_add_u32 s{sIt}, s{sIt}, 1"); A(f"s_cmp_lt_u32 s{sIt}, 4"); A("s_cbranch_scc1 L_slow1b")
        copybox("a")
        A.label("L_slow1b")
        n = len(A.vm); gatherH1(); del A.vm[n:]
        A("s_waitcnt vmcnt(0)"); A("s_branch L_chk1")
    slow.append(slow1)
    cp = V.get(4, 4); cpa = V.get()
    def copybox(nm):
        n = len(A.vm)
        A(f"s_mul_i32 s{sT0}, s{sBOX}, {H1S}"); A(f"s_add_u32 s{sT0}, s{sT0}, {WS_H1}"); A(f"v_lshl_add_u32 v{cpa}, v{vL}, 4, s{sT0}")
        for k in range(3):
            if k == 2: A("s_mov_b64 exec, 0xff")
            A.vmem(f"buffer_load_dwordx4 {vr(cp,4)}, v{cpa}, {sr(dWS,4)}, 0 offen offset:{k*1024} sc1")
            A("s_waitcnt vmcnt(0)")
            chk(cp, "vcc", vT1)
            A("s_andn2_b64 exec, exec, vcc"); A(f"s_cbranch_execz L_cp{nm}{k}")
            A.vmem(f"buffer_store_dwordx4 {vr(cp,4)}, v{cpa}, {sr(dWS,4)}, 0 offen offset:{k*1024} sc1")
            A.label(f"L_cp{nm}{k}")
            A("s_mov_b64 exec, -1")
            A("s_waitcnt vmcnt(0)")
        del A.vm[n:]
    def pubstore(nm, text):
        A(f"s_cmp_lg_u32 s{sMode}, 0"); A(f"s_cbranch_scc1 L_alt{nm}")
        A.vmem(text)
        A.label(f"L_altb{nm}")
        def alt():
            A.label(f"L_alt{nm}")
            n = len(A.vm); A.vmem(text + " sc1"); del A.vm[n:]
            A("s_nop 1"); A(f"s_branch L_altb{nm}")
        slow.append(alt)
    step(1); A.cyc = 0; lim[0] = 60; A.auto = autoV
    for v in (gq, gh, gh2): untag(v, v)
    for v in (gq, gh, gh2): tred(v)
    A(f"v_cvt_pk_bf16_f32 v{gq}, v{gq}, v{gq}")
    A(f"ds_write_b16 v{aQw}, v{gq}")
    A(f"s_lshl2_add_u32 s{sT0}, s{sW}, {L_FL}"); A(f"v_mov_b32 v{t2}, s{sT0}"); A(f"v_mov_b32 v{t3}, s{sMode}")
    A(f"ds_write_b32 v{t2}, v{t3}")
    A(f"v_cvt_pk_bf16_f32 v{t0}, v{gh}, v{gh2}")
    A(f"v_lshlrev_b32 v{gh}, 16, v{t0}"); A(f"v_and_b32 v{gh2}, 0xffff0000, v{t0}")
    for v in (gh, gh2): A(f"v_mul_f32 v{v+1}, {hex(LOG2E | 0x80000000)}, v{v}")
    for v in (gh, gh2): A(f"v_exp_f32 v{v+1}, v{v+1}")
    for v in (gh, gh2): A(f"v_add_f32 v{v+1}, 1.0, v{v+1}")
    for v in (gh, gh2): A(f"v_rcp_f32 v{v+1}, v{v+1}")
    for v in (gh, gh2): A(f"v_mul_f32 v{v}, v{v}, v{v+1}")
    A(f"v_cvt_pk_bf16_f32 v{t0}, v{gh}, v{gh2}")
    A(f"ds_write_b16 v{aHw}, v{t0}")
    A.auto = None
    A("s_mov_b32 exec_lo, 0x000f000f"); A("s_mov_b32 exec_hi, 0x000f000f")
    A(f"ds_write_b16_d16_hi v{aHw}, v{t0} offset:128")
    A("s_mov_b64 exec, -1")
    step(1); A.cyc = 0; A.auto = autoV
    A("s_waitcnt lgkmcnt(0)")
    A("s_barrier")
    stamp()
    A(f"v_mov_b32 v{t2}, {L_FL}"); A(f"ds_read_b128 {vr(gq,4)}, v{t2}")
    def modecheck():
        au = A.auto; A.auto = None
        A(f"v_or3_b32 v{t2}, v{gq}, v{gq+1}, v{gq+2}"); A(f"v_or_b32 v{t2}, v{t2}, v{gq+3}")
        A(f"v_readfirstlane_b32 s{sMode}, v{t2}")
        A(f"s_cmp_lg_u32 s{sMode}, 0"); A("s_cbranch_scc1 L_mode1")
        A.label("L_mode1b")
        def mode1():
            A.label("L_mode1"); copybox("b"); A("s_branch L_mode1b")
        slow.append(mode1)
        A.auto = au
    V.put(aQw); V.put(aHw)
    if strip: A.drop = True
    qf = V.get(16, 4); kf = [V.get(16, 4), V.get(16, 4)]; S = V.get(32, 4)
    for st in range(4): A(f"ds_read_b128 {vr(qf+4*st,4)}, v{aQr} offset:{st*64}")
    def rdK(t):
        if 4 * t + 3 >= GK:
            while pos() < 4 * t + 3 + D: step(1); A.cyc = 0
            A.wait_vm(kseq[4 * t + 3])
        if t == 4:
            for k in range(4): A(f"v_add_u32 v{aKr+k}, 0x10000, v{aKr+k}")
        for st in range(4): A(f"ds_read_b128 {vr(kf[t&1]+4*st,4)}, v{aKr+st} offset:{(t&3)*16384}")
    rdK(0)
    for t in range(8):
        if t < 7:
            rdK(t + 1); A("s_waitcnt lgkmcnt(4)")
        else: A("s_waitcnt lgkmcnt(0)")
        for st in range(4):
            c = "0" if st == 0 else vr(S+4*t, 4)
            A(f"v_mfma_f32_16x16x32_bf16 {vr(S+4*t,4)}, {vr(kf[t&1]+4*st,4)}, {vr(qf+4*st,4)}, {c}")
        if t < 7: A("s_nop 3")
        if t == 0: modecheck()
    V.put(qf, 16); V.put(kf[0], 16); V.put(kf[1], 16); V.put(aQr); V.put(aKr, 4); V.put(vKo, 4)
    for v in (gq, gh, gh2, cp): V.put(v, 4)
    V.put(cpa)
    if prime & 2:
        au = A.auto; A.auto = None; primebox2(); A.auto = au
    pc = V.get(2); tp = V.get(8)
    A(f"v_mov_b32 v{pc}, {hex(SCALE)}")
    for h in range(2):
        for k in range(8): A(f"v_cvt_pk_bf16_f32 v{tp+k}, v{S+16*h+2*k}, v{S+16*h+2*k+1}")
        unpack(S + 16 * h, tp, 8)
        for k in range(8): A(f"v_pk_mul_f32 {vr(S+16*h+2*k,2)}, {vr(S+16*h+2*k,2)}, {vr(pc,2)} op_sel_hi:[1,0]")
        for k in range(8): A(f"v_cvt_pk_bf16_f32 v{tp+k}, v{S+16*h+2*k}, v{S+16*h+2*k+1}")
        unpack(S + 16 * h, tp, 8)
    ml = V.get(2); pl = V.get(2); pn = V.get(2)
    A(f"v_max_f32 v{ml}, v{S}, v{S+1}")
    for k in range(1, 16): A(f"v_max3_f32 v{ml}, v{S+2*k}, v{S+2*k+1}, v{ml}")
    allred_groups(ml, t0, "v_max_f32")
    A(f"v_mov_b32 v{pc}, {hex(LOG2E)}")
    A(f"v_mul_f32 v{pn}, {hex(LOG2E | 0x80000000)}, v{ml}")
    for k in range(16): A(f"v_pk_fma_f32 {vr(S+2*k,2)}, {vr(S+2*k,2)}, {vr(pc,2)}, {vr(pn,2)} op_sel_hi:[1,0,0]")
    for k in range(32): A(f"v_exp_f32 v{S+k}, v{S+k}")
    A(f"v_pk_add_f32 {vr(pl,2)}, {vr(S,2)}, {vr(S+2,2)}")
    for k in range(2, 16): A(f"v_pk_add_f32 {vr(pl,2)}, {vr(pl,2)}, {vr(S+2*k,2)}")
    A(f"v_add_f32 v{ml+1}, v{pl}, v{pl+1}")
    allred_groups(ml + 1, t0, "v_add_f32")
    A.drop = False
    A(f"s_lshl_b32 s{sT0}, s{sW}, 4"); A(f"s_add_u32 s{sT0}, s{sT0}, {L_ML}")
    A(f"v_and_b32 v{t0}, 8, v{vL}"); A(f"v_add_u32 v{t0}, s{sT0}, v{t0}")
    A(f"ds_write_b64 v{t0}, {vr(ml,2)}")
    for k in range(32): A(f"v_cvt_pk_bf16_f32 v{S+k}, v{S+k}, v{S+k}")
    A("s_waitcnt lgkmcnt(0)")
    A("s_barrier")
    stamp()
    A(f"v_lshrrev_b32 v{t0}, 5, v{vL}"); A(f"v_lshlrev_b32 v{t0}, 3, v{t0}"); A(f"v_add_u32 v{t1}, s{sT0}, v{t0}"); A(f"v_add_u32 v{t0}, {L_ML}, v{t0}")
    for k in range(4): A(f"ds_read_b64 {vr(tp+2*k,2)}, v{t0} offset:{16*k}")
    A(f"ds_read_b32 v{pl}, v{t1}")
    A("s_waitcnt lgkmcnt(0)")
    vF = V.get(2); g4 = V.get(4, 4)
    A(f"v_max3_f32 v{g4}, v{tp}, v{tp+2}, v{tp+4}"); A(f"v_max_f32 v{g4}, v{g4}, v{tp+6}")
    for r in (tp, tp + 2, tp + 4, tp + 6, pl): A(f"v_sub_f32 v{r}, v{r}, v{g4}")
    for r in (tp, tp + 2, tp + 4, tp + 6, pl): A(f"v_mul_f32 v{r}, {hex(LOG2E)}, v{r}")
    for r in (tp, tp + 2, tp + 4, tp + 6): A(f"v_exp_f32 v{r}, v{r}")
    A(f"v_exp_f32 v{vF}, v{pl}")
    A(f"v_mul_f32 v{g4+1}, v{tp}, v{tp+1}")
    for k in range(1, 4): A(f"v_fmac_f32 v{g4+1}, v{tp+2*k}, v{tp+2*k+1}")
    A(f"v_mov_b32 v{g4+2}, v{g4}"); A(f"v_mov_b32 v{g4+3}, v{g4+1}")
    A(f"v_permlane32_swap_b32 v{g4}, v{g4+2}"); A(f"v_permlane32_swap_b32 v{g4+1}, v{g4+3}")
    tag(g4)
    A(f"s_mul_i32 s{sT0}, s{sBOX}, {H1S}"); A(f"s_add_u32 s{sT1}, s{sT0}, {WS_H1+MLO}")
    A(f"v_cmp_gt_u32 vcc, 8, v0"); A(f"v_mov_b32 v{t0}, {hex(OOB)}"); A(f"v_lshl_add_u32 v{t1}, v0, 4, s{sT1}")
    A(f"v_cndmask_b32 v{t0}, v{t0}, v{t1}, vcc")
    A.auto = None
    pubstore("m", f"buffer_store_dwordx4 {vr(g4,4)}, v{t0}, {W('mls')}, 0 offen")
    V.put(pc, 2); V.put(tp, 8); V.put(ml, 2); V.put(pl, 2); V.put(pn, 2)
    A.auto = None
    print("V steps issued at end of softmax:", len(vseq), file=sys.stderr)
    oacc = V.get(4, 4); NQ = 8; aq = V.get(4 * NQ, 4)
    built = [0]; done = [0]
    def build(n=1):
        for _ in range(n):
            j = built[0]
            if j >= 32: return
            assert j - done[0] < NQ
            for k in range(4): A(f"v_and_b32 v{aq+4*(j%NQ)+k}, v{S+j}, v{vM+k}")
            built[0] += 1
    def pv(wait=True):
        j = done[0]
        assert built[0] > j
        if wait: A.wait_vm(vseq[j])
        c = "0" if j == 0 else vr(oacc, 4)
        A(f"v_mfma_f32_16x16x32_bf16 {vr(oacc,4)}, {vr(aq+4*(j%NQ),4)}, {ar(4*j,4)}, {c}")
        done[0] += 1
    go = V.get(4, 4); gm = V.get(4, 4); vWg = V.get(2); xc = V.get(4, 4)
    unpack(xc, xr2, 2)
    for k, m in ((sU1, 0x22222222), (sU2, 0x44444444), (sP + 6, 0x88888888)): A(f"s_mov_b32 s{k}, {hex(m)}"); A(f"s_mov_b32 s{k+1}, {hex(m)}")
    sU3 = sP + 6
    go0 = go
    def gatherO(): return A.vmem(f"buffer_load_dwordx4 {vr(go0,4)}, v{aG2}, {W('og')}, 0 offen {ldf}")
    def gatherML(): return A.vmem(f"buffer_load_dwordx4 {vr(gm,4)}, v{aGm}, {W('mlg')}, 0 offen {ldf}")
    build(2)
    assert len(vseq) < GM
    while len(vseq) < 32:
        stepV(1)
        if len(vseq) == GM: gml = gatherML()
        if tlb and len(vseq) == tlb:
            A("s_mov_b64 exec, 1"); A.vmem(f"buffer_load_dword v{vJ}, v{aOut}, {sr(dOUT,4)}, 0 offen"); A("s_mov_b64 exec, -1")
        if dirty and 20 <= len(vseq) < 20 + dirty:
            A(f"s_lshl_b32 s{sT0}, s2, 12"); A(f"s_add_u32 s{sT0}, s{sT0}, {0x500000 + (len(vseq) - 20) * 0x100000}")
            A.vmem(f"buffer_store_dwordx4 {vr(S,4)}, v{vVo}, {sr(dWS,4)}, s{sT0} offen")
        if len(vseq) == PR and prime & 4: primebox2()
        if len(vseq) == PR and prime & 8: gatherO()
        n = 0
        while done[0] < len(vseq) - DV - 1 and n < 4:
            pv(); build(1); n += 1
    V.put(g4, 4)
    stamp()
    def weights():
        A.wait_vm(gml)
        A.label("L_chk2")
        chk(gm, "vcc")
        A("s_cbranch_vccnz L_slow2")
        spinrec(59)
        def slow2():
            A.label("L_slow2")
            A(f"s_sub_u32 s{sSpin}, s{sSpin}, 1"); A("s_cbranch_scc1 L_end")
            n = len(A.vm); gatherML(); del A.vm[n:]
            A("s_waitcnt vmcnt(0)"); A("s_branch L_chk2")
        slow.append(slow2)
        A(f"s_cmp_ge_u32 s{sB}, 2"); A(f"s_cselect_b64 vcc, -1, 0")
        A(f"v_cndmask_b32 v{t2}, v{gm}, v{gm+2}, vcc"); A(f"v_cndmask_b32 v{t3}, v{gm+1}, v{gm+3}, vcc")
        A(f"v_and_b32 v{t2}, 0xffffff00, v{t2}"); A(f"v_and_b32 v{t3}, 0xffffff00, v{t3}")
        A(f"v_mov_b32 v{vWg}, v{t2}"); allred_groups(vWg, t0, "v_max_f32")
        A(f"v_sub_f32 v{t2}, v{t2}, v{vWg}"); A(f"v_mul_f32 v{t2}, {hex(LOG2E)}, v{t2}"); A(f"v_exp_f32 v{t2}, v{t2}")
        A(f"v_mul_f32 v{t3}, v{t2}, v{t3}"); allred_groups(t3, t0, "v_add_f32")
        A(f"v_rcp_f32 v{t3}, v{t3}"); A(f"v_mul_f32 v{vWg}, v{t2}, v{t3}")
    tail = ragged_dma(dW2, L_W2, 6, 3641, 864, wnt) + ragged_dma(dWO, L_WO, 5, 3641, 864, wnt)
    lastW = None
    while done[0] < 32:
        left = 32 - done[0]
        if left > 1:
            n = -(-(len(tail) - hold) // (left - 1))
            for _ in range(n):
                lastW = tail.pop(0)()
                if len(tail) == 5: lastW2 = lastW
        build(NQ - (built[0] - done[0]))
        pv()
        if done[0] == GM: weights()
    assert len(tail) == hold
    stamp()
    A(f"v_pk_mul_f32 {vr(oacc,2)}, {vr(oacc,2)}, {vr(vF,2)} op_sel_hi:[1,0]")
    A(f"v_pk_mul_f32 {vr(oacc+2,2)}, {vr(oacc+2,2)}, {vr(vF,2)} op_sel_hi:[1,0]")
    A(f"ds_write_b128 v{aOPw}, {vr(oacc,4)}")
    A("s_waitcnt lgkmcnt(0)")
    A("s_barrier")
    V.put(S, 32); V.put(aq, 4 * NQ); V.put(vM, 4)
    r16 = V.get(16, 4)
    A("s_mov_b64 exec, 0xffff")
    for k in range(4): A(f"ds_read_b128 {vr(r16+4*k,4)}, v{aOPr} offset:{L_OP + 1024*k}")
    A("s_waitcnt lgkmcnt(2)")
    for h in range(2): A(f"v_pk_add_f32 {vr(r16+2*h,2)}, {vr(r16+2*h,2)}, {vr(r16+4+2*h,2)}")
    A("s_waitcnt lgkmcnt(0)")
    for h in range(2): A(f"v_pk_add_f32 {vr(r16+8+2*h,2)}, {vr(r16+8+2*h,2)}, {vr(r16+12+2*h,2)}")
    for h in range(2): A(f"v_pk_add_f32 {vr(r16+2*h,2)}, {vr(r16+2*h,2)}, {vr(r16+8+2*h,2)}")
    tag(r16)
    pubstore("o", f"buffer_store_dwordx4 {vr(r16,4)}, v{aH2}, {W('os')}, 0 offen")
    A("s_mov_b64 exec, -1")
    stamp()
    while tail:
        lastW = tail.pop(0)()
        if len(tail) == 5: lastW2 = lastW
    hf = V.get(10, 4); w2f = V.get(36, 4); wof = V.get(24, 4); yacc = V.get(12, 4)
    W2D = L_W2 - L_WO
    for st in range(5): A(f"ds_read_b64 {vr(hf+2*st,2)}, v{aHr} offset:{st*32}")
    gatherO()
    A.wait_vm(lastW2, "lgkmcnt(0)", trust=True)
    A("s_barrier")
    stamp()
    gatherO()
    A(f"s_cmp_eq_u32 s{sW}, 3"); A("s_cbranch_scc1 L_noffn")
    for st in (4, 0, 1, 2, 3):
        for tl in range(3): A(f"ds_read_b64_tr_b16 {vr(w2f+12*tl+2*st,2)}, v{aW} offset:{W2D+st*4608+32*tl}")
    A("s_waitcnt lgkmcnt(12)")
    for tl in range(3): A(f"v_mfma_f32_16x16x16_bf16 {vr(yacc+4*tl,4)}, {vr(w2f+12*tl+8,2)}, {vr(hf+8,2)}, {vr(xc,4)}")
    for st in range(2):
        A(f"s_waitcnt lgkmcnt({6-6*st})")
        for tl in range(3): A(f"v_mfma_f32_16x16x32_bf16 {vr(yacc+4*tl,4)}, {vr(w2f+12*tl+4*st,4)}, {vr(hf+4*st,4)}, {vr(yacc+4*tl,4)}")
    A.label("L_noffn")
    gatherO()
    A.wait_vm(lastW)
    A("s_barrier")
    A(f"s_cmp_eq_u32 s{sW}, 3"); A("s_cbranch_scc1 L_nowo")
    for st in range(4):
        for tl in range(3): A(f"ds_read_b64_tr_b16 {vr(wof+8*tl+2*st,2)}, v{aW} offset:{st*4608+32*tl}")
    A.label("L_nowo")
    A("s_waitcnt vmcnt(1)")
    stamp()
    A.label("L_chk3")
    chk(go, "vcc")
    A("s_cbranch_vccnz L_slow3")
    A.label("L_ok3")
    spinrec(60)
    def slow3():
        A.label("L_slow3")
        A(f"s_sub_u32 s{sSpin}, s{sSpin}, 1"); A("s_cbranch_scc1 L_end")
        A("s_mov_b64 exec, vcc")
        n = len(A.vm); gatherO(); del A.vm[n:]
        A("s_mov_b64 exec, -1")
        A("s_waitcnt vmcnt(1)"); A("s_branch L_chk3")
    slow.append(slow3)
    stamp()
    gp = go; go = V.get(4, 4)
    untag(go, gp)
    A(f"v_pk_mul_f32 {vr(go,2)}, {vr(go,2)}, {vr(vWg,2)} op_sel_hi:[1,0]")
    A(f"v_pk_mul_f32 {vr(go+2,2)}, {vr(go+2,2)}, {vr(vWg,2)} op_sel_hi:[1,0]")
    tred(go)
    A(f"v_cvt_pk_bf16_f32 v{go}, v{go}, v{go}")
    A(f"ds_write_b16 v{aOw}, v{go}")
    if lateinit: initacc(); A("s_waitcnt vmcnt(0)")
    A("s_waitcnt lgkmcnt(0)")
    A("s_barrier")
    A(f"s_cmp_eq_u32 s{sW}, 3"); A("s_cbranch_scc1 L_fin")
    of = V.get(8, 4)
    A(f"ds_read_b128 {vr(of,4)}, v{aOr}"); A(f"ds_read_b128 {vr(of+4,4)}, v{aOr} offset:64")
    for st in range(2):
        A(f"s_waitcnt lgkmcnt({1-st})")
        for tl in range(3):
            A(f"v_mfma_f32_16x16x32_bf16 {vr(yacc+4*tl,4)}, {vr(wof+8*tl+4*st,4)}, {vr(of+4*st,4)}, {vr(yacc+4*tl,4)}")
    own = V.get(4, 4); ret = V.get(4, 4); cur = V.get()
    for r in range(4): A(f"v_cndmask_b32 v{own+r}, v{yacc+r}, 1.0, {sr(sU3,2)}")
    for r in range(4): A(f"v_cndmask_b32 v{own+r}, v{own+r}, v{yacc+4+r}, {sr(sU1,2)}")
    def atom(r): return A.vmem(f"buffer_atomic_add_f32 v{ret+r}, v{aAc}, {sr(dWS,4)}, 0 offen offset:{128*r} sc0 sc1")
    for r in range(4):
        A(f"v_cndmask_b32 v{ret+r}, v{own+r}, v{yacc+8+r}, {sr(sU2,2)}"); atom(r)
    stamp()
    for r in range(4): A(f"v_cndmask_b32 v{own+r}, v{own+r}, v{yacc+8+r}, {sr(sU2,2)}")
    sL = 4; sI = 12
    dc = V.get(4)
    A(f"s_add_u32 s{sT0}, s{sS0}, 63"); A(f"v_mov_b32 v{t2}, s{sT0}"); A(f"v_mov_b32 v{t1}, {hex(OOB)}")
    A(f"v_cndmask_b32 v{aOut}, v{aOut}, v{t1}, {sr(sU3,2)}")
    def arrivals(d, v): A(f"v_sub_u32_dpp v{d}, v{v}, v{t2} quad_perm:[3,3,3,3] row_mask:0xf bank_mask:0xf")
    A("s_waitcnt vmcnt(0)")
    A.label("L_chk4")
    for r in range(4): arrivals(dc + r, ret + r)
    A(f"v_pk_add_f32 {vr(of,2)}, {vr(ret,2)}, {vr(own,2)}")
    A(f"v_or3_b32 v{t0}, v{dc}, v{dc+1}, v{dc+2}"); A(f"v_or_b32 v{t0}, v{t0}, v{dc+3}")
    A(f"v_cmp_eq_u32 vcc, 0, v{t0}")
    A(f"v_pk_add_f32 {vr(of+2,2)}, {vr(ret+2,2)}, {vr(own+2,2)}")
    A(f"v_cvt_pk_bf16_f32 v{of+4}, v{of}, v{of+1}"); A(f"v_cvt_pk_bf16_f32 v{of+5}, v{of+2}, v{of+3}")
    A(f"v_cndmask_b32 v{of+6}, v{t1}, v{aOut}, vcc")
    A.vmem(f"buffer_store_dwordx2 {vr(of+4,2)}, v{of+6}, {sr(dOUT,4)}, 0 offen {ost}")
    stamp()
    A(f"v_min3_u32 v{t3}, v{dc}, v{dc+1}, v{dc+2}"); A(f"v_min_u32 v{t3}, v{t3}, v{dc+3}"); A(f"s_movk_i32 s{sT0}, -63")
    A(f"v_cmp_gt_u32 {sr(sI,2)}, s{sT0}, v{t3}")
    A(f"v_cmp_eq_u32 {sr(sL,2)}, 0, v{dc}")
    A(f"s_andn2_b64 {sr(sI,2)}, {sr(sI,2)}, vcc"); A("s_cbranch_scc1 L_mixed")
    A.label("L_mixedb")
    def mixed():
        A.label("L_mixed")
        n = len(A.vm)
        A(f"v_cndmask_b32 v{of+7}, v{t1}, v{aOut}, {sr(sI,2)}")
        for r in range(4):
            A(f"v_cmp_eq_u32 vcc, 0, v{dc+r}"); A(f"v_cndmask_b32 v{of+6}, v{t1}, v{of+7}, vcc")
            A.vmem(f"buffer_store_short{'_d16_hi' if r & 1 else ''} v{of+4+(r>>1)}, v{of+6}, {sr(dOUT,4)}, 0 offen offset:{2*r} {ost}")
        del A.vm[n:]
        for r in range(4): A(f"v_add_u32 v{dc+r}, 63, v{dc+r}")
        A(f"v_max3_u32 v{t3}, v{dc}, v{dc+1}, v{dc+2}"); A(f"v_max_u32 v{t3}, v{t3}, v{dc+3}")
        A(f"v_cmp_lt_u32 vcc, 63, v{t3}"); A("s_cbranch_vccz L_mixedb")
    slow.append(mixed)
    def slow4():
        A.label("L_slow4")
        A(f"s_sub_u32 s{sSpin}, s{sSpin}, 1"); A("s_cbranch_scc1 L_end")
        n = len(A.vm)
        for r in range(4):
            A(f"v_cmp_lt_u32 vcc, 63, v{dc+r}"); A("s_and_b64 exec, exec, vcc"); A(f"s_cbranch_scc0 L_rt{r}")
            A.vmem(f"buffer_load_dword v{cur}, v{aAc}, {sr(dWS,4)}, 0 offen offset:{128*r} sc1")
            A("s_waitcnt vmcnt(0)")
            arrivals(t0, cur); A(f"v_add_u32 v{t0}, 63, v{t0}")
            A(f"v_cmp_ge_u32 vcc, 63, v{t0}"); A("s_and_b64 exec, exec, vcc"); A(f"s_cbranch_scc0 L_rt{r}")
            A(f"v_mov_b32 v{ret+r}, v{own+r}"); atom(r)
            A("s_waitcnt vmcnt(0)")
            A.label(f"L_rt{r}")
            A("s_mov_b64 exec, -1")
        del A.vm[n:]
        A("s_branch L_chk4")
    slow.append(slow4)
    A(f"s_or_b32 s{sT0}, s{sS}, s{sW}"); A("s_cbranch_scc1 L_fin")
    A(f"s_bitcmp1_b32 s{sL}, 3"); A("s_cbranch_scc0 L_fin")
    A(f"v_mov_b32 v{t0}, s{sE}"); A(f"v_mov_b32 v{t1}, 0"); A("s_mov_b64 exec, 1")
    A.vmem(f"buffer_store_dword v{t0}, v{t1}, {sr(dWS,4)}, 0 offen")
    A("s_mov_b64 exec, -1")
    if probe is not None:
        A(f"s_sub_u32 s100, s100, s{sSt}"); A(f"s_mul_i32 s{sT0}, s100, {pmul}"); A(f"s_add_u32 s{sT0}, s{sT0}, 4000"); A(f"s_min_u32 s{sT0}, s{sT0}, 100000")
        A.label("L_probe")
        A("s_memrealtime s[100:101]"); A("s_waitcnt lgkmcnt(0)"); A(f"s_sub_u32 s100, s100, s{sSt}"); A(f"s_cmp_lt_u32 s100, s{sT0}"); A("s_cbranch_scc1 L_probe")
    A.label("L_fin")
    if stamps:
        A(f"s_mov_b32 s{dWS+2}, 0x800000")
        A("s_waitcnt vmcnt(0)")
        A(f"s_memrealtime s[{sSt}:{sSt+1}]"); A("s_waitcnt lgkmcnt(0)"); A(f"v_writelane_b32 v{vSt}, s{sSt}, 62")
        A(f"v_writelane_b32 v{vSt}, s{sSpin}, 61")
        A(f"s_getreg_b32 s{sSt}, hwreg(HW_REG_XCC_ID, 0, 4)"); A(f"v_writelane_b32 v{vSt}, s{sSt}, 63")
        A(f"s_lshl_b32 s{sT0}, s2, 10"); A(f"s_add_u32 s{sT0}, s{sT0}, {WS_ST}"); A(f"v_lshl_add_u32 v{t0}, v0, 2, s{sT0}")
        A.vmem(f"buffer_store_dword v{vSt}, v{t0}, {sr(dWS,4)}, 0 offen")
    A("s_endpgm")
    k = 0
    while k < len(slow):
        slow[k](); k += 1
    A.label("L_end")
    A("s_endpgm")
    acc_off = (V.top + 3) // 4 * 4
    A.raw('.section .rodata,"a"'); A.raw(".p2align 6"); A.raw(f".amdhsa_kernel {NAME}_kernel")
    A.raw(f"  .amdhsa_next_free_vgpr {acc_off + 128}"); A.raw("  .amdhsa_next_free_sgpr 102"); A.raw(f"  .amdhsa_accum_offset {acc_off}")
    A.raw("  .amdhsa_group_segment_fixed_size 0"); A.raw("  .amdhsa_kernarg_size 88"); A.raw("  .amdhsa_user_sgpr_count 2")
    A.raw("  .amdhsa_user_sgpr_kernarg_segment_ptr 1"); A.raw("  .amdhsa_system_sgpr_workgroup_id_x 1"); A.raw(".end_amdhsa_kernel")
    return A.text(), nst[0]

if __name__ == "__main__":
    kw = eval("dict(" + (sys.argv[2] if len(sys.argv) > 2 else "") + ")")
    s, n = gen(**kw)
    open(sys.argv[1], "w").write(s)
    print("stamps", n)
```

```python
import sys, struct
from asmlib import *
NAME = "parallel_sum__sliding_block_cached__dense_activation_silu__decode"

def f2u(x): return struct.unpack("<I", struct.pack("<f", x))[0]
LOG2E = f2u(1.4426950408889634); SCALE = f2u(128 ** -0.5)
OOB = 0x40000000
WS_BOX, BOX = 0x1000, 2304
MLO = 2176
WS_AC = 0x100000
WS_ST = 0x400000
L_WQ = 131072 - 20480; L_WO = L_WQ
L_XN = 131072; L_Q = L_XN + 1152; L_H = L_Q + 512; L_ML = L_H + 640; L_O = L_ML + 128; L_FL = L_O + 512
L_W1 = 134144; L_W2 = L_W1; L_OP = 0
LDS_BYTES = L_W1 + 24576
HEADER = open("cdna_kernels/" + NAME + ".s.ref").read().split("; Override launch")[0]

DOC = """;
"""

def gen(D=6, DV=7, DW=8, TH=300, GK=30, GM=30, BU=3, hold=3, pp=2, sb=14, rc=(1, 0, 0, 0, 3, 0, 0, 2),
        stamps=False, sel=None, scramble=False, force1=False, lateinit=False, spin=None, rtab=False):
    if spin is None: spin = 20000 if stamps else 1 << 21
    A = Asm(); V = VAlloc(1, 256); A.th = TH
    def C(t): A.raw("    ; " + t)
    A.raw(HEADER.rstrip("\n"))
    A.raw(f"; @launch grid=(256,1,1) block=(256,1,1) lds={LDS_BYTES}")
    A.raw(DOC.rstrip("\n"))
    A.raw('.amdgcn_target "amdgcn-amd-amdhsa--gfx950"')
    A.raw(".text"); A.raw(f".globl {NAME}_kernel"); A.raw(".p2align 8"); A.raw(f".type {NAME}_kernel,@function")
    A.label(f"{NAME}_kernel")
    sW = 3
    pX, pK, pV, pWQ, pWO, pW1, pW2, pOUT, pWS = 4, 6, 8, 10, 12, 16, 18, 20, 24
    sMode, sIt, sPC = 22, 23, 26
    dX, dK, dV, dWQ, dW1, dW2, dWO, dWS, dOUT = 28, 32, 36, 40, 44, 48, 52, 56, 60
    sG, sS, sB, sHKV, sBOX, sRot, sSo, sE, sT0, sT1, sT2, sS0 = 64, 65, 66, 67, 68, 69, 70, 71, 72, 73, 74, 75
    sSel, sSelA, sSelB, sU1, sU2, sSpin, sC, sM, sP, sL, sU3, sSt = 76, 80, 81, 82, 84, 86, 87, 88, 90, 94, 96, 98
    WS = sr(dWS, 4)
    slow = []
    vSt = V.get() if stamps else None
    nst = [1]; cnt = [0]
    class quiet:
        def __enter__(s): s.a = A.auto; A.auto = None
        def __exit__(s, *a): A.auto = s.a
    class uncounted:
        def __enter__(s): s.n = len(A.vm)
        def __exit__(s, *a): del A.vm[s.n:]
    def stamp():
        cnt[0] += 1
        if stamps is True and (sel is None or cnt[0] in sel):
            with quiet():
                A(f"s_memrealtime s[{sSt}:{sSt+1}]"); A("s_waitcnt lgkmcnt(0)"); A(f"v_writelane_b32 v{vSt}, s{sSt}, {nst[0]}"); nst[0] += 1
    def spinrec(k):
        if stamps: A(f"v_writelane_b32 v{vSt}, s{sSpin}, {k}")
    def srd(d, p, off_s, nrec):
        if off_s is None: A(f"s_mov_b32 s{d}, s{p}"); A(f"s_mov_b32 s{d+1}, s{p+1}")
        else: A(f"s_add_u32 s{d}, s{p}, s{off_s}"); A(f"s_addc_u32 s{d+1}, s{p+1}, 0")
        A(f"s_mov_b32 s{d+2}, {nrec}"); A(f"s_mov_b32 s{d+3}, 0x20000")
    def bounded(): A(f"s_sub_u32 s{sSpin}, s{sSpin}, 1"); A("s_cbranch_scc1 L_end")

    def initacc():
        C("workgroup (g < 48, s) initialises accumulator line 48 s + g")
        with quiet():
            i4 = V.get(4, 4)
            for r in range(3): A(f"v_mov_b32 v{i4+r}, 0")
            A(f"v_mov_b32 v{i4+3}, s{sS0}")
            A(f"s_mul_i32 s{sT0}, s{sS}, 48"); A(f"s_add_u32 s{sT0}, s{sT0}, s{sG}"); A(f"s_lshl_b32 s{sT0}, s{sT0}, 7"); A(f"s_add_u32 s{sT0}, s{sT0}, {WS_AC}")
            A(f"s_cmp_lt_u32 s{sG}, 48"); A(f"s_cselect_b32 s{sT1}, 4, 0")
            A(f"v_lshl_add_u32 v{t0}, v0, 4, s{sT0}"); A(f"v_cmp_gt_u32 vcc, s{sT1}, v0"); A(f"v_mov_b32 v{t1}, {hex(OOB)}")
            A(f"v_cndmask_b32 v{t0}, v{t1}, v{t0}, vcc")
            A.vmem(f"buffer_store_dwordx4 {vr(i4,4)}, v{t0}, {WS}, 0 offen sc1")
            V.put(i4, 4)
    vJ = V.get(); vPa = V.get(2); vL = V.get(); t0 = V.get(); t1 = V.get(); t2 = V.get(); t3 = V.get(); vX = V.get(); vWq = V.get()
    A("s_load_dwordx16 s[4:19], s[0:1], 0")
    if stamps: A(f"s_memrealtime s[{sSt}:{sSt+1}]")
    A("s_cmpk_ge_u32 s2, 256"); A("s_cbranch_scc1 L_end")
    A(f"v_readfirstlane_b32 s{sM}, v0")
    if scramble:
        A(f"s_lshr_b32 s{sG}, s2, 2"); A(f"s_and_b32 s{sS}, s2, 3")
    else:
        A(f"s_and_b32 s{sT0}, s2, 7"); A(f"s_bfe_u32 s{sT1}, s2, 0x30003"); A(f"s_lshl3_add_u32 s{sG}, s{sT0}, s{sT1}")
        A(f"s_lshr_b32 s{sS}, s2, 6")
    C("pull this kernel's text into L2, one dword per 64 bytes")
    A(f"s_getpc_b64 s[{sPC}:{sPC+1}]")
    A.label("L_pc")
    A(f"v_lshlrev_b32 v{vPa}, 6, v0"); A(f"v_min_u32 v{vPa}, L_end-L_pc, v{vPa}"); A(f"v_mov_b32 v{vPa+1}, s{sPC+1}")
    A(f"v_add_co_u32 v{vPa}, vcc, s{sPC}, v{vPa}")
    A(f"v_and_b32 v{vL}, 63, v0"); A(f"s_lshr_b32 s{sW}, s{sM}, 6")
    A(f"v_addc_co_u32 v{vPa+1}, vcc, 0, v{vPa+1}, vcc")
    A.vmem(f"global_load_dword v{vJ}, {vr(vPa,2)}, off")
    C("wq tile: rows 144 s.., columns 64 g.. -> LDS")
    A(f"v_lshrrev_b32 v{t0}, 3, v0"); A(f"v_and_b32 v{t1}, 7, v0"); A(f"v_lshlrev_b32 v{t1}, 4, v{t1}")
    A(f"v_lshl_or_b32 v{vWq}, v{t0}, 13, v{t1}")
    A(f"s_lshl4_add_u32 m0, s{sM}, {L_WQ}")
    A(f"s_mul_i32 s{sT1}, s{sS}, {144*8192}"); A(f"s_lshl_b32 s{sT2}, s{sG}, 7"); A(f"s_add_u32 s{sT1}, s{sT1}, s{sT2}")
    A(f"s_mov_b32 s{dWQ+2}, {143*8192+128}"); A(f"s_mov_b32 s{dWQ+3}, 0x20000"); A(f"s_lshl_b32 s{sC}, s{dWQ+3}, 1")
    A("s_waitcnt lgkmcnt(0)")
    A(f"s_add_u32 s{dWQ}, s{pWQ}, s{sT1}"); A(f"s_addc_u32 s{dWQ+1}, s{pWQ+1}, 0")
    for r in range(5):
        if r: A("s_addk_i32 m0, 0x1000"); A(f"v_add_u32 v{vWq}, s{sC}, v{vWq}")
        A.vmem(f"buffer_load_dwordx4 v{vWq}, {sr(dWQ,4)}, 0 offen nt lds")
    A("s_load_dwordx2 s[20:21], s[0:1], 64"); A("s_load_dwordx2 s[24:25], s[0:1], 80")
    if rtab:
        A(f"s_lshl_b32 s{sT0}, s2, 2"); A(f"s_load_dword s100, s[14:15], s{sT0}")
    if stamps: A(f"v_mov_b32 v{vSt}, 0"); A(f"v_writelane_b32 v{vSt}, s{sSt}, 0")
    C("x row of batch w")
    A(f"s_mul_i32 s{sT0}, s{sM}, 18"); A(f"s_lshl_b32 s{sM}, s{sM}, 4")
    A(f"v_lshlrev_b32 v{vX}, 5, v{vL}")
    srd(dX, pX, sT0, 1152)
    xr = V.get(8, 4)
    A.vmem(f"buffer_load_dwordx4 {vr(xr,4)}, v{vX}, {sr(dX,4)}, 0 offen")
    x1 = A.vmem(f"buffer_load_dwordx4 {vr(xr+4,4)}, v{vX}, {sr(dX,4)}, 0 offen offset:16")
    A(f"s_mul_i32 s{sT1}, s{sS}, {144*9216}"); A(f"s_mul_i32 s{sT2}, s{sG}, 144"); A(f"s_add_u32 s{sT1}, s{sT1}, s{sT2}")
    srd(dW1, pW1, sT1, 143 * 9216 + 144)
    def ragged(d, lbase, rounds, magic, rowpad):
        vP16 = V.get(); vMul = V.get(); vo = V.get()
        def mk(r):
            def f():
                with quiet():
                    if r == 0: A(f"v_lshlrev_b32 v{vP16}, 4, v0"); A(f"v_mul_u32_u24 v{vMul}, {magic}, v0")
                    else: A(f"v_add_u32 v{vP16}, 0x1000, v{vP16}"); A(f"v_add_u32 v{vMul}, {magic*256}, v{vMul}")
                    A(f"s_movk_i32 s{sC}, {rowpad}")
                    A(f"v_lshrrev_b32 v{vo}, 16, v{vMul}")
                    A(f"s_add_u32 m0, s{sM}, {lbase + r*4096}")
                    A(f"v_mad_u32_u24 v{vo}, v{vo}, s{sC}, v{vP16}")
                    q = A.vmem(f"buffer_load_dwordx4 v{vo}, {sr(d,4)}, 0 offen nt lds")
                if r == rounds - 1: V.put(vP16); V.put(vMul); V.put(vo)
                return q
            return f
        return [mk(r) for r in range(rounds)]
    w1q = ragged(dW1, L_W1, 6, 7282, 9072); lastA = [None]
    V.put(vWq); V.put(vX); V.put(vPa, 2)
    stamp()
    C("K / V window of (batch, kv head); the four splits interleave in 16 KB pieces")
    GAP = 3 << sb; VAL = 0x7f000 & ~GAP
    A(f"s_and_b32 s{sB}, s{sG}, 3"); A(f"s_lshr_b32 s{sHKV}, s{sG}, 2")
    A(f"s_lshl4_add_u32 s{sT0}, s{sB}, s{sHKV}"); A(f"s_lshl_b32 s{sT0}, s{sT0}, 21")
    A(f"s_lshl_b32 s{sT1}, s{sS}, {sb}"); A(f"s_add_u32 s{sT0}, s{sT0}, s{sT1}"); A(f"s_add_u32 s{sT0}, s{sT0}, {6144*256}")
    srd(dK, pK, sT0, VAL + 4096); srd(dV, pV, sT0, VAL + 4096)
    A(f"s_lshl2_add_u32 s{sBOX}, s{sG}, s{sS}")
    C("start block of the walk over this workgroup's 32 blocks of 16 keys (spreads the load over the memory channels)")
    A(f"s_mov_b32 s{sRot}, 0")
    for w, bit in zip(rc, (5, 6, 7, 4, 2, 3, 0, 1)):
        if w: A(f"s_bitcmp1_b32 s{sBOX}, {bit}"); A(f"s_cselect_b32 s{sT1}, {w}, 0"); A(f"s_add_u32 s{sRot}, s{sRot}, s{sT1}")
    if rtab: A("s_waitcnt lgkmcnt(0)"); A(f"s_mov_b32 s{sRot}, s100")
    A(f"s_lshl_b32 s{sRot}, s{sRot}, 12"); A(f"s_and_b32 s{sRot}, s{sRot}, 0x1f000")
    A(f"s_and_b32 s{sT1}, s{sRot}, {hex(0x1f000 & ~((1 << sb) - 1))}"); A(f"s_mul_i32 s{sT1}, s{sT1}, 3"); A(f"s_add_u32 s{sRot}, s{sRot}, s{sT1}")
    vG = V.get(); vI = V.get(); vKo = V.get(4); vVo = V.get()
    A(f"v_lshrrev_b32 v{vG}, 4, v{vL}"); A(f"v_and_b32 v{vI}, 15, v{vL}")
    A(f"v_lshlrev_b32 v{vVo}, 4, v0")
    A(f"v_lshlrev_b32 v{t0}, 6, v{vG}"); A(f"v_xor_b32 v{vKo}, v{vVo}, v{t0}")
    for i in range(1, 4): A(f"v_xor_b32 v{vKo+i}, {i*16}, v{vKo}")

    kseq = []; vseq = []; bump = [0]; lim = [0]
    def pace(d): A(f"s_waitcnt vmcnt({d-1+bump[0]})")
    def so(j):
        if j == 0: A(f"s_mov_b32 s{sSo}, s{sRot}")
        else: A(f"s_add_u32 s{sSo}, s{sSo}, {hex(GAP + 0x1000)}"); A(f"s_and_b32 s{sSo}, s{sSo}, {hex(VAL)}")
    def pos(): return len(kseq) + len(vseq)
    def step(n=1):
        for _ in range(n):
            if len(kseq) < 32:
                j = len(kseq)
                A(f"s_add_u32 m0, s{sM}, {j*4096}"); so(j); pace(D)
                kseq.append(A.vmem(f"buffer_load_dwordx4 v{vKo + (j & 3)}, {sr(dK,4)}, s{sSo} offen nt lds"))
                if w1q: pace(D); lastA[0] = w1q.pop(0)()
            else:
                j = len(vseq)
                so(j); pace(DV)
                vseq.append(A.vmem(f"buffer_load_dwordx4 {ar(4*j,4)}, v{vVo}, {sr(dV,4)}, s{sSo} offen nt"))
    def auto():
        if pos() < lim[0]: step(1)
    def allred_rows(v, t, op):
        A(f"v_mov_b32 v{t}, v{v}"); A(f"v_permlane16_swap_b32 v{v}, v{t}"); A(f"{op} v{v}, v{v}, v{t}")
        A(f"v_mov_b32 v{t}, v{v}"); A(f"v_permlane32_swap_b32 v{v}, v{t}"); A(f"{op} v{v}, v{v}, v{t}")
    def allred64(v, t):
        for k in (8, 4, 2, 1): A(f"v_add_f32_dpp v{v}, v{v}, v{v} row_ror:{k} row_mask:0xf bank_mask:0xf")
        allred_rows(v, t, "v_add_f32")
    def unpack(dst, src, n):
        for k in range(n): A(f"v_and_b32 v{dst+2*k+1}, 0xffff0000, v{src+k}"); A(f"v_lshlrev_b32 v{dst+2*k}, 16, v{src+k}")
    def pk_sub(d, a, b): A(f"v_pk_add_f32 {vr(d,2)}, {vr(a,2)}, {vr(b,2)} op_sel_hi:[1,0] neg_lo:[0,1] neg_hi:[0,1]")
    def pk_scale(d, a, b): A(f"v_pk_mul_f32 {vr(d,2)}, {vr(a,2)}, {vr(b,2)} op_sel_hi:[1,0]")

    bump[0] = 3; step(1)
    A("s_waitcnt lgkmcnt(0)")
    A(f"s_load_dword s{sE}, s[{pWS}:{pWS+1}], 0")
    srd(dWS, pWS, None, 0x800000 if stamps else WS_AC + 192 * 128)
    A(f"s_mov_b32 s{sMode}, {1 if force1 else 0}"); A(f"s_mov_b32 s{sIt}, 0")
    step(1); bump[0] = 0
    C("layer norm of batch w, lanes 0..35 hold 16 values each; bf16 roundings as in the reference")
    A.wait_vm(x1)
    stamp()
    A.cyc = 0; lim[0] = D + 6; A.auto = auto
    xf = V.get(16); d16 = V.get(16); p2 = V.get(2); pm = V.get(2)
    unpack(xf, xr, 8)
    A(f"v_pk_add_f32 {vr(p2,2)}, {vr(xf,2)}, {vr(xf+2,2)}")
    for k in range(2, 8): A(f"v_pk_add_f32 {vr(p2,2)}, {vr(p2,2)}, {vr(xf+2*k,2)}")
    A(f"v_add_f32 v{pm}, v{p2}, v{p2+1}")
    allred64(pm, t0)
    A(f"v_mul_f32 v{pm}, {hex(f2u(1/576))}, v{pm}")
    for k in range(8): pk_sub(d16 + 2 * k, xf + 2 * k, pm)
    A(f"v_pk_mul_f32 {vr(p2,2)}, {vr(d16,2)}, {vr(d16,2)}")
    for k in range(1, 8): A(f"v_pk_fma_f32 {vr(p2,2)}, {vr(d16+2*k,2)}, {vr(d16+2*k,2)}, {vr(p2,2)}")
    A(f"v_cmp_gt_u32 vcc, 36, v{vL}"); A(f"v_add_f32 v{t1}, v{p2}, v{p2+1}"); A(f"v_cndmask_b32 v{t1}, 0, v{t1}, vcc")
    allred64(t1, t0)
    A(f"v_mul_f32 v{t1}, {hex(f2u(1/576))}, v{t1}")
    A(f"v_cvt_pk_bf16_f32 v{t0}, v{pm}, v{t1}")
    A(f"v_lshlrev_b32 v{pm}, 16, v{t0}"); A(f"v_and_b32 v{t1}, 0xffff0000, v{t0}")
    A(f"v_add_f32 v{t1}, {hex(f2u(1e-5))}, v{t1}")
    A(f"v_cvt_pk_bf16_f32 v{t1}, v{t1}, v{t1}"); A(f"v_lshlrev_b32 v{t1}, 16, v{t1}")
    A(f"v_sqrt_f32 v{t1}, v{t1}")
    A(f"v_cvt_pk_bf16_f32 v{t1}, v{t1}, v{t1}"); A(f"v_lshlrev_b32 v{t1}, 16, v{t1}")
    A(f"v_rcp_f32 v{p2}, v{t1}")
    for k in range(8): pk_sub(d16 + 2 * k, xf + 2 * k, pm)
    for k in range(8): A(f"v_cvt_pk_bf16_f32 v{xr+k}, v{d16+2*k}, v{d16+2*k+1}")
    unpack(xf, xr, 8)
    for k in range(8): pk_scale(xf + 2 * k, xf + 2 * k, p2)
    for k in range(8): A(f"v_cvt_pk_bf16_f32 v{xr+k}, v{xf+2*k}, v{xf+2*k+1}")
    A(f"s_mul_i32 s{sT0}, s{sS}, 9"); A(f"s_sub_u32 s{sT1}, s{sW}, s{sS}"); A(f"s_mul_i32 s{sT1}, s{sT1}, 288"); A(f"s_add_u32 s{sT1}, s{sT1}, {L_XN}")
    A(f"v_lshl_add_u32 v{t0}, v{vL}, 5, s{sT1}")
    with quiet():
        A(f"s_lshl_b64 exec, 0x1ff, s{sT0}")
        A(f"ds_write_b128 v{t0}, {vr(xr,4)}"); A(f"ds_write_b128 v{t0}, {vr(xr+4,4)} offset:16")
        A("s_mov_b64 exec, -1")
    V.put(xf, 16); V.put(d16, 16); V.put(p2, 2); V.put(pm, 2)
    A("s_waitcnt lgkmcnt(0)")
    V.put(xr, 8)
    C("tags of this launch; first value of the arrival counts")
    vT1 = V.get(); vT2 = V.get()
    A(f"s_add_u32 s{sE}, s{sE}, 1"); A(f"s_mul_i32 s{sT0}, s{sE}, 0x9E3779B1")
    A(f"s_getreg_b32 s{sT1}, hwreg(HW_REG_XCC_ID, 0, 4)"); A(f"s_lshl_b32 s{sT1}, s{sT1}, 28")
    A(f"s_add_u32 s{sT2}, s{sT0}, 0x4a3c5e12"); A(f"s_xor_b32 s{sT0}, s{sT0}, s{sT1}")
    A(f"v_mov_b32 v{vT1}, s{sT0}"); A(f"v_mov_b32 v{vT2}, s{sT2}")
    A(f"s_lshl_b32 s{sS0}, s{sE}, 8"); A(f"s_and_b32 s{sS0}, s{sS0}, 0x7fff00"); A(f"s_or_b32 s{sS0}, s{sS0}, 0x4b000000")
    if not lateinit: initacc()
    for r in range(4): A(f"s_mov_b32 s{sSel+r}, {hex(0x07060500 + r)}")
    A(f"s_mov_b32 s{sSelA}, 0x0c0c0400"); A(f"s_mov_b32 s{sSelB}, 0x04000c0c")
    def lanemask(s_, m): A(f"s_mov_b32 s{s_}, {hex(m)}"); A(f"s_mov_b32 s{s_+1}, {hex(m)}")
    lanemask(sU1, 0x00f000f0); lanemask(sU2, 0x0f000f00)
    A(f"s_mov_b32 s{sSpin}, {spin}")
    def tag(v, vT):
        for r in range(4): A(f"v_perm_b32 v{v+r}, v{v+r}, v{vT}, s{sSel+r}")
    def chk(v, dst, vT):
        A(f"v_perm_b32 v{t0}, v{v+1}, v{v}, s{sSelA}"); A(f"v_perm_b32 v{t1}, v{v+3}, v{v+2}, s{sSelB}")
        A(f"v_or_b32 v{t0}, v{t0}, v{t1}"); A(f"v_cmp_ne_u32 {dst}, v{t0}, v{vT}")
    def untag(d, v):
        for r in range(4): A(f"v_and_b32 v{d+r}, 0xffffff00, v{v+r}")
    def tred(v):
        A(f"v_permlane32_swap_b32 v{v}, v{v+2}"); A(f"v_permlane32_swap_b32 v{v+1}, v{v+3}")
        A(f"v_add_f32 v{v}, v{v}, v{v+2}"); A(f"v_add_f32 v{v+1}, v{v+1}, v{v+3}")
        A(f"v_permlane16_swap_b32 v{v}, v{v+1}"); A(f"v_add_f32 v{v}, v{v}, v{v+1}")
    C("addresses of the projection stage")
    vB3 = V.get(); vQ4 = V.get()
    A(f"v_and_b32 v{vB3}, 3, v{vL}"); A(f"v_lshrrev_b32 v{vQ4}, 2, v{vL}")
    aXb = V.get(); aWq = V.get(); aW1 = V.get(); aW1h = V.get(); aH1 = V.get()
    A(f"v_mul_u32_u24 v{aXb}, 288, v{vB3}"); A(f"v_lshl_add_u32 v{aXb}, v{vG}, 3, v{aXb}"); A(f"v_add_u32 v{aXb}, {L_XN}, v{aXb}")
    A(f"s_lshl_b32 s{sT0}, s{sW}, 5"); A(f"v_lshlrev_b32 v{t2}, 3, v{vB3}")
    A(f"v_lshl_add_u32 v{aWq}, v{vQ4}, 7, v{t2}"); A(f"s_add_u32 s{sT1}, s{sT0}, {L_WQ}"); A(f"v_add_u32 v{aWq}, s{sT1}, v{aWq}")
    A(f"v_mul_u32_u24 v{aW1h}, 144, v{vQ4}"); A(f"v_add_u32 v{aW1h}, v{aW1h}, v{t2}"); A(f"v_add_u32 v{aW1h}, {L_W1}, v{aW1h}")
    A(f"v_add_u32 v{aW1}, s{sT0}, v{aW1h}")
    A(f"s_lshl_b32 s{sT0}, s{sW}, 6"); A(f"v_lshlrev_b32 v{t2}, 4, v{vG}")
    A(f"v_lshl_add_u32 v{aH1}, v{vB3}, 8, v{t2}"); A(f"v_add_u32 v{aH1}, s{sT0}, v{aH1}")
    A(f"v_mul_u32_u24 v{t3}, 288, v{vB3}"); A(f"v_add_u32 v{t3}, v{t3}, v{t2}")
    A(f"s_add_u32 s{sT0}, s{sT0}, 1024"); A(f"v_add_u32 v{t0}, s{sT0}, v{t3}")
    A(f"v_cndmask_b32 v{aH1}, v{aH1}, v{t0}, {sr(sU1,2)}")
    A(f"v_add_u32 v{t0}, {1024+256}, v{t3}")
    A(f"v_cndmask_b32 v{aH1}, v{aH1}, v{t0}, {sr(sU2,2)}")
    A(f"s_lshl_b32 s{sT0}, 0x01000100, s{sW}"); A(f"s_or_b32 vcc_lo, s{sT0}, 0x00ff00ff"); A("s_mov_b32 vcc_hi, 0x00ff00ff")
    A(f"s_mul_i32 s{sT0}, s{sBOX}, {BOX}"); A(f"s_add_u32 s{sT0}, s{sT0}, {WS_BOX}")
    A(f"v_add_u32 v{aH1}, s{sT0}, v{aH1}"); A(f"v_mov_b32 v{t0}, {hex(OOB)}"); A(f"v_cndmask_b32 v{aH1}, v{t0}, v{aH1}, vcc")
    while len(kseq) < D + 6: step(1)
    assert not w1q
    A.wait_vm(lastA[0])
    C("B1: wq / w1 tiles and xn are in LDS")
    A("s_barrier")
    step(1); A.cyc = 0; lim[0] = 26
    stamp()
    fr = [V.get(24), V.get(24)]; acc = V.get(12, 4)
    def batchA(bi):
        f = fr[bi & 1]
        for k in range(3):
            st = 3 * bi + k
            A(f"ds_read_b64 {vr(f+8*k,2)}, v{aXb} offset:{st*32}")
            A(f"ds_read_b64_tr_b16 {vr(f+8*k+2,2)}, v{aWq} offset:{st*2048}")
            A(f"ds_read_b64_tr_b16 {vr(f+8*k+4,2)}, v{aW1} offset:{st*2304}")
            A(f"ds_read_b64_tr_b16 {vr(f+8*k+6,2)}, v{aW1h} offset:{st*2304+128}")
    def mfmaA(bi):
        f = fr[bi & 1]
        for k in range(3):
            for tl in range(3):
                c = "0" if (bi == 0 and k == 0) else vr(acc+4*tl, 4)
                A(f"v_mfma_f32_16x16x16_bf16 {vr(acc+4*tl,4)}, {vr(f+8*k+2+2*tl,2)}, {vr(f+8*k,2)}, {c}")
    batchA(0); A("s_waitcnt lgkmcnt(0)")
    batchA(1); mfmaA(0); A("s_waitcnt lgkmcnt(0)")
    A("s_nop 7")
    batchA(2); mfmaA(1); A("s_waitcnt lgkmcnt(0)")
    mfmaA(2)
    o4 = V.get(4, 4)
    for r in range(4): A(f"v_cndmask_b32 v{o4+r}, v{acc+r}, v{acc+4+r}, {sr(sU1,2)}")
    for r in range(4): A(f"v_cndmask_b32 v{o4+r}, v{o4+r}, v{acc+8+r}, {sr(sU2,2)}")
    tag(o4, vT1)
    A.vmem(f"buffer_store_dwordx4 {vr(o4,4)}, v{aH1}, {WS}, 0 offen")
    stamp()
    V.put(fr[0], 24); V.put(fr[1], 24); V.put(acc, 12)
    for r in (aXb, aWq, aW1, aW1h): V.put(r)
    step(1)
    assert len(kseq) <= 27
    C("B1b: the wq staging area may be overwritten by K")
    A("s_barrier")
    V.put(aH1); V.put(o4, 4)
    lim[0] = GK
    C("addresses of everything later, in the shadow of the K stream")
    aGq = V.get(); aGh = V.get(); aGh2 = V.get()
    A(f"v_mul_u32_u24 v{t2}, {BOX}, v{vG}"); A(f"v_lshl_add_u32 v{t2}, v{vI}, 4, v{t2}")
    A(f"s_lshl2_add_u32 s{sT0}, s{sHKV}, s{sW}"); A(f"s_mul_i32 s{sT0}, s{sT0}, {4*BOX}"); A(f"s_lshl_b32 s{sT1}, s{sB}, 8"); A(f"s_add_u32 s{sT0}, s{sT0}, s{sT1}"); A(f"s_add_u32 s{sT0}, s{sT0}, {WS_BOX}")
    A(f"v_add_u32 v{aGq}, s{sT0}, v{t2}")
    A(f"s_mul_i32 s{sT0}, s{sG}, {4*BOX}"); A(f"s_mul_i32 s{sT1}, s{sW}, 288"); A(f"s_add_u32 s{sT0}, s{sT0}, s{sT1}"); A(f"s_add_u32 s{sT0}, s{sT0}, {WS_BOX+1024}")
    A(f"v_add_u32 v{aGh}, s{sT0}, v{t2}")
    A(f"v_cmp_gt_u32 vcc, 2, v{vI}"); A(f"v_add_u32 v{aGh2}, 256, v{aGh}"); A(f"v_mov_b32 v{t0}, {hex(OOB)}")
    A(f"v_cndmask_b32 v{aGh2}, v{t0}, v{aGh2}, vcc")
    vM = V.get(4)
    A(f"v_and_b32 v{t0}, 1, v{vL}"); A(f"v_lshlrev_b32 v{t0}, 4, v{t0}"); A(f"v_mov_b32 v{t1}, 0xffff"); A(f"v_lshlrev_b32 v{t1}, v{t0}, v{t1}")
    A(f"v_bfe_u32 v{t0}, v{vL}, 1, 2")
    for k in range(4): A(f"v_cmp_eq_u32 vcc, {k}, v{t0}"); A(f"v_cndmask_b32 v{vM+k}, 0, v{t1}, vcc")
    aQw = V.get(); aHw = V.get(); aQr = V.get(); aKr = V.get(4)
    A(f"v_lshl_add_u32 v{t0}, v{vI}, 2, v{vG}"); A(f"v_lshlrev_b32 v{t0}, 1, v{t0}")
    A(f"s_lshl_b32 s{sT0}, s{sW}, 7"); A(f"s_add_u32 s{sT0}, s{sT0}, {L_Q}"); A(f"v_add_u32 v{aQw}, s{sT0}, v{t0}")
    A(f"s_mul_i32 s{sT0}, s{sW}, 160"); A(f"s_add_u32 s{sT0}, s{sT0}, {L_H}"); A(f"v_add_u32 v{aHw}, s{sT0}, v{t0}")
    A(f"v_lshrrev_b32 v{t0}, 3, v{vI}"); A(f"v_lshlrev_b32 v{t0}, 8, v{t0}"); A(f"v_lshl_add_u32 v{aQr}, v{vG}, 4, v{t0}"); A(f"v_add_u32 v{aQr}, {L_Q}, v{aQr}")
    A(f"v_xor_b32 v{t0}, v{vG}, v{vI}"); A(f"v_lshlrev_b32 v{t0}, 4, v{t0}")
    A(f"v_lshl_add_u32 v{t0}, v{vB3}, 12, v{t0}"); A(f"v_lshrrev_b32 v{t1}, 2, v{vI}"); A(f"v_lshl_add_u32 v{t0}, v{t1}, 8, v{t0}")
    A(f"v_add_u32 v{aKr}, s{sM}, v{t0}")
    for k in range(1, 4): A(f"v_xor_b32 v{aKr+k}, {k*64}, v{aKr}")
    aOPw = V.get(); aOPr = V.get(); aH2 = V.get(); aG2 = V.get(); aGm = V.get(); aOw = V.get(); aOr = V.get(); aHr = V.get()
    aW = V.get(); aAc = V.get(); aOut = V.get(); xr2 = V.get(2)
    A(f"v_lshrrev_b32 v{t0}, 1, v{vG}"); A(f"v_lshlrev_b32 v{t0}, 9, v{t0}"); A(f"v_lshl_add_u32 v{t0}, v{vI}, 5, v{t0}")
    A(f"v_and_b32 v{t1}, 1, v{vG}"); A(f"v_lshl_add_u32 v{t0}, v{t1}, 4, v{t0}"); A(f"v_add_u32 v{aOPw}, s{sM}, v{t0}")
    A(f"s_lshl_b32 s{sT1}, s{sW}, 8"); A(f"v_lshl_add_u32 v{aOPr}, v{vI}, 4, s{sT1}")
    A(f"s_mul_i32 s{sT0}, s{sBOX}, {BOX}"); A(f"s_add_u32 s{sT0}, s{sT0}, {WS_BOX}"); A(f"v_add_u32 v{aH2}, s{sT0}, v{aOPr}")
    A(f"v_and_b32 v{t0}, 12, v{vL}"); A(f"v_add_u32 v{t0}, v{t0}, v{vG}"); A(f"v_mul_u32_u24 v{t0}, {BOX}, v{t0}")
    A(f"s_mul_i32 s{sT0}, s{sHKV}, {16*BOX}"); A(f"s_add_u32 s{sT0}, s{sT0}, {WS_BOX}")
    A(f"s_add_u32 s{sT1}, s{sT0}, {MLO}"); A(f"v_add_u32 v{aGm}, s{sT1}, v{t0}")
    A(f"s_lshl2_add_u32 s{sT1}, s{sB}, s{sW}"); A(f"s_lshl_b32 s{sT1}, s{sT1}, 6"); A(f"s_add_u32 s{sT0}, s{sT0}, s{sT1}")
    A(f"v_lshl_add_u32 v{t0}, v{vB3}, 4, v{t0}"); A(f"v_add_u32 v{aG2}, s{sT0}, v{t0}")
    A(f"s_lshr_b32 s{sT0}, s{sW}, 1"); A(f"s_lshl_b32 s{sT0}, s{sT0}, 6"); A(f"s_and_b32 s{sT1}, s{sW}, 1"); A(f"s_lshl3_add_u32 s{sT0}, s{sT1}, s{sT0}"); A(f"s_add_u32 s{sT0}, s{sT0}, {L_O}")
    A(f"v_and_b32 v{t0}, 12, v{vL}"); A(f"v_lshlrev_b32 v{t0}, 5, v{t0}"); A(f"v_lshl_add_u32 v{t0}, v{vB3}, 4, v{t0}"); A(f"v_lshl_add_u32 v{t0}, v{vG}, 1, v{t0}")
    A(f"v_add_u32 v{aOw}, s{sT0}, v{t0}")
    A(f"v_and_b32 v{t1}, 3, v{vQ4}")
    A(f"v_lshlrev_b32 v{t0}, 7, v{t1}"); A(f"v_lshl_add_u32 v{t0}, v{vG}, 4, v{t0}"); A(f"v_add_u32 v{aOr}, {L_O}, v{t0}")
    A(f"v_mul_u32_u24 v{t0}, 160, v{t1}"); A(f"v_lshl_add_u32 v{t0}, v{vG}, 3, v{t0}"); A(f"v_add_u32 v{aHr}, {L_H}, v{t0}")
    A(f"v_mul_u32_u24 v{t0}, 288, v{vQ4}"); A(f"v_lshl_add_u32 v{t0}, v{vB3}, 3, v{t0}")
    A(f"s_mul_i32 s{sT2}, s{sW}, 96"); A(f"s_add_u32 s{sT0}, s{sT2}, {L_WO}"); A(f"v_add_u32 v{aW}, s{sT0}, v{t0}")
    A(f"s_mul_i32 s{sT0}, s{sS}, 3"); A(f"s_add_u32 s{sT0}, s{sT0}, s{sW}"); A(f"s_lshl_b32 s{sT0}, s{sT0}, 11"); A(f"s_add_u32 s{sT0}, s{sT0}, {WS_AC}")
    A(f"v_lshlrev_b32 v{t0}, 9, v{vG}"); A(f"v_lshl_add_u32 v{t0}, v{vI}, 2, v{t0}"); A(f"v_add_u32 v{aAc}, s{sT0}, v{t0}")
    A(f"s_mul_i32 s{sT1}, s{sS}, 288")
    A(f"s_mul_i32 s{sT0}, s{sG}, {72*1152}"); A(f"s_add_u32 s{sT0}, s{sT0}, s{sT1}"); srd(dW2, pW2, sT0, 71 * 1152 + 288)
    A(f"s_mul_i32 s{sT0}, s{sG}, {64*1152}"); A(f"s_add_u32 s{sT0}, s{sT0}, s{sT1}"); srd(dWO, pWO, sT0, 63 * 1152 + 288)
    A(f"s_add_u32 s{sT0}, s{sT1}, s{sT2}")
    A(f"v_mul_u32_u24 v{t0}, 1152, v{t1}"); A(f"v_lshl_add_u32 v{t0}, v{vB3}, 5, v{t0}")
    A(f"v_lshl_add_u32 v{t0}, v{vG}, 3, v{t0}"); A(f"v_add_u32 v{aOut}, s{sT0}, v{t0}")
    lanemask(sU1, 0x22222222); lanemask(sU2, 0x44444444); lanemask(sU3, 0x88888888)
    A(f"v_mov_b32 v{t0}, {hex(OOB)}"); A(f"v_cndmask_b32 v{aOut}, v{aOut}, v{t0}, {sr(sU3,2)}")
    C("the residual x enters through the workgroups with g = 0")
    srd(dX, pX, None, 4608); srd(dOUT, pOUT, None, 4608)
    A(f"s_cmp_eq_u32 s{sG}, 0"); A(f"s_cselect_b32 s{dX+2}, s{dX+2}, 0")
    A.vmem(f"buffer_load_dwordx2 {vr(xr2,2)}, v{aOut}, {sr(dX,4)}, 0 offen")
    A.auto = None
    while len(kseq) < GK: step(1)
    stamp()
    gq = V.get(4, 4); gh = V.get(4, 4); gh2 = V.get(4, 4); cp = V.get(4, 4); cpa = V.get()
    def gatherH1():
        A.vmem(f"buffer_load_dwordx4 {vr(gq,4)}, v{aGq}, {WS}, 0 offen sc1")
        A.vmem(f"buffer_load_dwordx4 {vr(gh,4)}, v{aGh}, {WS}, 0 offen sc1")
        return A.vmem(f"buffer_load_dwordx4 {vr(gh2,4)}, v{aGh2}, {WS}, 0 offen sc1")
    C("gather the q and h partials")
    g1 = gatherH1()
    bump[0] = BU; step(D); bump[0] = 0
    A.wait_vm(g1)
    stamp()
    A.label("L_chk1")
    chk(gq, sr(sP, 2), vT1); chk(gh, sr(sP + 2, 2), vT1); chk(gh2, "vcc", vT1)
    A("s_and_b32 vcc_lo, vcc_lo, 0x00030003"); A("s_and_b32 vcc_hi, vcc_hi, 0x00030003")
    A(f"s_or_b64 vcc, vcc, {sr(sP,2)}"); A(f"s_or_b64 vcc, vcc, {sr(sP+2,2)}")
    A("s_cbranch_scc1 L_slow1")
    A.label("L_ok1")
    spinrec(58)
    def copybox(nm):
        C("write this workgroup's valid q / h granules through to memory, for readers on other XCDs")
        A(f"s_mul_i32 s{sT0}, s{sBOX}, {BOX}"); A(f"s_add_u32 s{sT0}, s{sT0}, {WS_BOX}"); A(f"v_lshl_add_u32 v{cpa}, v{vL}, 4, s{sT0}")
        for k in range(3):
            if k == 2: A("s_mov_b64 exec, 0xff")
            A.vmem(f"buffer_load_dwordx4 {vr(cp,4)}, v{cpa}, {WS}, 0 offen offset:{k*1024} sc1")
            A("s_waitcnt vmcnt(0)")
            chk(cp, "vcc", vT1)
            A("s_andn2_b64 exec, exec, vcc"); A(f"s_cbranch_execz L_cp{nm}{k}")
            A.vmem(f"buffer_store_dwordx4 {vr(cp,4)}, v{cpa}, {WS}, 0 offen offset:{k*1024} sc1")
            A.label(f"L_cp{nm}{k}")
            A("s_mov_b64 exec, -1"); A("s_waitcnt vmcnt(0)")
    def slow1():
        A.label("L_slow1"); bounded()
        C("a granule of this launch from another XCD differs from the own tag in the top nibble only")
        A(f"s_mov_b64 {sr(sP,2)}, 0")
        for v in (gq, gh, gh2):
            if v == gh2: A("s_mov_b32 exec_lo, 0x00030003"); A("s_mov_b32 exec_hi, 0x00030003")
            chk(v, sr(sP + 2, 2), vT1)
            A(f"v_xor_b32 v{t0}, v{t0}, v{vT1}"); A(f"v_lshlrev_b32 v{t0}, 4, v{t0}"); A(f"v_cmp_ne_u32 vcc, 0, v{t0}")
            A(f"s_or_b64 {sr(sP,2)}, {sr(sP,2)}, vcc")
            A(f"s_andn2_b64 vcc, {sr(sP+2,2)}, vcc"); A(f"s_cselect_b32 s{sMode}, 1, s{sMode}")
        A("s_mov_b64 exec, -1")
        A(f"s_cmp_eq_u64 {sr(sP,2)}, 0"); A("s_cbranch_scc1 L_ok1")
        A(f"s_add_u32 s{sIt}, s{sIt}, 1"); A(f"s_cmp_lt_u32 s{sIt}, 4"); A("s_cbranch_scc1 L_slow1b")
        copybox("a")
        A.label("L_slow1b")
        gatherH1(); A("s_waitcnt vmcnt(0)"); A("s_branch L_chk1")
    slow.append(slow1)
    def pubstore(nm, text):
        A(f"s_cmp_lg_u32 s{sMode}, 0"); A(f"s_cbranch_scc1 L_alt{nm}")
        A.vmem(text)
        A.label(f"L_altb{nm}")
        def alt():
            A.label(f"L_alt{nm}"); A.vmem(text + " sc1"); A("s_nop 1"); A(f"s_branch L_altb{nm}")
        slow.append(alt)
    step(1); A.cyc = 0; lim[0] = 60; A.auto = auto
    for v in (gq, gh, gh2): untag(v, v)
    for v in (gq, gh, gh2): tred(v)
    A(f"v_cvt_pk_bf16_f32 v{gq}, v{gq}, v{gq}"); A(f"ds_write_b16 v{aQw}, v{gq}")
    A(f"s_lshl2_add_u32 s{sT0}, s{sW}, {L_FL}"); A(f"v_mov_b32 v{t2}, s{sT0}"); A(f"v_mov_b32 v{t3}, s{sMode}")
    A(f"ds_write_b32 v{t2}, v{t3}")
    C("silu")
    A(f"v_cvt_pk_bf16_f32 v{t0}, v{gh}, v{gh2}")
    A(f"v_lshlrev_b32 v{gh}, 16, v{t0}"); A(f"v_and_b32 v{gh2}, 0xffff0000, v{t0}")
    for v in (gh, gh2): A(f"v_mul_f32 v{v+1}, {hex(LOG2E | 0x80000000)}, v{v}")
    for v in (gh, gh2): A(f"v_exp_f32 v{v+1}, v{v+1}")
    for v in (gh, gh2): A(f"v_add_f32 v{v+1}, 1.0, v{v+1}")
    for v in (gh, gh2): A(f"v_rcp_f32 v{v+1}, v{v+1}")
    for v in (gh, gh2): A(f"v_mul_f32 v{v}, v{v}, v{v+1}")
    A(f"v_cvt_pk_bf16_f32 v{t0}, v{gh}, v{gh2}")
    A(f"ds_write_b16 v{aHw}, v{t0}")
    with quiet():
        A("s_mov_b32 exec_lo, 0x000f000f"); A("s_mov_b32 exec_hi, 0x000f000f")
        A(f"ds_write_b16_d16_hi v{aHw}, v{t0} offset:128")
        A("s_mov_b64 exec, -1")
    step(1); A.cyc = 0
    A("s_waitcnt lgkmcnt(0)")
    C("B2: q, silu(h) and the placement flags are in LDS")
    A("s_barrier")
    stamp()
    A(f"v_mov_b32 v{t2}, {L_FL}"); A(f"ds_read_b128 {vr(gq,4)}, v{t2}")
    def modecheck():
        with quiet():
            A(f"v_or3_b32 v{t2}, v{gq}, v{gq+1}, v{gq+2}"); A(f"v_or_b32 v{t2}, v{t2}, v{gq+3}")
            A(f"v_readfirstlane_b32 s{sMode}, v{t2}")
            A(f"s_cmp_lg_u32 s{sMode}, 0"); A("s_cbranch_scc1 L_mode1")
            A.label("L_mode1b")
        def mode1(): A.label("L_mode1"); copybox("b"); A("s_branch L_mode1b")
        slow.append(mode1)
    V.put(aQw); V.put(aHw)
    C("scores: lane (g', n) register 4 t + r = key row g' of round 4 t + r, head n >> 3")
    qf = V.get(16, 4); kf = [V.get(16, 4), V.get(16, 4)]; S = V.get(32, 4)
    for st in range(4): A(f"ds_read_b128 {vr(qf+4*st,4)}, v{aQr} offset:{st*64}")
    def rdK(t):
        if 4 * t + 3 >= GK:
            while pos() < 4 * t + 3 + D: step(1); A.cyc = 0
            A.wait_vm(kseq[4 * t + 3])
        if t == 4:
            for k in range(4): A(f"v_add_u32 v{aKr+k}, 0x10000, v{aKr+k}")
        for st in range(4): A(f"ds_read_b128 {vr(kf[t&1]+4*st,4)}, v{aKr+st} offset:{(t&3)*16384}")
    rdK(0)
    for t in range(8):
        if t < 7: rdK(t + 1); A("s_waitcnt lgkmcnt(4)")
        else: A("s_waitcnt lgkmcnt(0)")
        for st in range(4):
            c = "0" if st == 0 else vr(S+4*t, 4)
            A(f"v_mfma_f32_16x16x32_bf16 {vr(S+4*t,4)}, {vr(kf[t&1]+4*st,4)}, {vr(qf+4*st,4)}, {c}")
        if t < 7: A("s_nop 3")
        if t == 0: modecheck()
    V.put(qf, 16); V.put(kf[0], 16); V.put(kf[1], 16); V.put(aQr); V.put(aKr, 4); V.put(vKo, 4)
    for v in (gq, gh, gh2, cp): V.put(v, 4)
    V.put(cpa)
    pc = V.get(2); tp = V.get(8); ml = V.get(2); pl = V.get(2)
    A(f"v_mov_b32 v{pc}, {hex(SCALE)}")
    for h in range(2):
        for k in range(8): A(f"v_cvt_pk_bf16_f32 v{tp+k}, v{S+16*h+2*k}, v{S+16*h+2*k+1}")
        unpack(S + 16 * h, tp, 8)
        for k in range(8): pk_scale(S + 16 * h + 2 * k, S + 16 * h + 2 * k, pc)
        for k in range(8): A(f"v_cvt_pk_bf16_f32 v{tp+k}, v{S+16*h+2*k}, v{S+16*h+2*k+1}")
        unpack(S + 16 * h, tp, 8)
    A(f"v_max_f32 v{ml}, v{S}, v{S+1}")
    for k in range(1, 16): A(f"v_max3_f32 v{ml}, v{S+2*k}, v{S+2*k+1}, v{ml}")
    allred_rows(ml, t0, "v_max_f32")
    A(f"v_mov_b32 v{pc}, {hex(LOG2E)}")
    for k in range(16): pk_sub(S + 2 * k, S + 2 * k, ml)
    for k in range(16): pk_scale(S + 2 * k, S + 2 * k, pc)
    for k in range(32): A(f"v_exp_f32 v{S+k}, v{S+k}")
    A(f"v_pk_add_f32 {vr(pl,2)}, {vr(S,2)}, {vr(S+2,2)}")
    for k in range(2, 16): A(f"v_pk_add_f32 {vr(pl,2)}, {vr(pl,2)}, {vr(S+2*k,2)}")
    A(f"v_add_f32 v{ml+1}, v{pl}, v{pl+1}")
    allred_rows(ml + 1, t0, "v_add_f32")
    A(f"s_lshl_b32 s{sT0}, s{sW}, 4"); A(f"s_add_u32 s{sT0}, s{sT0}, {L_ML}")
    A(f"v_and_b32 v{t0}, 8, v{vL}"); A(f"v_add_u32 v{t0}, s{sT0}, v{t0}")
    A(f"ds_write_b64 v{t0}, {vr(ml,2)}")
    for k in range(32): A(f"v_cvt_pk_bf16_f32 v{S+k}, v{S+k}, v{S+k}")
    A("s_waitcnt lgkmcnt(0)")
    C("B3: K is consumed, the waves' (max, sum) are in LDS")
    A("s_barrier")
    stamp()
    A(f"v_lshrrev_b32 v{t0}, 5, v{vL}"); A(f"v_lshlrev_b32 v{t0}, 3, v{t0}"); A(f"v_add_u32 v{t1}, s{sT0}, v{t0}"); A(f"v_add_u32 v{t0}, {L_ML}, v{t0}")
    for k in range(4): A(f"ds_read_b64 {vr(tp+2*k,2)}, v{t0} offset:{16*k}")
    A(f"ds_read_b32 v{pl}, v{t1}")
    A("s_waitcnt lgkmcnt(0)")
    vF = V.get(2); g4 = V.get(4, 4)
    A(f"v_max3_f32 v{g4}, v{tp}, v{tp+2}, v{tp+4}"); A(f"v_max_f32 v{g4}, v{g4}, v{tp+6}")
    for r in (tp, tp + 2, tp + 4, tp + 6, pl): A(f"v_sub_f32 v{r}, v{r}, v{g4}")
    for r in (tp, tp + 2, tp + 4, tp + 6, pl): A(f"v_mul_f32 v{r}, {hex(LOG2E)}, v{r}")
    for r in (tp, tp + 2, tp + 4, tp + 6): A(f"v_exp_f32 v{r}, v{r}")
    A(f"v_exp_f32 v{vF}, v{pl}")
    A(f"v_mul_f32 v{g4+1}, v{tp}, v{tp+1}")
    for k in range(1, 4): A(f"v_fmac_f32 v{g4+1}, v{tp+2*k}, v{tp+2*k+1}")
    A(f"v_mov_b32 v{g4+2}, v{g4}"); A(f"v_mov_b32 v{g4+3}, v{g4+1}")
    A(f"v_permlane32_swap_b32 v{g4}, v{g4+2}"); A(f"v_permlane32_swap_b32 v{g4+1}, v{g4+3}")
    tag(g4, vT2)
    A(f"s_mul_i32 s{sT0}, s{sBOX}, {BOX}"); A(f"s_add_u32 s{sT1}, s{sT0}, {WS_BOX+MLO}")
    A(f"v_cmp_gt_u32 vcc, 8, v0"); A(f"v_mov_b32 v{t0}, {hex(OOB)}"); A(f"v_lshl_add_u32 v{t1}, v0, 4, s{sT1}")
    A(f"v_cndmask_b32 v{t0}, v{t0}, v{t1}, vcc")
    A.auto = None
    C("publish the workgroup's (max, sum) of both heads")
    pubstore("m", f"buffer_store_dwordx4 {vr(g4,4)}, v{t0}, {WS}, 0 offen")
    V.put(pc, 2); V.put(tp, 8); V.put(ml, 2); V.put(pl, 2)
    print("V rounds issued at the end of the softmax:", len(vseq), file=sys.stderr)
    oacc = V.get(4, 4); NQ = 8; aq = V.get(4 * NQ, 4)
    built = [0]; done = [0]
    def build(n):
        for _ in range(n):
            j = built[0]
            if j >= 32: return
            assert j - done[0] < NQ
            for k in range(4): A(f"v_and_b32 v{aq+4*(j%NQ)+k}, v{S+j}, v{vM+k}")
            built[0] += 1
    def pv():
        j = done[0]
        assert built[0] > j
        A.wait_vm(vseq[j])
        A(f"v_mfma_f32_16x16x32_bf16 {vr(oacc,4)}, {vr(aq+4*(j%NQ),4)}, {ar(4*j,4)}, {'0' if j == 0 else vr(oacc,4)}")
        done[0] += 1
    gp = V.get(4, 4); gm = V.get(4, 4); vWg = V.get(2); xc = V.get(4, 4)
    unpack(xc, xr2, 2)
    def gatherO(): return A.vmem(f"buffer_load_dwordx4 {vr(gp,4)}, v{aG2}, {WS}, 0 offen sc1")
    def gatherML(): return A.vmem(f"buffer_load_dwordx4 {vr(gm,4)}, v{aGm}, {WS}, 0 offen sc1")
    build(2)
    assert len(vseq) < GM
    while len(vseq) < 32:
        step(1)
        if len(vseq) == GM: gml = gatherML()
        n = 0
        while done[0] < len(vseq) - DV - 1 and n < 4: pv(); build(1); n += 1
    V.put(g4, 4)
    stamp()
    def weights():
        C("softmax weights of the four splits from the gathered (max, sum)")
        A.wait_vm(gml)
        A.label("L_chk2")
        chk(gm, "vcc", vT2)
        A("s_cbranch_vccnz L_slow2")
        spinrec(59)
        def slow2(): A.label("L_slow2"); bounded(); gatherML(); A("s_waitcnt vmcnt(0)"); A("s_branch L_chk2")
        slow.append(slow2)
        A(f"s_cmp_ge_u32 s{sB}, 2"); A("s_cselect_b64 vcc, -1, 0")
        A(f"v_cndmask_b32 v{t2}, v{gm}, v{gm+2}, vcc"); A(f"v_cndmask_b32 v{t3}, v{gm+1}, v{gm+3}, vcc")
        A(f"v_and_b32 v{t2}, 0xffffff00, v{t2}"); A(f"v_and_b32 v{t3}, 0xffffff00, v{t3}")
        A(f"v_mov_b32 v{vWg}, v{t2}"); allred_rows(vWg, t0, "v_max_f32")
        A(f"v_sub_f32 v{t2}, v{t2}, v{vWg}"); A(f"v_mul_f32 v{t2}, {hex(LOG2E)}, v{t2}"); A(f"v_exp_f32 v{t2}, v{t2}")
        A(f"v_mul_f32 v{t3}, v{t2}, v{t3}"); allred_rows(t3, t0, "v_add_f32")
        A(f"v_rcp_f32 v{t3}, v{t3}"); A(f"v_mul_f32 v{vWg}, v{t2}, v{t3}")
    C("w2 and wo tiles -> LDS behind V")
    tail = ragged(dW2, L_W2, 6, 3641, 864) + ragged(dWO, L_WO, 5, 3641, 864)
    wseq = []
    while len(tail) > hold:
        bump[0] = 1; pace(DW); bump[0] = 0
        wseq.append(tail.pop(0)())
        while done[0] < min(32 + len(wseq) - DW - 1, GM - 1): build(NQ - (built[0] - done[0])); pv()
    while done[0] < 32:
        build(NQ - (built[0] - done[0])); pv()
        if done[0] == GM: weights()
    stamp()
    pk_scale(oacc, oacc, vF); pk_scale(oacc + 2, oacc + 2, vF)
    A(f"ds_write_b128 v{aOPw}, {vr(oacc,4)}")
    A("s_waitcnt lgkmcnt(0)")
    C("B4: the waves' o are in LDS; wave w sums and publishes a quarter")
    A("s_barrier")
    V.put(S, 32); V.put(aq, 4 * NQ); V.put(vM, 4)
    r16 = V.get(16, 4)
    A("s_mov_b64 exec, 0xffff")
    for k in range(4): A(f"ds_read_b128 {vr(r16+4*k,4)}, v{aOPr} offset:{L_OP + 1024*k}")
    A("s_waitcnt lgkmcnt(2)")
    for h in range(2): A(f"v_pk_add_f32 {vr(r16+2*h,2)}, {vr(r16+2*h,2)}, {vr(r16+4+2*h,2)}")
    A("s_waitcnt lgkmcnt(0)")
    for h in range(2): A(f"v_pk_add_f32 {vr(r16+8+2*h,2)}, {vr(r16+8+2*h,2)}, {vr(r16+12+2*h,2)}")
    for h in range(2): A(f"v_pk_add_f32 {vr(r16+2*h,2)}, {vr(r16+2*h,2)}, {vr(r16+8+2*h,2)}")
    tag(r16, vT2)
    pubstore("o", f"buffer_store_dwordx4 {vr(r16,4)}, v{aH2}, {WS}, 0 offen")
    A("s_mov_b64 exec, -1")
    stamp()
    g2 = None
    while tail:
        wseq.append(tail.pop(0)())
        if len(tail) == hold - pp and tail: g2 = gatherO()
    hf = V.get(10, 4); w2f = V.get(36, 4); wof = V.get(24, 4); yacc = V.get(12, 4)
    W2D = L_W2 - L_WO
    for st in range(5): A(f"ds_read_b64 {vr(hf+2*st,2)}, v{aHr} offset:{st*32}")
    C("the polls of o overlap: a granule that has turned valid stays valid")
    g3 = gatherO()
    if g2 is None: g2 = g3
    A(f"s_cmp_eq_u32 s{sW}, 3")
    A.wait_vm(wseq[5], "lgkmcnt(0)", trust=True)
    C("B5: w2 tile landed")
    A("s_barrier")
    stamp()
    gatherO()
    A("s_cbranch_scc1 L_noffn")
    for st in (4, 0, 1, 2, 3):
        for tl in range(3): A(f"ds_read_b64_tr_b16 {vr(w2f+12*tl+2*st,2)}, v{aW} offset:{W2D+st*4608+32*tl}")
    A("s_waitcnt lgkmcnt(12)")
    for tl in range(3): A(f"v_mfma_f32_16x16x16_bf16 {vr(yacc+4*tl,4)}, {vr(w2f+12*tl+8,2)}, {vr(hf+8,2)}, {vr(xc,4)}")
    for st in range(2):
        A(f"s_waitcnt lgkmcnt({6-6*st})")
        for tl in range(3): A(f"v_mfma_f32_16x16x32_bf16 {vr(yacc+4*tl,4)}, {vr(w2f+12*tl+4*st,4)}, {vr(hf+4*st,4)}, {vr(yacc+4*tl,4)}")
    A.label("L_noffn")
    gatherO()
    A.wait_vm(g2)
    stamp()
    A.label("L_chk3")
    chk(gp, "vcc", vT2)
    A("s_cbranch_vccnz L_slow3")
    spinrec(60)
    def slow3():
        A.label("L_slow3"); bounded()
        A("s_mov_b64 exec, vcc"); gatherO(); A("s_mov_b64 exec, -1")
        A("s_waitcnt vmcnt(1)"); A("s_branch L_chk3")
    slow.append(slow3)
    stamp()
    go = V.get(4, 4)
    untag(go, gp); pk_scale(go, go, vWg); pk_scale(go + 2, go + 2, vWg)
    tred(go)
    A(f"v_cvt_pk_bf16_f32 v{go}, v{go}, v{go}")
    A(f"ds_write_b16 v{aOw}, v{go}")
    if lateinit:
        with uncounted(): initacc()
        A("s_waitcnt vmcnt(0)")
    A(f"s_add_u32 s{sT0}, s{sS0}, 63"); A(f"v_mov_b32 v{t2}, s{sT0}"); A(f"v_mov_b32 v{t1}, {hex(OOB)}")
    A(f"s_cmp_eq_u32 s{sW}, 3")
    A.wait_vm(wseq[-1], "lgkmcnt(0)")
    C("B6: normalised o and the wo tile are in LDS")
    A("s_barrier")
    A("s_cbranch_scc1 L_fin")
    of = V.get(8, 4)
    for st in range(2):
        A(f"ds_read_b128 {vr(of+4*st,4)}, v{aOr} offset:{64*st}")
        for k in range(2):
            for tl in range(3): A(f"ds_read_b64_tr_b16 {vr(wof+8*tl+4*st+2*k,2)}, v{aW} offset:{(2*st+k)*4608+32*tl}")
    for st in range(2):
        A(f"s_waitcnt lgkmcnt({7-7*st})")
        for tl in range(3): A(f"v_mfma_f32_16x16x32_bf16 {vr(yacc+4*tl,4)}, {vr(wof+8*tl+4*st,4)}, {vr(of+4*st,4)}, {vr(yacc+4*tl,4)}")
    C("add into the accumulators; 63 earlier arrivals mean that the returned value completes the sum")
    own = V.get(4, 4); ret = V.get(4, 4); cur = V.get(); dc = V.get(4)
    for r in range(4): A(f"v_cndmask_b32 v{own+r}, v{yacc+r}, 1.0, {sr(sU3,2)}")
    for r in range(4): A(f"v_cndmask_b32 v{own+r}, v{own+r}, v{yacc+4+r}, {sr(sU1,2)}")
    def atom(r): return A.vmem(f"buffer_atomic_add_f32 v{ret+r}, v{aAc}, {WS}, 0 offen offset:{128*r} sc0 sc1")
    for r in range(4): A(f"v_cndmask_b32 v{ret+r}, v{own+r}, v{yacc+8+r}, {sr(sU2,2)}"); atom(r)
    stamp()
    for r in range(4): A(f"v_cndmask_b32 v{own+r}, v{own+r}, v{yacc+8+r}, {sr(sU2,2)}")
    def arrivals(d, v): A(f"v_sub_u32_dpp v{d}, v{v}, v{t2} quad_perm:[3,3,3,3] row_mask:0xf bank_mask:0xf")
    A("s_waitcnt vmcnt(2)")
    A.label("L_chk4")
    arrivals(dc, ret); arrivals(dc + 1, ret + 1)
    A(f"v_pk_add_f32 {vr(of,2)}, {vr(ret,2)}, {vr(own,2)}")
    A(f"v_or_b32 v{t0}, v{dc}, v{dc+1}")
    A(f"v_cvt_pk_bf16_f32 v{of+4}, v{of}, v{of+1}")
    A("s_waitcnt vmcnt(0)")
    arrivals(dc + 2, ret + 2); arrivals(dc + 3, ret + 3)
    A(f"v_or3_b32 v{t0}, v{t0}, v{dc+2}, v{dc+3}")
    A(f"v_cmp_eq_u32 vcc, 0, v{t0}")
    A(f"v_pk_add_f32 {vr(of+2,2)}, {vr(ret+2,2)}, {vr(own+2,2)}")
    A(f"v_cvt_pk_bf16_f32 v{of+5}, v{of+2}, v{of+3}")
    A(f"v_cndmask_b32 v{of+6}, v{t1}, v{aOut}, vcc")
    A.vmem(f"buffer_store_dwordx2 {vr(of+4,2)}, v{of+6}, {sr(dOUT,4)}, 0 offen")
    stamp()
    A(f"v_min3_u32 v{t3}, v{dc}, v{dc+1}, v{dc+2}"); A(f"v_min_u32 v{t3}, v{t3}, v{dc+3}"); A(f"s_movk_i32 s{sT0}, -63")
    A(f"v_cmp_gt_u32 {sr(sP,2)}, s{sT0}, v{t3}")
    A(f"v_cmp_eq_u32 {sr(sL,2)}, 0, v{dc}")
    A(f"s_andn2_b64 {sr(sP,2)}, {sr(sP,2)}, vcc")
    def singles():
        C("last arrival on some of the four lines only: single elements")
        sQ = 4
        A(f"v_cndmask_b32 v{of+7}, v{t1}, v{aOut}, {sr(sP,2)}")
        for r in range(1, 4): A(f"v_cmp_eq_u32 {sr(sQ+2*r,2)}, 0, v{dc+r}")
        for r in range(4):
            A(f"v_cndmask_b32 v{of+r}, v{t1}, v{of+7}, {sr(sQ+2*r if r else sL,2)}")
            A.vmem(f"buffer_store_short{'_d16_hi' if r & 1 else ''} v{of+4+(r>>1)}, v{of+r}, {sr(dOUT,4)}, 0 offen offset:{2*r}")
        for r in range(4): A(f"v_add_u32 v{dc+r}, 63, v{dc+r}")
        A(f"v_max3_u32 v{t3}, v{dc}, v{dc+1}, v{dc+2}"); A(f"v_max_u32 v{t3}, v{t3}, v{dc+3}")
        A(f"v_cmp_lt_u32 vcc, 63, v{t3}")
    A("s_cbranch_scc0 L_mixedb"); singles(); A("s_cbranch_vccnz L_mixed")
    A.label("L_mixedb")
    def mixed():
        A.label("L_mixed")
        C("an add that reached a line before its initialisation is lost: wait for the initialisation, add again")
        bounded()
        for r in range(4):
            A(f"v_cmp_lt_u32 vcc, 63, v{dc+r}"); A("s_and_b64 exec, exec, vcc"); A(f"s_cbranch_scc0 L_rt{r}")
            A.vmem(f"buffer_load_dword v{cur}, v{aAc}, {WS}, 0 offen offset:{128*r} sc1")
            A("s_waitcnt vmcnt(0)")
            arrivals(t0, cur); A(f"v_add_u32 v{t0}, 63, v{t0}")
            A(f"v_cmp_ge_u32 vcc, 63, v{t0}"); A("s_and_b64 exec, exec, vcc"); A(f"s_cbranch_scc0 L_rt{r}")
            A(f"v_mov_b32 v{ret+r}, v{own+r}"); atom(r)
            A("s_waitcnt vmcnt(0)")
            A.label(f"L_rt{r}")
            A("s_mov_b64 exec, -1")
        A("s_branch L_chk4")
    slow.append(mixed)
    C("the last arrival on the first chunk has seen every workgroup past its read of the epoch word: advance it")
    A(f"s_or_b32 s{sT0}, s{sS}, s{sW}"); A("s_cbranch_scc1 L_fin")
    A(f"s_bitcmp1_b32 s{sL}, 3"); A("s_cbranch_scc0 L_fin")
    A(f"v_mov_b32 v{t0}, s{sE}"); A(f"v_mov_b32 v{t1}, 0"); A("s_mov_b64 exec, 1")
    A.vmem(f"buffer_store_dword v{t0}, v{t1}, {WS}, 0 offen")
    A.label("L_fin")
    if stamps:
        A("s_mov_b64 exec, -1"); A("s_waitcnt vmcnt(0)")
        A(f"s_memrealtime s[{sSt}:{sSt+1}]"); A("s_waitcnt lgkmcnt(0)"); A(f"v_writelane_b32 v{vSt}, s{sSt}, 62")
        A(f"v_writelane_b32 v{vSt}, s{sSpin}, 61")
        A(f"s_getreg_b32 s{sSt}, hwreg(HW_REG_XCC_ID, 0, 4)"); A(f"v_writelane_b32 v{vSt}, s{sSt}, 63")
        A(f"s_lshl_b32 s{sT0}, s2, 10"); A(f"s_add_u32 s{sT0}, s{sT0}, {WS_ST}"); A(f"v_lshl_add_u32 v{t0}, v0, 2, s{sT0}")
        if stamps == "tiny":
            A(f"s_lshl2_add_u32 s{sT0}, s2, s{sW}"); A(f"s_lshl3_add_u32 s{sT0}, s{sT0}, {WS_ST}"); A(f"v_lshrrev_b32 v{t0}, 5, v{vL}"); A(f"v_lshl_add_u32 v{t0}, v{t0}, 2, s{sT0}")
            A("s_mov_b32 exec_lo, 1"); A("s_mov_b32 exec_hi, 0x40000000")
        A.vmem(f"buffer_store_dword v{vSt}, v{t0}, {WS}, 0 offen")
    A("s_endpgm")
    C("---- rare paths")
    for f in slow: f()
    A.label("L_end")
    A("s_endpgm")
    acc_off = (V.top + 3) // 4 * 4
    A.raw('.section .rodata,"a"'); A.raw(".p2align 6"); A.raw(f".amdhsa_kernel {NAME}_kernel")
    A.raw(f"  .amdhsa_next_free_vgpr {acc_off + 128}"); A.raw("  .amdhsa_next_free_sgpr 102"); A.raw(f"  .amdhsa_accum_offset {acc_off}")
    A.raw("  .amdhsa_group_segment_fixed_size 0"); A.raw("  .amdhsa_kernarg_size 88"); A.raw("  .amdhsa_user_sgpr_count 2")
    A.raw("  .amdhsa_user_sgpr_kernarg_segment_ptr 1"); A.raw("  .amdhsa_system_sgpr_workgroup_id_x 1"); A.raw(".end_amdhsa_kernel")
    return A.text()

if __name__ == "__main__":
    kw = eval("dict(" + (sys.argv[2] if len(sys.argv) > 2 else "") + ")")
    open(sys.argv[1], "w").write(gen(**kw))
```

```python
import sys, struct
from asmlib import *
NAME = "parallel_sum__sliding_block_cached__dense_activation_silu__decode"

def f2u(x): return struct.unpack("<I", struct.pack("<f", x))[0]
LOG2E = f2u(1.4426950408889634); SCALE = f2u(128 ** -0.5)
OOB = 0x40000000
WS_BOX, BOX = 0x1000, 2304
MLO = 2176
WS_AC = 0x100000
WS_ST = 0x400000
L_WQ = 131072 - 20480; L_WO = L_WQ
L_XN = 131072; L_Q = L_XN + 1152; L_H = L_Q + 512; L_ML = L_H + 640; L_O = L_ML + 128; L_FL = L_O + 512
L_W1 = 134144; L_W2 = L_W1; L_OP = 0
LDS_BYTES = L_W1 + 24576
HEADER = open("cdna_kernels/" + NAME + ".s.ref").read().split("; Override launch")[0]

DOC = """;
;   2. attention over 512 of the 2048 window keys for the two query heads of (batch, kv head)
; exchange through its L2 with plain stores, any other placement switches to write-through stores.
"""

def gen(D=6, DV=6, DW=8, TH=300, GK=30, GM=30, hold=3, pp=2, sb=14, rc=(1, 0, 0, 0, 3, 0, 0, 2),
        stamps=False, sel=None, scramble=False, force1=False, lateinit=False, spin=None, rtab=False, probe2=False, n0=3, lt=1, DC=7):
    if spin is None: spin = 20000 if stamps else 1 << 21
    A = Asm(); V = VAlloc(1, 256); A.th = TH
    def C(t): A.raw("    ; " + t)
    A.raw(HEADER.rstrip("\n"))
    A.raw(f"; @launch grid=(256,1,1) block=(256,1,1) lds={LDS_BYTES}")
    A.raw(DOC.rstrip("\n"))
    A.raw('.amdgcn_target "amdgcn-amd-amdhsa--gfx950"')
    A.raw(".text"); A.raw(f".globl {NAME}_kernel"); A.raw(".p2align 8"); A.raw(f".type {NAME}_kernel,@function")
    A.label(f"{NAME}_kernel")
    sW = 3
    pX, pK, pV, pWQ, pWO, pW1, pW2, pOUT, pWS = 4, 6, 8, 10, 12, 16, 18, 20, 24
    sMode, sIt, sPC = 22, 23, 26
    dX, dK, dV, dWQ, dW1, dW2, dWO, dWS, dOUT = 28, 32, 36, 40, 44, 48, 52, 56, 60
    sG, sS, sB, sHKV, sBOX, sRot, sSo, sE, sT0, sT1, sT2, sS0 = 64, 65, 66, 67, 68, 69, 70, 71, 72, 73, 74, 75
    sSel, sSelA, sSelB, sU1, sU2, sSpin, sC, sM, sP, sL, sU3, sSt = 76, 80, 81, 82, 84, 86, 87, 88, 90, 94, 96, 98
    WS = sr(dWS, 4)
    slow = []
    vSt = V.get() if stamps else None
    nst = [1]; cnt = [0]
    class quiet:
        def __enter__(s): s.a = A.auto; A.auto = None
        def __exit__(s, *a): A.auto = s.a
    class uncounted:
        def __enter__(s): s.n = len(A.vm)
        def __exit__(s, *a): del A.vm[s.n:]
    def stamp():
        cnt[0] += 1
        if stamps is True and (sel is None or cnt[0] in sel):
            with quiet():
                A(f"s_memrealtime s[{sSt}:{sSt+1}]"); A("s_waitcnt lgkmcnt(0)"); A(f"v_writelane_b32 v{vSt}, s{sSt}, {nst[0]}"); nst[0] += 1
    def spinrec(k):
        if stamps: A(f"v_writelane_b32 v{vSt}, s{sSpin}, {k}")
    def srd(d, p, off_s, nrec):
        if off_s is None: A(f"s_mov_b32 s{d}, s{p}"); A(f"s_mov_b32 s{d+1}, s{p+1}")
        else: A(f"s_add_u32 s{d}, s{p}, s{off_s}"); A(f"s_addc_u32 s{d+1}, s{p+1}, 0")
        A(f"s_mov_b32 s{d+2}, {nrec}"); A(f"s_mov_b32 s{d+3}, 0x20000")
    def bounded(): A(f"s_sub_u32 s{sSpin}, s{sSpin}, 1"); A("s_cbranch_scc1 L_end")

    def initacc():
        C("workgroup (g < 48, s) initialises accumulator line 48 s + g")
        with quiet():
            i4 = V.get(4, 4)
            for r in range(3): A(f"v_mov_b32 v{i4+r}, 0")
            A(f"v_mov_b32 v{i4+3}, s{sS0}")
            A(f"s_mul_i32 s{sT0}, s{sS}, 48"); A(f"s_add_u32 s{sT0}, s{sT0}, s{sG}"); A(f"s_lshl_b32 s{sT0}, s{sT0}, 7"); A(f"s_add_u32 s{sT0}, s{sT0}, {WS_AC}")
            A(f"s_cmp_lt_u32 s{sG}, 48"); A(f"s_cselect_b32 s{sT1}, 4, 0")
            A(f"v_lshl_add_u32 v{t0}, v0, 4, s{sT0}"); A(f"v_cmp_gt_u32 vcc, s{sT1}, v0"); A(f"v_mov_b32 v{t1}, {hex(OOB)}")
            A(f"v_cndmask_b32 v{t0}, v{t1}, v{t0}, vcc")
            A.vmem(f"buffer_store_dwordx4 {vr(i4,4)}, v{t0}, {WS}, 0 offen sc1")
            V.put(i4, 4)
    vJ = V.get(); vPa = V.get(2); vL = V.get(); t0 = V.get(); t1 = V.get(); t2 = V.get(); t3 = V.get(); vX = V.get(); vWq = V.get()
    A("s_load_dwordx16 s[4:19], s[0:1], 0")
    if stamps or probe2: A(f"s_memrealtime s[{sSt}:{sSt+1}]")
    A("s_cmpk_ge_u32 s2, 256"); A("s_cbranch_scc1 L_end")
    A(f"v_readfirstlane_b32 s{sM}, v0")
    if scramble:
        A(f"s_lshr_b32 s{sG}, s2, 2"); A(f"s_and_b32 s{sS}, s2, 3")
    else:
        A(f"s_and_b32 s{sT0}, s2, 7"); A(f"s_bfe_u32 s{sT1}, s2, 0x30003"); A(f"s_lshl3_add_u32 s{sG}, s{sT0}, s{sT1}")
        A(f"s_lshr_b32 s{sS}, s2, 6")
    C("pull this kernel's text into L2, one dword per 64 bytes")
    A(f"s_getpc_b64 s[{sPC}:{sPC+1}]")
    A.label("L_pc")
    A(f"v_lshlrev_b32 v{vPa}, 6, v0"); A(f"v_min_u32 v{vPa}, L_end-L_pc, v{vPa}"); A(f"v_mov_b32 v{vPa+1}, s{sPC+1}")
    A(f"v_add_co_u32 v{vPa}, vcc, s{sPC}, v{vPa}")
    A(f"v_and_b32 v{vL}, 63, v0"); A(f"s_lshr_b32 s{sW}, s{sM}, 6")
    A(f"v_addc_co_u32 v{vPa+1}, vcc, 0, v{vPa+1}, vcc")
    A.vmem(f"global_load_dword v{vJ}, {vr(vPa,2)}, off")
    C("wq tile: rows 144 s.., columns 64 g.. -> LDS")
    A(f"v_lshrrev_b32 v{t0}, 3, v0"); A(f"v_and_b32 v{t1}, 7, v0"); A(f"v_lshlrev_b32 v{t1}, 4, v{t1}")
    A(f"v_lshl_or_b32 v{vWq}, v{t0}, 13, v{t1}")
    A(f"s_lshl4_add_u32 m0, s{sM}, {L_WQ}")
    A(f"s_mul_i32 s{sT1}, s{sS}, {144*8192}"); A(f"s_lshl_b32 s{sT2}, s{sG}, 7"); A(f"s_add_u32 s{sT1}, s{sT1}, s{sT2}")
    A(f"s_mov_b32 s{dWQ+2}, {143*8192+128}"); A(f"s_mov_b32 s{dWQ+3}, 0x20000"); A(f"s_lshl_b32 s{sC}, s{dWQ+3}, 1")
    A("s_waitcnt lgkmcnt(0)")
    A(f"s_add_u32 s{dWQ}, s{pWQ}, s{sT1}"); A(f"s_addc_u32 s{dWQ+1}, s{pWQ+1}, 0")
    for r in range(5):
        if r: A("s_addk_i32 m0, 0x1000"); A(f"v_add_u32 v{vWq}, s{sC}, v{vWq}")
        A.vmem(f"buffer_load_dwordx4 v{vWq}, {sr(dWQ,4)}, 0 offen nt lds")
    A("s_load_dwordx2 s[20:21], s[0:1], 64"); A("s_load_dwordx2 s[24:25], s[0:1], 80")
    if probe2: A("s_load_dwordx2 s[14:15], s[0:1], 72")
    if rtab:
        A(f"s_lshl_b32 s{sT0}, s2, 2"); A(f"s_load_dword s100, s[14:15], s{sT0}")
    if stamps: A(f"v_mov_b32 v{vSt}, 0"); A(f"v_writelane_b32 v{vSt}, s{sSt}, 0")
    C("x row of batch w")
    A(f"s_mul_i32 s{sT0}, s{sM}, 18"); A(f"s_lshl_b32 s{sM}, s{sM}, 4")
    A(f"v_lshlrev_b32 v{vX}, 5, v{vL}")
    srd(dX, pX, sT0, 1152)
    xr = V.get(8, 4)
    A.vmem(f"buffer_load_dwordx4 {vr(xr,4)}, v{vX}, {sr(dX,4)}, 0 offen")
    x1 = A.vmem(f"buffer_load_dwordx4 {vr(xr+4,4)}, v{vX}, {sr(dX,4)}, 0 offen offset:16")
    A(f"s_mul_i32 s{sT1}, s{sS}, {144*9216}"); A(f"s_mul_i32 s{sT2}, s{sG}, 144"); A(f"s_add_u32 s{sT1}, s{sT1}, s{sT2}")
    srd(dW1, pW1, sT1, 143 * 9216 + 144)
    def ragged(d, lbase, rounds, magic, rowpad):
        vP16 = V.get(); vMul = V.get(); vo = V.get()
        def mk(r):
            def f():
                with quiet():
                    if r == 0: A(f"v_lshlrev_b32 v{vP16}, 4, v0"); A(f"v_mul_u32_u24 v{vMul}, {magic}, v0")
                    else: A(f"v_add_u32 v{vP16}, 0x1000, v{vP16}"); A(f"v_add_u32 v{vMul}, {magic*256}, v{vMul}")
                    A(f"s_movk_i32 s{sC}, {rowpad}")
                    A(f"v_lshrrev_b32 v{vo}, 16, v{vMul}")
                    A(f"s_add_u32 m0, s{sM}, {lbase + r*4096}")
                    A(f"v_mad_u32_u24 v{vo}, v{vo}, s{sC}, v{vP16}")
                    q = A.vmem(f"buffer_load_dwordx4 v{vo}, {sr(d,4)}, 0 offen nt lds")
                if lt and r == 5: A.vm[q].light = True
                if r == rounds - 1: V.put(vP16); V.put(vMul); V.put(vo)
                return q
            return f
        return [mk(r) for r in range(rounds)]
    w1q = ragged(dW1, L_W1, 6, 7282, 9072); lastA = [None]
    V.put(vWq); V.put(vX); V.put(vPa, 2)
    stamp()
    C("K / V window of (batch, kv head); the four splits interleave in 16 KB pieces")
    GAP = 3 << sb; VAL = 0x7f000 & ~GAP
    A(f"s_and_b32 s{sB}, s{sG}, 3"); A(f"s_lshr_b32 s{sHKV}, s{sG}, 2")
    A(f"s_lshl4_add_u32 s{sT0}, s{sB}, s{sHKV}"); A(f"s_lshl_b32 s{sT0}, s{sT0}, 21")
    A(f"s_lshl_b32 s{sT1}, s{sS}, {sb}"); A(f"s_add_u32 s{sT0}, s{sT0}, s{sT1}"); A(f"s_add_u32 s{sT0}, s{sT0}, {6144*256}")
    srd(dK, pK, sT0, VAL + 4096); srd(dV, pV, sT0, VAL + 4096)
    A(f"s_lshl2_add_u32 s{sBOX}, s{sG}, s{sS}")
    C("start block of the walk over this workgroup's 32 blocks of 16 keys (spreads the load over the memory channels)")
    A(f"s_mov_b32 s{sRot}, 0")
    for w, bit in zip(rc, (5, 6, 7, 4, 2, 3, 0, 1)):
        if w: A(f"s_bitcmp1_b32 s{sBOX}, {bit}"); A(f"s_cselect_b32 s{sT1}, {w}, 0"); A(f"s_add_u32 s{sRot}, s{sRot}, s{sT1}")
    if rtab: A("s_waitcnt lgkmcnt(0)"); A(f"s_mov_b32 s{sRot}, s100")
    A(f"s_lshl_b32 s{sRot}, s{sRot}, 12"); A(f"s_and_b32 s{sRot}, s{sRot}, 0x1f000")
    A(f"s_and_b32 s{sT1}, s{sRot}, {hex(0x1f000 & ~((1 << sb) - 1))}"); A(f"s_mul_i32 s{sT1}, s{sT1}, 3"); A(f"s_add_u32 s{sRot}, s{sRot}, s{sT1}")
    vG = V.get(); vI = V.get(); vKo = V.get(4); vVo = V.get()
    A(f"v_lshrrev_b32 v{vG}, 4, v{vL}"); A(f"v_and_b32 v{vI}, 15, v{vL}")
    A(f"v_lshlrev_b32 v{vVo}, 4, v0")
    A(f"v_lshlrev_b32 v{t0}, 6, v{vG}"); A(f"v_xor_b32 v{vKo}, v{vVo}, v{t0}")
    for i in range(1, 4): A(f"v_xor_b32 v{vKo+i}, {i*16}, v{vKo}")

    kseq = []; vseq = []; lim = [0]; incomp = [0]
    def pace(d):
        k = 0; n = 0
        if DC and incomp[0]: d = DC
        for x in reversed(A.vm):
            heavy = " nt" in x.text and not getattr(x, "light", False)
            if heavy and k == d - 1: break
            k += heavy; n += 1
        A(f"s_waitcnt vmcnt({n})")
    def so(j):
        if j == 0: A(f"s_mov_b32 s{sSo}, s{sRot}")
        else: A(f"s_add_u32 s{sSo}, s{sSo}, {hex(GAP + 0x1000)}"); A(f"s_and_b32 s{sSo}, s{sSo}, {hex(VAL)}")
    def pos(): return len(kseq) + len(vseq)
    def step(n=1):
        for _ in range(n):
            if len(kseq) < 32:
                j = len(kseq)
                A(f"s_add_u32 m0, s{sM}, {j*4096}"); so(j); pace(D)
                kseq.append(A.vmem(f"buffer_load_dwordx4 v{vKo + (j & 3)}, {sr(dK,4)}, s{sSo} offen nt lds"))
                if w1q: pace(D); lastA[0] = w1q.pop(0)()
            else:
                j = len(vseq)
                so(j); pace(DV)
                vseq.append(A.vmem(f"buffer_load_dwordx4 {ar(4*j,4)}, v{vVo}, {sr(dV,4)}, s{sSo} offen nt"))
    def auto():
        incomp[0] = 1
        if pos() < lim[0]: step(1)
        incomp[0] = 0
    def allred_rows(v, t, op):
        A(f"v_mov_b32 v{t}, v{v}"); A(f"v_permlane16_swap_b32 v{v}, v{t}"); A(f"{op} v{v}, v{v}, v{t}")
        A(f"v_mov_b32 v{t}, v{v}"); A(f"v_permlane32_swap_b32 v{v}, v{t}"); A(f"{op} v{v}, v{v}, v{t}")
    def allred64(v, t):
        for k in (8, 4, 2, 1): A(f"v_add_f32_dpp v{v}, v{v}, v{v} row_ror:{k} row_mask:0xf bank_mask:0xf")
        allred_rows(v, t, "v_add_f32")
    def unpack(dst, src, n):
        for k in range(n): A(f"v_and_b32 v{dst+2*k+1}, 0xffff0000, v{src+k}"); A(f"v_lshlrev_b32 v{dst+2*k}, 16, v{src+k}")
    def pk_sub(d, a, b): A(f"v_pk_add_f32 {vr(d,2)}, {vr(a,2)}, {vr(b,2)} op_sel_hi:[1,0] neg_lo:[0,1] neg_hi:[0,1]")
    def pk_scale(d, a, b): A(f"v_pk_mul_f32 {vr(d,2)}, {vr(a,2)}, {vr(b,2)} op_sel_hi:[1,0]")

    def srdW():
        A(f"s_mul_i32 s{sT1}, s{sS}, 288")
        A(f"s_mul_i32 s{sT0}, s{sG}, {72*1152}"); A(f"s_add_u32 s{sT0}, s{sT0}, s{sT1}"); srd(dW2, pW2, sT0, 71 * 1152 + 288)
        A(f"s_mul_i32 s{sT0}, s{sG}, {64*1152}"); A(f"s_add_u32 s{sT0}, s{sT0}, s{sT1}"); srd(dWO, pWO, sT0, 63 * 1152 + 288)
    step(1)
    A("s_waitcnt lgkmcnt(0)")
    A(f"s_load_dword s{sE}, s[{pWS}:{pWS+1}], 0")
    if probe2:
        A("s_lshr_b32 s100, s2, 3"); A(f"s_or_b32 s100, s100, s{sW}"); A("s_cbranch_scc1 L_pr2"); A(f"s_mov_b32 s100, s{sSt}")
        A("s_atomic_add s100, s[14:15], 0")
        A.label("L_pr2")
    srd(dWS, pWS, None, 0x800000 if stamps else WS_AC + 192 * 128)
    A(f"s_mov_b32 s{sMode}, {1 if force1 else 0}"); A(f"s_mov_b32 s{sIt}, 0")
    step(n0 - 1)
    C("layer norm of batch w, lanes 0..35 hold 16 values each; bf16 roundings as in the reference")
    A.wait_vm(x1)
    stamp()
    A.cyc = 0; lim[0] = D + 6; A.auto = auto
    xf = V.get(16); d16 = V.get(16); p2 = V.get(2); pm = V.get(2)
    unpack(xf, xr, 8)
    A(f"v_pk_add_f32 {vr(p2,2)}, {vr(xf,2)}, {vr(xf+2,2)}")
    for k in range(2, 8): A(f"v_pk_add_f32 {vr(p2,2)}, {vr(p2,2)}, {vr(xf+2*k,2)}")
    A(f"v_add_f32 v{pm}, v{p2}, v{p2+1}")
    allred64(pm, t0)
    A(f"v_mul_f32 v{pm}, {hex(f2u(1/576))}, v{pm}")
    for k in range(8): pk_sub(d16 + 2 * k, xf + 2 * k, pm)
    A(f"v_pk_mul_f32 {vr(p2,2)}, {vr(d16,2)}, {vr(d16,2)}")
    for k in range(1, 8): A(f"v_pk_fma_f32 {vr(p2,2)}, {vr(d16+2*k,2)}, {vr(d16+2*k,2)}, {vr(p2,2)}")
    A(f"v_cmp_gt_u32 vcc, 36, v{vL}"); A(f"v_add_f32 v{t1}, v{p2}, v{p2+1}"); A(f"v_cndmask_b32 v{t1}, 0, v{t1}, vcc")
    allred64(t1, t0)
    A(f"v_mul_f32 v{t1}, {hex(f2u(1/576))}, v{t1}")
    A(f"v_cvt_pk_bf16_f32 v{t0}, v{pm}, v{t1}")
    A(f"v_lshlrev_b32 v{pm}, 16, v{t0}"); A(f"v_and_b32 v{t1}, 0xffff0000, v{t0}")
    A(f"v_add_f32 v{t1}, {hex(f2u(1e-5))}, v{t1}")
    A(f"v_cvt_pk_bf16_f32 v{t1}, v{t1}, v{t1}"); A(f"v_lshlrev_b32 v{t1}, 16, v{t1}")
    A(f"v_sqrt_f32 v{t1}, v{t1}")
    A(f"v_cvt_pk_bf16_f32 v{t1}, v{t1}, v{t1}"); A(f"v_lshlrev_b32 v{t1}, 16, v{t1}")
    A(f"v_rcp_f32 v{p2}, v{t1}")
    for k in range(8): pk_sub(d16 + 2 * k, xf + 2 * k, pm)
    for k in range(8): A(f"v_cvt_pk_bf16_f32 v{xr+k}, v{d16+2*k}, v{d16+2*k+1}")
    unpack(xf, xr, 8)
    for k in range(8): pk_scale(xf + 2 * k, xf + 2 * k, p2)
    for k in range(8): A(f"v_cvt_pk_bf16_f32 v{xr+k}, v{xf+2*k}, v{xf+2*k+1}")
    A(f"s_mul_i32 s{sT0}, s{sS}, 9"); A(f"s_sub_u32 s{sT1}, s{sW}, s{sS}"); A(f"s_mul_i32 s{sT1}, s{sT1}, 288"); A(f"s_add_u32 s{sT1}, s{sT1}, {L_XN}")
    A(f"v_lshl_add_u32 v{t0}, v{vL}, 5, s{sT1}")
    with quiet():
        A(f"s_lshl_b64 exec, 0x1ff, s{sT0}")
        A(f"ds_write_b128 v{t0}, {vr(xr,4)}"); A(f"ds_write_b128 v{t0}, {vr(xr+4,4)} offset:16")
        A("s_mov_b64 exec, -1")
    V.put(xf, 16); V.put(d16, 16); V.put(p2, 2); V.put(pm, 2)
    A("s_waitcnt lgkmcnt(0)")
    V.put(xr, 8)
    C("tags of this launch; first value of the arrival counts")
    vT1 = V.get(); vT2 = V.get()
    A(f"s_add_u32 s{sE}, s{sE}, 1"); A(f"s_mul_i32 s{sT0}, s{sE}, 0x9E3779B1")
    A(f"s_getreg_b32 s{sT1}, hwreg(HW_REG_XCC_ID, 0, 4)"); A(f"s_lshl_b32 s{sT1}, s{sT1}, 28")
    A(f"s_add_u32 s{sT2}, s{sT0}, 0x4a3c5e12"); A(f"s_xor_b32 s{sT0}, s{sT0}, s{sT1}")
    A(f"v_mov_b32 v{vT1}, s{sT0}"); A(f"v_mov_b32 v{vT2}, s{sT2}")
    A(f"s_lshl_b32 s{sS0}, s{sE}, 8"); A(f"s_and_b32 s{sS0}, s{sS0}, 0x7fff00"); A(f"s_or_b32 s{sS0}, s{sS0}, 0x4b000000")
    if not lateinit: initacc()
    for r in range(4): A(f"s_mov_b32 s{sSel+r}, {hex(0x07060500 + r)}")
    A(f"s_mov_b32 s{sSelA}, 0x0c0c0400"); A(f"s_mov_b32 s{sSelB}, 0x04000c0c")
    def lanemask(s_, m): A(f"s_mov_b32 s{s_}, {hex(m)}"); A(f"s_mov_b32 s{s_+1}, {hex(m)}")
    lanemask(sU1, 0x00f000f0); lanemask(sU2, 0x0f000f00)
    A(f"s_mov_b32 s{sSpin}, {spin}")
    def tag(v, vT):
        for r in range(4): A(f"v_perm_b32 v{v+r}, v{v+r}, v{vT}, s{sSel+r}")
    def chk(v, dst, vT):
        A(f"v_perm_b32 v{t0}, v{v+1}, v{v}, s{sSelA}"); A(f"v_perm_b32 v{t1}, v{v+3}, v{v+2}, s{sSelB}")
        A(f"v_or_b32 v{t0}, v{t0}, v{t1}"); A(f"v_cmp_ne_u32 {dst}, v{t0}, v{vT}")
    def untag(d, v):
        for r in range(4): A(f"v_and_b32 v{d+r}, 0xffffff00, v{v+r}")
    def tred(v):
        A(f"v_permlane32_swap_b32 v{v}, v{v+2}"); A(f"v_permlane32_swap_b32 v{v+1}, v{v+3}")
        A(f"v_add_f32 v{v}, v{v}, v{v+2}"); A(f"v_add_f32 v{v+1}, v{v+1}, v{v+3}")
        A(f"v_permlane16_swap_b32 v{v}, v{v+1}"); A(f"v_add_f32 v{v}, v{v}, v{v+1}")
    C("addresses of the projection stage")
    vB3 = V.get(); vQ4 = V.get()
    A(f"v_and_b32 v{vB3}, 3, v{vL}"); A(f"v_lshrrev_b32 v{vQ4}, 2, v{vL}")
    aXb = V.get(); aWq = V.get(); aW1 = V.get(); aW1h = V.get(); aH1 = V.get()
    A(f"v_mul_u32_u24 v{aXb}, 288, v{vB3}"); A(f"v_lshl_add_u32 v{aXb}, v{vG}, 3, v{aXb}"); A(f"v_add_u32 v{aXb}, {L_XN}, v{aXb}")
    A(f"s_lshl_b32 s{sT0}, s{sW}, 5"); A(f"v_lshlrev_b32 v{t2}, 3, v{vB3}")
    A(f"v_lshl_add_u32 v{aWq}, v{vQ4}, 7, v{t2}"); A(f"s_add_u32 s{sT1}, s{sT0}, {L_WQ}"); A(f"v_add_u32 v{aWq}, s{sT1}, v{aWq}")
    A(f"v_mul_u32_u24 v{aW1h}, 144, v{vQ4}"); A(f"v_add_u32 v{aW1h}, v{aW1h}, v{t2}"); A(f"v_add_u32 v{aW1h}, {L_W1}, v{aW1h}")
    A(f"v_add_u32 v{aW1}, s{sT0}, v{aW1h}")
    A(f"s_lshl_b32 s{sT0}, s{sW}, 6"); A(f"v_lshlrev_b32 v{t2}, 4, v{vG}")
    A(f"v_lshl_add_u32 v{aH1}, v{vB3}, 8, v{t2}"); A(f"v_add_u32 v{aH1}, s{sT0}, v{aH1}")
    A(f"v_mul_u32_u24 v{t3}, 288, v{vB3}"); A(f"v_add_u32 v{t3}, v{t3}, v{t2}")
    A(f"s_add_u32 s{sT0}, s{sT0}, 1024"); A(f"v_add_u32 v{t0}, s{sT0}, v{t3}")
    A(f"v_cndmask_b32 v{aH1}, v{aH1}, v{t0}, {sr(sU1,2)}")
    A(f"v_add_u32 v{t0}, {1024+256}, v{t3}")
    A(f"v_cndmask_b32 v{aH1}, v{aH1}, v{t0}, {sr(sU2,2)}")
    A(f"s_lshl_b32 s{sT0}, 0x01000100, s{sW}"); A(f"s_or_b32 vcc_lo, s{sT0}, 0x00ff00ff"); A("s_mov_b32 vcc_hi, 0x00ff00ff")
    A(f"s_mul_i32 s{sT0}, s{sBOX}, {BOX}"); A(f"s_add_u32 s{sT0}, s{sT0}, {WS_BOX}")
    A(f"v_add_u32 v{aH1}, s{sT0}, v{aH1}"); A(f"v_mov_b32 v{t0}, {hex(OOB)}"); A(f"v_cndmask_b32 v{aH1}, v{t0}, v{aH1}, vcc")
    while len(kseq) < D + 6: step(1)
    assert not w1q
    A.wait_vm(lastA[0])
    C("B1: wq / w1 tiles and xn are in LDS")
    A("s_barrier")
    step(1); A.cyc = 0; lim[0] = 26
    stamp()
    fr = [V.get(24), V.get(24)]; acc = V.get(12, 4)
    def batchA(bi):
        f = fr[bi & 1]
        for k in range(3):
            st = 3 * bi + k
            A(f"ds_read_b64 {vr(f+8*k,2)}, v{aXb} offset:{st*32}")
            A(f"ds_read_b64_tr_b16 {vr(f+8*k+2,2)}, v{aWq} offset:{st*2048}")
            A(f"ds_read_b64_tr_b16 {vr(f+8*k+4,2)}, v{aW1} offset:{st*2304}")
            A(f"ds_read_b64_tr_b16 {vr(f+8*k+6,2)}, v{aW1h} offset:{st*2304+128}")
    def mfmaA(bi):
        f = fr[bi & 1]
        for k in range(3):
            for tl in range(3):
                c = "0" if (bi == 0 and k == 0) else vr(acc+4*tl, 4)
                A(f"v_mfma_f32_16x16x16_bf16 {vr(acc+4*tl,4)}, {vr(f+8*k+2+2*tl,2)}, {vr(f+8*k,2)}, {c}")
    batchA(0); A("s_waitcnt lgkmcnt(0)")
    batchA(1); mfmaA(0); A("s_waitcnt lgkmcnt(0)")
    A("s_nop 7")
    batchA(2); mfmaA(1); A("s_waitcnt lgkmcnt(0)")
    mfmaA(2)
    o4 = V.get(4, 4)
    for r in range(4): A(f"v_cndmask_b32 v{o4+r}, v{acc+r}, v{acc+4+r}, {sr(sU1,2)}")
    for r in range(4): A(f"v_cndmask_b32 v{o4+r}, v{o4+r}, v{acc+8+r}, {sr(sU2,2)}")
    tag(o4, vT1)
    A.vmem(f"buffer_store_dwordx4 {vr(o4,4)}, v{aH1}, {WS}, 0 offen")
    stamp()
    V.put(fr[0], 24); V.put(fr[1], 24); V.put(acc, 12)
    for r in (aXb, aWq, aW1, aW1h): V.put(r)
    step(1)
    assert len(kseq) <= 27
    C("B1b: the wq staging area may be overwritten by K")
    A("s_barrier")
    V.put(aH1); V.put(o4, 4)
    lim[0] = GK
    C("addresses of everything later, in the shadow of the K stream")
    aGq = V.get(); aGh = V.get(); aGh2 = V.get()
    A(f"v_mul_u32_u24 v{t2}, {BOX}, v{vG}"); A(f"v_lshl_add_u32 v{t2}, v{vI}, 4, v{t2}")
    A(f"s_lshl2_add_u32 s{sT0}, s{sHKV}, s{sW}"); A(f"s_mul_i32 s{sT0}, s{sT0}, {4*BOX}"); A(f"s_lshl_b32 s{sT1}, s{sB}, 8"); A(f"s_add_u32 s{sT0}, s{sT0}, s{sT1}"); A(f"s_add_u32 s{sT0}, s{sT0}, {WS_BOX}")
    A(f"v_add_u32 v{aGq}, s{sT0}, v{t2}")
    A(f"s_mul_i32 s{sT0}, s{sG}, {4*BOX}"); A(f"s_mul_i32 s{sT1}, s{sW}, 288"); A(f"s_add_u32 s{sT0}, s{sT0}, s{sT1}"); A(f"s_add_u32 s{sT0}, s{sT0}, {WS_BOX+1024}")
    A(f"v_add_u32 v{aGh}, s{sT0}, v{t2}")
    A(f"v_cmp_gt_u32 vcc, 2, v{vI}"); A(f"v_add_u32 v{aGh2}, 256, v{aGh}"); A(f"v_mov_b32 v{t0}, {hex(OOB)}")
    A(f"v_cndmask_b32 v{aGh2}, v{t0}, v{aGh2}, vcc")
    vM = V.get(4)
    A(f"v_and_b32 v{t0}, 1, v{vL}"); A(f"v_lshlrev_b32 v{t0}, 4, v{t0}"); A(f"v_mov_b32 v{t1}, 0xffff"); A(f"v_lshlrev_b32 v{t1}, v{t0}, v{t1}")
    A(f"v_bfe_u32 v{t0}, v{vL}, 1, 2")
    for k in range(4): A(f"v_cmp_eq_u32 vcc, {k}, v{t0}"); A(f"v_cndmask_b32 v{vM+k}, 0, v{t1}, vcc")
    aQw = V.get(); aHw = V.get(); aQr = V.get(); aKr = V.get(4)
    A(f"v_lshl_add_u32 v{t0}, v{vI}, 2, v{vG}"); A(f"v_lshlrev_b32 v{t0}, 1, v{t0}")
    A(f"s_lshl_b32 s{sT0}, s{sW}, 7"); A(f"s_add_u32 s{sT0}, s{sT0}, {L_Q}"); A(f"v_add_u32 v{aQw}, s{sT0}, v{t0}")
    A(f"s_mul_i32 s{sT0}, s{sW}, 160"); A(f"s_add_u32 s{sT0}, s{sT0}, {L_H}"); A(f"v_add_u32 v{aHw}, s{sT0}, v{t0}")
    A(f"v_lshrrev_b32 v{t0}, 3, v{vI}"); A(f"v_lshlrev_b32 v{t0}, 8, v{t0}"); A(f"v_lshl_add_u32 v{aQr}, v{vG}, 4, v{t0}"); A(f"v_add_u32 v{aQr}, {L_Q}, v{aQr}")
    A(f"v_xor_b32 v{t0}, v{vG}, v{vI}"); A(f"v_lshlrev_b32 v{t0}, 4, v{t0}")
    A(f"v_lshl_add_u32 v{t0}, v{vB3}, 12, v{t0}"); A(f"v_lshrrev_b32 v{t1}, 2, v{vI}"); A(f"v_lshl_add_u32 v{t0}, v{t1}, 8, v{t0}")
    A(f"v_add_u32 v{aKr}, s{sM}, v{t0}")
    for k in range(1, 4): A(f"v_xor_b32 v{aKr+k}, {k*64}, v{aKr}")
    aOPw = V.get(); aOPr = V.get(); aH2 = V.get(); aG2 = V.get(); aGm = V.get(); aOw = V.get(); aOr = V.get(); aHr = V.get()
    aW = V.get(); aAc = V.get(); aOut = V.get(); xr2 = V.get(2)
    A(f"v_lshrrev_b32 v{t0}, 1, v{vG}"); A(f"v_lshlrev_b32 v{t0}, 9, v{t0}"); A(f"v_lshl_add_u32 v{t0}, v{vI}, 5, v{t0}")
    A(f"v_and_b32 v{t1}, 1, v{vG}"); A(f"v_lshl_add_u32 v{t0}, v{t1}, 4, v{t0}"); A(f"v_add_u32 v{aOPw}, s{sM}, v{t0}")
    A(f"s_lshl_b32 s{sT1}, s{sW}, 8"); A(f"v_lshl_add_u32 v{aOPr}, v{vI}, 4, s{sT1}")
    A(f"s_mul_i32 s{sT0}, s{sBOX}, {BOX}"); A(f"s_add_u32 s{sT0}, s{sT0}, {WS_BOX}"); A(f"v_add_u32 v{aH2}, s{sT0}, v{aOPr}")
    A(f"v_and_b32 v{t0}, 12, v{vL}"); A(f"v_add_u32 v{t0}, v{t0}, v{vG}"); A(f"v_mul_u32_u24 v{t0}, {BOX}, v{t0}")
    A(f"s_mul_i32 s{sT0}, s{sHKV}, {16*BOX}"); A(f"s_add_u32 s{sT0}, s{sT0}, {WS_BOX}")
    A(f"s_add_u32 s{sT1}, s{sT0}, {MLO}"); A(f"v_add_u32 v{aGm}, s{sT1}, v{t0}")
    A(f"s_lshl2_add_u32 s{sT1}, s{sB}, s{sW}"); A(f"s_lshl_b32 s{sT1}, s{sT1}, 6"); A(f"s_add_u32 s{sT0}, s{sT0}, s{sT1}")
    A(f"v_lshl_add_u32 v{t0}, v{vB3}, 4, v{t0}"); A(f"v_add_u32 v{aG2}, s{sT0}, v{t0}")
    A(f"s_lshr_b32 s{sT0}, s{sW}, 1"); A(f"s_lshl_b32 s{sT0}, s{sT0}, 6"); A(f"s_and_b32 s{sT1}, s{sW}, 1"); A(f"s_lshl3_add_u32 s{sT0}, s{sT1}, s{sT0}"); A(f"s_add_u32 s{sT0}, s{sT0}, {L_O}")
    A(f"v_and_b32 v{t0}, 12, v{vL}"); A(f"v_lshlrev_b32 v{t0}, 5, v{t0}"); A(f"v_lshl_add_u32 v{t0}, v{vB3}, 4, v{t0}"); A(f"v_lshl_add_u32 v{t0}, v{vG}, 1, v{t0}")
    A(f"v_add_u32 v{aOw}, s{sT0}, v{t0}")
    A(f"v_and_b32 v{t1}, 3, v{vQ4}")
    A(f"v_lshlrev_b32 v{t0}, 7, v{t1}"); A(f"v_lshl_add_u32 v{t0}, v{vG}, 4, v{t0}"); A(f"v_add_u32 v{aOr}, {L_O}, v{t0}")
    A(f"v_mul_u32_u24 v{t0}, 160, v{t1}"); A(f"v_lshl_add_u32 v{t0}, v{vG}, 3, v{t0}"); A(f"v_add_u32 v{aHr}, {L_H}, v{t0}")
    A(f"v_mul_u32_u24 v{t0}, 288, v{vQ4}"); A(f"v_lshl_add_u32 v{t0}, v{vB3}, 3, v{t0}")
    A(f"s_mul_i32 s{sT2}, s{sW}, 96"); A(f"s_add_u32 s{sT0}, s{sT2}, {L_WO}"); A(f"v_add_u32 v{aW}, s{sT0}, v{t0}")
    A(f"s_mul_i32 s{sT0}, s{sS}, 3"); A(f"s_add_u32 s{sT0}, s{sT0}, s{sW}"); A(f"s_lshl_b32 s{sT0}, s{sT0}, 11"); A(f"s_add_u32 s{sT0}, s{sT0}, {WS_AC}")
    A(f"v_lshlrev_b32 v{t0}, 9, v{vG}"); A(f"v_lshl_add_u32 v{t0}, v{vI}, 2, v{t0}"); A(f"v_add_u32 v{aAc}, s{sT0}, v{t0}")
    srdW()
    A(f"s_add_u32 s{sT0}, s{sT1}, s{sT2}")
    A(f"v_mul_u32_u24 v{t0}, 1152, v{t1}"); A(f"v_lshl_add_u32 v{t0}, v{vB3}, 5, v{t0}")
    A(f"v_lshl_add_u32 v{t0}, v{vG}, 3, v{t0}"); A(f"v_add_u32 v{aOut}, s{sT0}, v{t0}")
    lanemask(sU1, 0x22222222); lanemask(sU2, 0x44444444); lanemask(sU3, 0x88888888)
    A(f"v_mov_b32 v{t0}, {hex(OOB)}"); A(f"v_cndmask_b32 v{aOut}, v{aOut}, v{t0}, {sr(sU3,2)}")
    C("the residual x enters through the workgroups with g = 0")
    srd(dX, pX, None, 4608); srd(dOUT, pOUT, None, 4608)
    A(f"s_cmp_eq_u32 s{sG}, 0"); A(f"s_cselect_b32 s{dX+2}, s{dX+2}, 0")
    A.vmem(f"buffer_load_dwordx2 {vr(xr2,2)}, v{aOut}, {sr(dX,4)}, 0 offen")
    A.auto = None
    while len(kseq) < GK: step(1)
    stamp()
    gq = V.get(4, 4); gh = V.get(4, 4); gh2 = V.get(4, 4); cp = V.get(4, 4); cpa = V.get()
    def gatherH1():
        A.vmem(f"buffer_load_dwordx4 {vr(gq,4)}, v{aGq}, {WS}, 0 offen sc1")
        A.vmem(f"buffer_load_dwordx4 {vr(gh,4)}, v{aGh}, {WS}, 0 offen sc1")
        return A.vmem(f"buffer_load_dwordx4 {vr(gh2,4)}, v{aGh2}, {WS}, 0 offen sc1")
    C("gather the q and h partials")
    g1 = gatherH1()
    step(D)
    A.wait_vm(g1)
    stamp()
    A.label("L_chk1")
    chk(gq, sr(sP, 2), vT1); chk(gh, sr(sP + 2, 2), vT1); chk(gh2, "vcc", vT1)
    A("s_and_b32 vcc_lo, vcc_lo, 0x00030003"); A("s_and_b32 vcc_hi, vcc_hi, 0x00030003")
    A(f"s_or_b64 vcc, vcc, {sr(sP,2)}"); A(f"s_or_b64 vcc, vcc, {sr(sP+2,2)}")
    A("s_cbranch_scc1 L_slow1")
    A.label("L_ok1")
    spinrec(58)
    def copybox(nm):
        C("write this workgroup's valid q / h granules through to memory, for readers on other XCDs")
        A(f"s_mul_i32 s{sT0}, s{sBOX}, {BOX}"); A(f"s_add_u32 s{sT0}, s{sT0}, {WS_BOX}"); A(f"v_lshl_add_u32 v{cpa}, v{vL}, 4, s{sT0}")
        for k in range(3):
            if k == 2: A("s_mov_b64 exec, 0xff")
            A.vmem(f"buffer_load_dwordx4 {vr(cp,4)}, v{cpa}, {WS}, 0 offen offset:{k*1024} sc1")
            A("s_waitcnt vmcnt(0)")
            chk(cp, "vcc", vT1)
            A("s_andn2_b64 exec, exec, vcc"); A(f"s_cbranch_execz L_cp{nm}{k}")
            A.vmem(f"buffer_store_dwordx4 {vr(cp,4)}, v{cpa}, {WS}, 0 offen offset:{k*1024} sc1")
            A.label(f"L_cp{nm}{k}")
            A("s_mov_b64 exec, -1"); A("s_waitcnt vmcnt(0)")
    def slow1():
        A.label("L_slow1"); bounded()
        C("a granule of this launch from another XCD differs from the own tag in the top nibble only")
        A(f"s_mov_b64 {sr(sP,2)}, 0")
        for v in (gq, gh, gh2):
            if v == gh2: A("s_mov_b32 exec_lo, 0x00030003"); A("s_mov_b32 exec_hi, 0x00030003")
            chk(v, sr(sP + 2, 2), vT1)
            A(f"v_xor_b32 v{t0}, v{t0}, v{vT1}"); A(f"v_lshlrev_b32 v{t0}, 4, v{t0}"); A(f"v_cmp_ne_u32 vcc, 0, v{t0}")
            A(f"s_or_b64 {sr(sP,2)}, {sr(sP,2)}, vcc")
            A(f"s_andn2_b64 vcc, {sr(sP+2,2)}, vcc"); A(f"s_cselect_b32 s{sMode}, 1, s{sMode}")
        A("s_mov_b64 exec, -1")
        A(f"s_cmp_eq_u64 {sr(sP,2)}, 0"); A("s_cbranch_scc1 L_ok1")
        A(f"s_add_u32 s{sIt}, s{sIt}, 1"); A(f"s_cmp_lt_u32 s{sIt}, 4"); A("s_cbranch_scc1 L_slow1b")
        copybox("a")
        A.label("L_slow1b")
        gatherH1(); A("s_waitcnt vmcnt(0)"); A("s_branch L_chk1")
    slow.append(slow1)
    def pubstore(nm, text):
        A(f"s_cmp_lg_u32 s{sMode}, 0"); A(f"s_cbranch_scc1 L_alt{nm}")
        A.vmem(text)
        A.label(f"L_altb{nm}")
        def alt():
            A.label(f"L_alt{nm}"); A.vmem(text + " sc1"); A("s_nop 1"); A(f"s_branch L_altb{nm}")
        slow.append(alt)
    step(1); A.cyc = 0; lim[0] = 60; A.auto = auto
    for v in (gq, gh, gh2): untag(v, v)
    for v in (gq, gh, gh2): tred(v)
    A(f"v_cvt_pk_bf16_f32 v{gq}, v{gq}, v{gq}"); A(f"ds_write_b16 v{aQw}, v{gq}")
    A(f"s_lshl2_add_u32 s{sT0}, s{sW}, {L_FL}"); A(f"v_mov_b32 v{t2}, s{sT0}"); A(f"v_mov_b32 v{t3}, s{sMode}")
    A(f"ds_write_b32 v{t2}, v{t3}")
    C("silu")
    A(f"v_cvt_pk_bf16_f32 v{t0}, v{gh}, v{gh2}")
    A(f"v_lshlrev_b32 v{gh}, 16, v{t0}"); A(f"v_and_b32 v{gh2}, 0xffff0000, v{t0}")
    for v in (gh, gh2): A(f"v_mul_f32 v{v+1}, {hex(LOG2E | 0x80000000)}, v{v}")
    for v in (gh, gh2): A(f"v_exp_f32 v{v+1}, v{v+1}")
    for v in (gh, gh2): A(f"v_add_f32 v{v+1}, 1.0, v{v+1}")
    for v in (gh, gh2): A(f"v_rcp_f32 v{v+1}, v{v+1}")
    for v in (gh, gh2): A(f"v_mul_f32 v{v}, v{v}, v{v+1}")
    A(f"v_cvt_pk_bf16_f32 v{t0}, v{gh}, v{gh2}")
    A(f"ds_write_b16 v{aHw}, v{t0}")
    with quiet():
        A("s_mov_b32 exec_lo, 0x000f000f"); A("s_mov_b32 exec_hi, 0x000f000f")
        A(f"ds_write_b16_d16_hi v{aHw}, v{t0} offset:128")
        A("s_mov_b64 exec, -1")
    step(1); A.cyc = 0
    A("s_waitcnt lgkmcnt(0)")
    C("B2: q, silu(h) and the placement flags are in LDS")
    A("s_barrier")
    stamp()
    A(f"v_mov_b32 v{t2}, {L_FL}"); A(f"ds_read_b128 {vr(gq,4)}, v{t2}")
    def modecheck():
        with quiet():
            A(f"v_or3_b32 v{t2}, v{gq}, v{gq+1}, v{gq+2}"); A(f"v_or_b32 v{t2}, v{t2}, v{gq+3}")
            A(f"v_readfirstlane_b32 s{sMode}, v{t2}")
            A(f"s_cmp_lg_u32 s{sMode}, 0"); A("s_cbranch_scc1 L_mode1")
            A.label("L_mode1b")
        def mode1(): A.label("L_mode1"); copybox("b"); A("s_branch L_mode1b")
        slow.append(mode1)
    V.put(aQw); V.put(aHw)
    C("scores: lane (g', n) register 4 t + r = key row g' of round 4 t + r, head n >> 3")
    qf = V.get(16, 4); kf = [V.get(16, 4), V.get(16, 4)]; S = V.get(32, 4)
    for st in range(4): A(f"ds_read_b128 {vr(qf+4*st,4)}, v{aQr} offset:{st*64}")
    def rdK(t):
        if 4 * t + 3 >= GK:
            while pos() < 4 * t + 3 + D: step(1); A.cyc = 0
            A.wait_vm(kseq[4 * t + 3])
        if t == 4:
            for k in range(4): A(f"v_add_u32 v{aKr+k}, 0x10000, v{aKr+k}")
        for st in range(4): A(f"ds_read_b128 {vr(kf[t&1]+4*st,4)}, v{aKr+st} offset:{(t&3)*16384}")
    rdK(0)
    for t in range(8):
        if t < 7: rdK(t + 1); A("s_waitcnt lgkmcnt(4)")
        else: A("s_waitcnt lgkmcnt(0)")
        for st in range(4):
            c = "0" if st == 0 else vr(S+4*t, 4)
            A(f"v_mfma_f32_16x16x32_bf16 {vr(S+4*t,4)}, {vr(kf[t&1]+4*st,4)}, {vr(qf+4*st,4)}, {c}")
        if t < 7: A("s_nop 3")
        if t == 0: modecheck()
    V.put(qf, 16); V.put(kf[0], 16); V.put(kf[1], 16); V.put(aQr); V.put(aKr, 4); V.put(vKo, 4)
    for v in (gq, gh, gh2, cp): V.put(v, 4)
    V.put(cpa)
    pc = V.get(2); tp = V.get(8); ml = V.get(2); pl = V.get(2)
    A(f"v_mov_b32 v{pc}, {hex(SCALE)}")
    for h in range(2):
        for k in range(8): A(f"v_cvt_pk_bf16_f32 v{tp+k}, v{S+16*h+2*k}, v{S+16*h+2*k+1}")
        unpack(S + 16 * h, tp, 8)
        for k in range(8): pk_scale(S + 16 * h + 2 * k, S + 16 * h + 2 * k, pc)
        for k in range(8): A(f"v_cvt_pk_bf16_f32 v{tp+k}, v{S+16*h+2*k}, v{S+16*h+2*k+1}")
        unpack(S + 16 * h, tp, 8)
    A(f"v_max_f32 v{ml}, v{S}, v{S+1}")
    for k in range(1, 16): A(f"v_max3_f32 v{ml}, v{S+2*k}, v{S+2*k+1}, v{ml}")
    allred_rows(ml, t0, "v_max_f32")
    A(f"v_mov_b32 v{pc}, {hex(LOG2E)}")
    for k in range(16): pk_sub(S + 2 * k, S + 2 * k, ml)
    for k in range(16): pk_scale(S + 2 * k, S + 2 * k, pc)
    for k in range(32): A(f"v_exp_f32 v{S+k}, v{S+k}")
    A(f"v_pk_add_f32 {vr(pl,2)}, {vr(S,2)}, {vr(S+2,2)}")
    for k in range(2, 16): A(f"v_pk_add_f32 {vr(pl,2)}, {vr(pl,2)}, {vr(S+2*k,2)}")
    A(f"v_add_f32 v{ml+1}, v{pl}, v{pl+1}")
    allred_rows(ml + 1, t0, "v_add_f32")
    A(f"s_lshl_b32 s{sT0}, s{sW}, 4"); A(f"s_add_u32 s{sT0}, s{sT0}, {L_ML}")
    A(f"v_and_b32 v{t0}, 8, v{vL}"); A(f"v_add_u32 v{t0}, s{sT0}, v{t0}")
    A(f"ds_write_b64 v{t0}, {vr(ml,2)}")
    for k in range(32): A(f"v_cvt_pk_bf16_f32 v{S+k}, v{S+k}, v{S+k}")
    A("s_waitcnt lgkmcnt(0)")
    C("B3: K is consumed, the waves' (max, sum) are in LDS")
    A("s_barrier")
    stamp()
    A(f"v_lshrrev_b32 v{t0}, 5, v{vL}"); A(f"v_lshlrev_b32 v{t0}, 3, v{t0}"); A(f"v_add_u32 v{t1}, s{sT0}, v{t0}"); A(f"v_add_u32 v{t0}, {L_ML}, v{t0}")
    for k in range(4): A(f"ds_read_b64 {vr(tp+2*k,2)}, v{t0} offset:{16*k}")
    A(f"ds_read_b32 v{pl}, v{t1}")
    A("s_waitcnt lgkmcnt(0)")
    vF = V.get(2); g4 = V.get(4, 4)
    A(f"v_max3_f32 v{g4}, v{tp}, v{tp+2}, v{tp+4}"); A(f"v_max_f32 v{g4}, v{g4}, v{tp+6}")
    for r in (tp, tp + 2, tp + 4, tp + 6, pl): A(f"v_sub_f32 v{r}, v{r}, v{g4}")
    for r in (tp, tp + 2, tp + 4, tp + 6, pl): A(f"v_mul_f32 v{r}, {hex(LOG2E)}, v{r}")
    for r in (tp, tp + 2, tp + 4, tp + 6): A(f"v_exp_f32 v{r}, v{r}")
    A(f"v_exp_f32 v{vF}, v{pl}")
    A(f"v_mul_f32 v{g4+1}, v{tp}, v{tp+1}")
    for k in range(1, 4): A(f"v_fmac_f32 v{g4+1}, v{tp+2*k}, v{tp+2*k+1}")
    A(f"v_mov_b32 v{g4+2}, v{g4}"); A(f"v_mov_b32 v{g4+3}, v{g4+1}")
    A(f"v_permlane32_swap_b32 v{g4}, v{g4+2}"); A(f"v_permlane32_swap_b32 v{g4+1}, v{g4+3}")
    tag(g4, vT2)
    A(f"s_mul_i32 s{sT0}, s{sBOX}, {BOX}"); A(f"s_add_u32 s{sT1}, s{sT0}, {WS_BOX+MLO}")
    A(f"v_cmp_gt_u32 vcc, 8, v0"); A(f"v_mov_b32 v{t0}, {hex(OOB)}"); A(f"v_lshl_add_u32 v{t1}, v0, 4, s{sT1}")
    A(f"v_cndmask_b32 v{t0}, v{t0}, v{t1}, vcc")
    A.auto = None
    C("publish the workgroup's (max, sum) of both heads")
    pubstore("m", f"buffer_store_dwordx4 {vr(g4,4)}, v{t0}, {WS}, 0 offen")
    V.put(pc, 2); V.put(tp, 8); V.put(ml, 2); V.put(pl, 2)
    print("V rounds issued at the end of the softmax:", len(vseq), file=sys.stderr)
    oacc = V.get(4, 4); NQ = 8; aq = V.get(4 * NQ, 4)
    built = [0]; done = [0]
    def build(n):
        for _ in range(n):
            j = built[0]
            if j >= 32: return
            assert j - done[0] < NQ
            for k in range(4): A(f"v_and_b32 v{aq+4*(j%NQ)+k}, v{S+j}, v{vM+k}")
            built[0] += 1
    def pv():
        j = done[0]
        assert built[0] > j
        A.wait_vm(vseq[j])
        A(f"v_mfma_f32_16x16x32_bf16 {vr(oacc,4)}, {vr(aq+4*(j%NQ),4)}, {ar(4*j,4)}, {'0' if j == 0 else vr(oacc,4)}")
        done[0] += 1
    gp = V.get(4, 4); gm = V.get(4, 4); vWg = V.get(2); xc = V.get(4, 4)
    unpack(xc, xr2, 2)
    def gatherO(): return A.vmem(f"buffer_load_dwordx4 {vr(gp,4)}, v{aG2}, {WS}, 0 offen sc1")
    def gatherML(): return A.vmem(f"buffer_load_dwordx4 {vr(gm,4)}, v{aGm}, {WS}, 0 offen sc1")
    build(2)
    assert len(vseq) < GM
    while len(vseq) < 32:
        step(1)
        if len(vseq) == GM: gml = gatherML()
        n = 0
        while done[0] < min(len(vseq) - DV - 1, GM - 1) and n < 4: pv(); build(1); n += 1
    V.put(g4, 4)
    stamp()
    def weights():
        C("softmax weights of the four splits from the gathered (max, sum)")
        A.wait_vm(gml)
        A.label("L_chk2")
        chk(gm, "vcc", vT2)
        A("s_cbranch_vccnz L_slow2")
        spinrec(59)
        def slow2(): A.label("L_slow2"); bounded(); gatherML(); A("s_waitcnt vmcnt(0)"); A("s_branch L_chk2")
        slow.append(slow2)
        A(f"s_cmp_ge_u32 s{sB}, 2"); A("s_cselect_b64 vcc, -1, 0")
        A(f"v_cndmask_b32 v{t2}, v{gm}, v{gm+2}, vcc"); A(f"v_cndmask_b32 v{t3}, v{gm+1}, v{gm+3}, vcc")
        A(f"v_and_b32 v{t2}, 0xffffff00, v{t2}"); A(f"v_and_b32 v{t3}, 0xffffff00, v{t3}")
        A(f"v_mov_b32 v{vWg}, v{t2}"); allred_rows(vWg, t0, "v_max_f32")
        A(f"v_sub_f32 v{t2}, v{t2}, v{vWg}"); A(f"v_mul_f32 v{t2}, {hex(LOG2E)}, v{t2}"); A(f"v_exp_f32 v{t2}, v{t2}")
        A(f"v_mul_f32 v{t3}, v{t2}, v{t3}"); allred_rows(t3, t0, "v_add_f32")
        A(f"v_rcp_f32 v{t3}, v{t3}"); A(f"v_mul_f32 v{vWg}, v{t2}, v{t3}")
    C("w2 and wo tiles -> LDS behind V")
    tail = ragged(dW2, L_W2, 6, 3641, 864) + ragged(dWO, L_WO, 5, 3641, 864)
    wseq = []
    while len(tail) > hold:
        pace(DW)
        wseq.append(tail.pop(0)())
        while done[0] < min(32 + len(wseq) - DW - 1, GM - 1): build(NQ - (built[0] - done[0])); pv()
    while done[0] < 32:
        build(NQ - (built[0] - done[0])); pv()
        if done[0] == GM: weights()
    stamp()
    pk_scale(oacc, oacc, vF); pk_scale(oacc + 2, oacc + 2, vF)
    A(f"ds_write_b128 v{aOPw}, {vr(oacc,4)}")
    A("s_waitcnt lgkmcnt(0)")
    C("B4: the waves' o are in LDS; wave w sums and publishes a quarter")
    A("s_barrier")
    V.put(S, 32); V.put(aq, 4 * NQ); V.put(vM, 4)
    r16 = V.get(16, 4)
    A("s_mov_b64 exec, 0xffff")
    for k in range(4): A(f"ds_read_b128 {vr(r16+4*k,4)}, v{aOPr} offset:{L_OP + 1024*k}")
    A("s_waitcnt lgkmcnt(2)")
    for h in range(2): A(f"v_pk_add_f32 {vr(r16+2*h,2)}, {vr(r16+2*h,2)}, {vr(r16+4+2*h,2)}")
    A("s_waitcnt lgkmcnt(0)")
    for h in range(2): A(f"v_pk_add_f32 {vr(r16+8+2*h,2)}, {vr(r16+8+2*h,2)}, {vr(r16+12+2*h,2)}")
    for h in range(2): A(f"v_pk_add_f32 {vr(r16+2*h,2)}, {vr(r16+2*h,2)}, {vr(r16+8+2*h,2)}")
    tag(r16, vT2)
    pubstore("o", f"buffer_store_dwordx4 {vr(r16,4)}, v{aH2}, {WS}, 0 offen")
    A("s_mov_b64 exec, -1")
    stamp()
    g2 = None
    while tail:
        wseq.append(tail.pop(0)())
        if len(tail) == hold - pp and tail: g2 = gatherO()
    hf = V.get(10, 4); w2f = V.get(36, 4); wof = V.get(24, 4); yacc = V.get(12, 4)
    W2D = L_W2 - L_WO
    for st in range(5): A(f"ds_read_b64 {vr(hf+2*st,2)}, v{aHr} offset:{st*32}")
    C("the polls of o overlap: a granule that has turned valid stays valid")
    g3 = gatherO()
    if g2 is None: g2 = g3
    A(f"s_cmp_eq_u32 s{sW}, 3")
    A.wait_vm(wseq[5], "lgkmcnt(0)", trust=True)
    C("B5: w2 tile landed")
    A("s_barrier")
    stamp()
    gatherO()
    A("s_cbranch_scc1 L_noffn")
    for st in (4, 0, 1, 2, 3):
        for tl in range(3): A(f"ds_read_b64_tr_b16 {vr(w2f+12*tl+2*st,2)}, v{aW} offset:{W2D+st*4608+32*tl}")
    A("s_waitcnt lgkmcnt(12)")
    for tl in range(3): A(f"v_mfma_f32_16x16x16_bf16 {vr(yacc+4*tl,4)}, {vr(w2f+12*tl+8,2)}, {vr(hf+8,2)}, {vr(xc,4)}")
    for st in range(2):
        A(f"s_waitcnt lgkmcnt({6-6*st})")
        for tl in range(3): A(f"v_mfma_f32_16x16x32_bf16 {vr(yacc+4*tl,4)}, {vr(w2f+12*tl+4*st,4)}, {vr(hf+4*st,4)}, {vr(yacc+4*tl,4)}")
    A.label("L_noffn")
    gatherO()
    A.wait_vm(g2)
    stamp()
    A.label("L_chk3")
    chk(gp, "vcc", vT2)
    A("s_cbranch_vccnz L_slow3")
    spinrec(60)
    def slow3():
        A.label("L_slow3"); bounded()
        A("s_mov_b64 exec, vcc"); gatherO(); A("s_mov_b64 exec, -1")
        A("s_waitcnt vmcnt(1)"); A("s_branch L_chk3")
    slow.append(slow3)
    stamp()
    go = V.get(4, 4)
    untag(go, gp); pk_scale(go, go, vWg); pk_scale(go + 2, go + 2, vWg)
    tred(go)
    A(f"v_cvt_pk_bf16_f32 v{go}, v{go}, v{go}")
    A(f"ds_write_b16 v{aOw}, v{go}")
    if lateinit:
        with uncounted(): initacc()
        A("s_waitcnt vmcnt(0)")
    A(f"s_add_u32 s{sT0}, s{sS0}, 63"); A(f"v_mov_b32 v{t2}, s{sT0}"); A(f"v_mov_b32 v{t1}, {hex(OOB)}")
    A(f"s_cmp_eq_u32 s{sW}, 3")
    A.wait_vm(wseq[-1], "lgkmcnt(0)")
    C("B6: normalised o and the wo tile are in LDS")
    A("s_barrier")
    A("s_cbranch_scc1 L_fin")
    of = V.get(8, 4)
    for st in range(2):
        A(f"ds_read_b128 {vr(of+4*st,4)}, v{aOr} offset:{64*st}")
        for k in range(2):
            for tl in range(3): A(f"ds_read_b64_tr_b16 {vr(wof+8*tl+4*st+2*k,2)}, v{aW} offset:{(2*st+k)*4608+32*tl}")
    for st in range(2):
        A(f"s_waitcnt lgkmcnt({7-7*st})")
        for tl in range(3): A(f"v_mfma_f32_16x16x32_bf16 {vr(yacc+4*tl,4)}, {vr(wof+8*tl+4*st,4)}, {vr(of+4*st,4)}, {vr(yacc+4*tl,4)}")
    C("add into the accumulators; 63 earlier arrivals mean that the returned value completes the sum")
    own = V.get(4, 4); ret = V.get(4, 4); cur = V.get(); dc = V.get(4)
    for r in range(4): A(f"v_cndmask_b32 v{own+r}, v{yacc+r}, 1.0, {sr(sU3,2)}")
    for r in range(4): A(f"v_cndmask_b32 v{own+r}, v{own+r}, v{yacc+4+r}, {sr(sU1,2)}")
    def atom(r): return A.vmem(f"buffer_atomic_add_f32 v{ret+r}, v{aAc}, {WS}, 0 offen offset:{128*r} sc0 sc1")
    for r in range(4): A(f"v_cndmask_b32 v{ret+r}, v{own+r}, v{yacc+8+r}, {sr(sU2,2)}"); atom(r)
    stamp()
    for r in range(4): A(f"v_cndmask_b32 v{own+r}, v{own+r}, v{yacc+8+r}, {sr(sU2,2)}")
    def arrivals(d, v): A(f"v_sub_u32_dpp v{d}, v{v}, v{t2} quad_perm:[3,3,3,3] row_mask:0xf bank_mask:0xf")
    A("s_waitcnt vmcnt(2)")
    A.label("L_chk4")
    arrivals(dc, ret); arrivals(dc + 1, ret + 1)
    A(f"v_pk_add_f32 {vr(of,2)}, {vr(ret,2)}, {vr(own,2)}")
    A(f"v_or_b32 v{t0}, v{dc}, v{dc+1}")
    A(f"v_cvt_pk_bf16_f32 v{of+4}, v{of}, v{of+1}")
    A("s_waitcnt vmcnt(0)")
    arrivals(dc + 2, ret + 2); arrivals(dc + 3, ret + 3)
    A(f"v_or3_b32 v{t0}, v{t0}, v{dc+2}, v{dc+3}")
    A(f"v_cmp_eq_u32 vcc, 0, v{t0}")
    A(f"v_pk_add_f32 {vr(of+2,2)}, {vr(ret+2,2)}, {vr(own+2,2)}")
    A(f"v_cvt_pk_bf16_f32 v{of+5}, v{of+2}, v{of+3}")
    A(f"v_cndmask_b32 v{of+6}, v{t1}, v{aOut}, vcc")
    A.vmem(f"buffer_store_dwordx2 {vr(of+4,2)}, v{of+6}, {sr(dOUT,4)}, 0 offen")
    stamp()
    A(f"v_min3_u32 v{t3}, v{dc}, v{dc+1}, v{dc+2}"); A(f"v_min_u32 v{t3}, v{t3}, v{dc+3}"); A(f"s_movk_i32 s{sT0}, -63")
    A(f"v_cmp_gt_u32 {sr(sP,2)}, s{sT0}, v{t3}")
    A(f"v_cmp_eq_u32 {sr(sL,2)}, 0, v{dc}")
    A(f"s_andn2_b64 {sr(sP,2)}, {sr(sP,2)}, vcc")
    def singles():
        C("last arrival on some of the four lines only: single elements")
        sQ = 4
        A(f"v_cndmask_b32 v{of+7}, v{t1}, v{aOut}, {sr(sP,2)}")
        for r in range(1, 4): A(f"v_cmp_eq_u32 {sr(sQ+2*r,2)}, 0, v{dc+r}")
        for r in range(4):
            A(f"v_cndmask_b32 v{of+r}, v{t1}, v{of+7}, {sr(sQ+2*r if r else sL,2)}")
            A.vmem(f"buffer_store_short{'_d16_hi' if r & 1 else ''} v{of+4+(r>>1)}, v{of+r}, {sr(dOUT,4)}, 0 offen offset:{2*r}")
        for r in range(4): A(f"v_add_u32 v{dc+r}, 63, v{dc+r}")
        A(f"v_max3_u32 v{t3}, v{dc}, v{dc+1}, v{dc+2}"); A(f"v_max_u32 v{t3}, v{t3}, v{dc+3}")
        A(f"v_cmp_lt_u32 vcc, 63, v{t3}")
    A("s_cbranch_scc0 L_mixedb"); singles(); A("s_cbranch_vccnz L_mixed")
    A.label("L_mixedb")
    def mixed():
        A.label("L_mixed")
        C("an add that reached a line before its initialisation is lost: wait for the initialisation, add again")
        bounded()
        for r in range(4):
            A(f"v_cmp_lt_u32 vcc, 63, v{dc+r}"); A("s_and_b64 exec, exec, vcc"); A(f"s_cbranch_scc0 L_rt{r}")
            A.vmem(f"buffer_load_dword v{cur}, v{aAc}, {WS}, 0 offen offset:{128*r} sc1")
            A("s_waitcnt vmcnt(0)")
            arrivals(t0, cur); A(f"v_add_u32 v{t0}, 63, v{t0}")
            A(f"v_cmp_ge_u32 vcc, 63, v{t0}"); A("s_and_b64 exec, exec, vcc"); A(f"s_cbranch_scc0 L_rt{r}")
            A(f"v_mov_b32 v{ret+r}, v{own+r}"); atom(r)
            A("s_waitcnt vmcnt(0)")
            A.label(f"L_rt{r}")
            A("s_mov_b64 exec, -1")
        A("s_branch L_chk4")
    slow.append(mixed)
    C("the last arrival on the first chunk has seen every workgroup past its read of the epoch word: advance it")
    A(f"s_or_b32 s{sT0}, s{sS}, s{sW}"); A("s_cbranch_scc1 L_fin")
    A(f"s_bitcmp1_b32 s{sL}, 3"); A("s_cbranch_scc0 L_fin")
    A(f"v_mov_b32 v{t0}, s{sE}"); A(f"v_mov_b32 v{t1}, 0"); A("s_mov_b64 exec, 1")
    A.vmem(f"buffer_store_dword v{t0}, v{t1}, {WS}, 0 offen")
    if probe2:
        A("s_waitcnt vmcnt(0)"); A(f"s_memrealtime s[{sSt}:{sSt+1}]"); A("s_mov_b32 s100, 0"); A("s_atomic_add s100, s[14:15], 0 glc"); A("s_waitcnt lgkmcnt(0)")
        A(f"s_lshl_b32 s{sT0}, s{sSt}, 3"); A(f"s_sub_u32 s{sT0}, s{sT0}, s100"); A(f"s_min_u32 s{sT0}, s{sT0}, 100000")
        A.label("L_probe")
        A("s_memrealtime s[100:101]"); A("s_waitcnt lgkmcnt(0)"); A(f"s_sub_u32 s100, s100, s{sSt}"); A(f"s_cmp_lt_u32 s100, s{sT0}"); A("s_cbranch_scc1 L_probe")
    A.label("L_fin")
    if stamps:
        A("s_mov_b64 exec, -1"); A("s_waitcnt vmcnt(0)")
        A(f"s_memrealtime s[{sSt}:{sSt+1}]"); A("s_waitcnt lgkmcnt(0)"); A(f"v_writelane_b32 v{vSt}, s{sSt}, 62")
        A(f"v_writelane_b32 v{vSt}, s{sSpin}, 61")
        A(f"s_getreg_b32 s{sSt}, hwreg(HW_REG_XCC_ID, 0, 4)"); A(f"v_writelane_b32 v{vSt}, s{sSt}, 63")
        A(f"s_lshl_b32 s{sT0}, s2, 10"); A(f"s_add_u32 s{sT0}, s{sT0}, {WS_ST}"); A(f"v_lshl_add_u32 v{t0}, v0, 2, s{sT0}")
        if stamps == "tiny":
            A(f"s_lshl2_add_u32 s{sT0}, s2, s{sW}"); A(f"s_lshl3_add_u32 s{sT0}, s{sT0}, {WS_ST}"); A(f"v_lshrrev_b32 v{t0}, 5, v{vL}"); A(f"v_lshl_add_u32 v{t0}, v{t0}, 2, s{sT0}")
            A("s_mov_b32 exec_lo, 1"); A("s_mov_b32 exec_hi, 0x40000000")
        A.vmem(f"buffer_store_dword v{vSt}, v{t0}, {WS}, 0 offen")
    A("s_endpgm")
    C("---- rare paths")
    for f in slow: f()
    A.label("L_end")
    A("s_endpgm")
    acc_off = (V.top + 3) // 4 * 4
    A.raw('.section .rodata,"a"'); A.raw(".p2align 6"); A.raw(f".amdhsa_kernel {NAME}_kernel")
    A.raw(f"  .amdhsa_next_free_vgpr {acc_off + 128}"); A.raw("  .amdhsa_next_free_sgpr 102"); A.raw(f"  .amdhsa_accum_offset {acc_off}")
    A.raw("  .amdhsa_group_segment_fixed_size 0"); A.raw("  .amdhsa_kernarg_size 88"); A.raw("  .amdhsa_user_sgpr_count 2")
    A.raw("  .amdhsa_user_sgpr_kernarg_segment_ptr 1"); A.raw("  .amdhsa_system_sgpr_workgroup_id_x 1"); A.raw(".end_amdhsa_kernel")
    return A.text()

if __name__ == "__main__":
    kw = eval("dict(" + (sys.argv[2] if len(sys.argv) > 2 else "") + ")")
    open(sys.argv[1], "w").write(gen(**kw))
```

```python
import sys, struct
from asmlib import *
NAME = "parallel_sum__sliding_block_cached__dense_activation_silu__decode"

def f2u(x): return struct.unpack("<I", struct.pack("<f", x))[0]
LOG2E = f2u(1.4426950408889634); SCALE = f2u(128 ** -0.5)
OOB = 0x40000000
WS_BOX, BOX = 0x1000, 2304
MLO = 2176
WS_AC = 0x100000
WS_ST = 0x400000
L_WQ = 131072 - 20480; L_WO = L_WQ
L_XN = 131072; L_Q = L_XN + 1152; L_H = L_Q + 512; L_ML = L_H + 640; L_O = L_ML + 128; L_FL = L_O + 512
L_W1 = 134144; L_W2 = L_W1; L_OP = 0
LDS_BYTES = L_W1 + 24576
HEADER = open("cdna_kernels/" + NAME + ".s.ref").read().split("; Override launch")[0]

DOC = """;
;   2. attention over 512 of the 2048 window keys for the two query heads of (batch, kv head)
; exchange through its L2 with plain stores, any other placement switches to write-through stores.
"""

def gen(D=6, DV=6, DW=8, TH=300, GK=30, GM=30, hold=3, pp=2, sb=14, rc=(1, 0, 0, 0, 3, 0, 0, 2),
        stamps=False, sel=None, scramble=False, force1=False, lateinit=False, spin=None, rtab=False, probe2=False, n0=3, lt=1, DC=7):
    if spin is None: spin = 20000 if stamps else 1 << 21
    A = Asm(); V = VAlloc(1, 256); A.th = TH
    def C(t): A.raw("    ; " + t)
    A.raw(HEADER.rstrip("\n"))
    A.raw(f"; @launch grid=(256,1,1) block=(256,1,1) lds={LDS_BYTES}")
    A.raw(DOC.rstrip("\n"))
    A.raw('.amdgcn_target "amdgcn-amd-amdhsa--gfx950"')
    A.raw(".text"); A.raw(f".globl {NAME}_kernel"); A.raw(".p2align 8"); A.raw(f".type {NAME}_kernel,@function")
    A.label(f"{NAME}_kernel")
    sW = 3
    pX, pK, pV, pWQ, pWO, pW1, pW2, pOUT, pWS = 4, 6, 8, 10, 12, 16, 18, 20, 24
    sMode, sIt, sPC = 22, 23, 26
    dX, dK, dV, dWQ, dW1, dW2, dWO, dWS, dOUT = 28, 32, 36, 40, 44, 48, 52, 56, 60
    sG, sS, sB, sHKV, sBOX, sRot, sSo, sE, sT0, sT1, sT2, sS0 = 64, 65, 66, 67, 68, 69, 70, 71, 72, 73, 74, 75
    sSel, sSelA, sSelB, sU1, sU2, sSpin, sC, sM, sP, sL, sU3, sSt = 76, 80, 81, 82, 84, 86, 87, 88, 90, 94, 96, 98
    WS = sr(dWS, 4)
    slow = []
    vSt = V.get() if stamps else None
    nst = [1]; cnt = [0]
    class quiet:
        def __enter__(s): s.a = A.auto; A.auto = None
        def __exit__(s, *a): A.auto = s.a
    class uncounted:
        def __enter__(s): s.n = len(A.vm)
        def __exit__(s, *a): del A.vm[s.n:]
    def stamp():
        cnt[0] += 1
        if stamps is True and (sel is None or cnt[0] in sel):
            with quiet():
                A(f"s_memrealtime s[{sSt}:{sSt+1}]"); A("s_waitcnt lgkmcnt(0)"); A(f"v_writelane_b32 v{vSt}, s{sSt}, {nst[0]}"); nst[0] += 1
    def spinrec(k):
        if stamps: A(f"v_writelane_b32 v{vSt}, s{sSpin}, {k}")
    def srd(d, p, off_s, nrec):
        if off_s is None: A(f"s_mov_b32 s{d}, s{p}"); A(f"s_mov_b32 s{d+1}, s{p+1}")
        else: A(f"s_add_u32 s{d}, s{p}, s{off_s}"); A(f"s_addc_u32 s{d+1}, s{p+1}, 0")
        A(f"s_mov_b32 s{d+2}, {nrec}"); A(f"s_mov_b32 s{d+3}, 0x20000")
    def bounded(): A(f"s_sub_u32 s{sSpin}, s{sSpin}, 1"); A("s_cbranch_scc1 L_end")

    def initacc():
        C("workgroup (g < 48, s) initialises accumulator line 48 s + g")
        with quiet():
            i4 = V.get(4, 4)
            for r in range(3): A(f"v_mov_b32 v{i4+r}, 0")
            A(f"v_mov_b32 v{i4+3}, s{sS0}")
            A(f"s_mul_i32 s{sT0}, s{sS}, 48"); A(f"s_add_u32 s{sT0}, s{sT0}, s{sG}"); A(f"s_lshl_b32 s{sT0}, s{sT0}, 7"); A(f"s_add_u32 s{sT0}, s{sT0}, {WS_AC}")
            A(f"s_cmp_lt_u32 s{sG}, 48"); A(f"s_cselect_b32 s{sT1}, 4, 0")
            A(f"v_lshl_add_u32 v{t0}, v0, 4, s{sT0}"); A(f"v_cmp_gt_u32 vcc, s{sT1}, v0"); A(f"v_mov_b32 v{t1}, {hex(OOB)}")
            A(f"v_cndmask_b32 v{t0}, v{t1}, v{t0}, vcc")
            A.vmem(f"buffer_store_dwordx4 {vr(i4,4)}, v{t0}, {WS}, 0 offen sc1")
            V.put(i4, 4)
    vJ = V.get(); vPa = V.get(2); vL = V.get(); t0 = V.get(); t1 = V.get(); t2 = V.get(); t3 = V.get(); vX = V.get(); vWq = V.get()
    A("s_load_dwordx16 s[4:19], s[0:1], 0")
    if stamps or probe2: A(f"s_memrealtime s[{sSt}:{sSt+1}]")
    A("s_cmpk_ge_u32 s2, 256"); A("s_cbranch_scc1 L_end")
    A(f"v_readfirstlane_b32 s{sM}, v0")
    if scramble:
        A(f"s_lshr_b32 s{sG}, s2, 2"); A(f"s_and_b32 s{sS}, s2, 3")
    else:
        A(f"s_and_b32 s{sT0}, s2, 7"); A(f"s_bfe_u32 s{sT1}, s2, 0x30003"); A(f"s_lshl3_add_u32 s{sG}, s{sT0}, s{sT1}")
        A(f"s_lshr_b32 s{sS}, s2, 6")
    C("pull this kernel's text into L2, one dword per 64 bytes")
    A(f"s_getpc_b64 s[{sPC}:{sPC+1}]")
    A.label("L_pc")
    A(f"v_lshlrev_b32 v{vPa}, 6, v0"); A(f"v_min_u32 v{vPa}, L_end-L_pc, v{vPa}"); A(f"v_mov_b32 v{vPa+1}, s{sPC+1}")
    A(f"v_add_co_u32 v{vPa}, vcc, s{sPC}, v{vPa}")
    A(f"v_and_b32 v{vL}, 63, v0"); A(f"s_lshr_b32 s{sW}, s{sM}, 6")
    A(f"v_addc_co_u32 v{vPa+1}, vcc, 0, v{vPa+1}, vcc")
    A.vmem(f"global_load_dword v{vJ}, {vr(vPa,2)}, off")
    C("wq tile: rows 144 s.., columns 64 g.. -> LDS")
    A(f"v_lshrrev_b32 v{t0}, 3, v0"); A(f"v_and_b32 v{t1}, 7, v0"); A(f"v_lshlrev_b32 v{t1}, 4, v{t1}")
    A(f"v_lshl_or_b32 v{vWq}, v{t0}, 13, v{t1}")
    A(f"s_lshl4_add_u32 m0, s{sM}, {L_WQ}")
    A(f"s_mul_i32 s{sT1}, s{sS}, {144*8192}"); A(f"s_lshl_b32 s{sT2}, s{sG}, 7"); A(f"s_add_u32 s{sT1}, s{sT1}, s{sT2}")
    A(f"s_mov_b32 s{dWQ+2}, {143*8192+128}"); A(f"s_mov_b32 s{dWQ+3}, 0x20000"); A(f"s_lshl_b32 s{sC}, s{dWQ+3}, 1")
    A("s_waitcnt lgkmcnt(0)")
    A(f"s_add_u32 s{dWQ}, s{pWQ}, s{sT1}"); A(f"s_addc_u32 s{dWQ+1}, s{pWQ+1}, 0")
    for r in range(5):
        if r: A("s_addk_i32 m0, 0x1000"); A(f"v_add_u32 v{vWq}, s{sC}, v{vWq}")
        A.vmem(f"buffer_load_dwordx4 v{vWq}, {sr(dWQ,4)}, 0 offen nt lds")
    A("s_load_dwordx2 s[20:21], s[0:1], 64"); A("s_load_dwordx2 s[24:25], s[0:1], 80")
    if probe2: A("s_load_dwordx2 s[14:15], s[0:1], 72")
    if rtab:
        A(f"s_lshl_b32 s{sT0}, s2, 2"); A(f"s_load_dword s100, s[14:15], s{sT0}")
    if stamps: A(f"v_mov_b32 v{vSt}, 0"); A(f"v_writelane_b32 v{vSt}, s{sSt}, 0")
    C("x row of batch w")
    A(f"s_mul_i32 s{sT0}, s{sM}, 18"); A(f"s_lshl_b32 s{sM}, s{sM}, 4")
    A(f"v_lshlrev_b32 v{vX}, 5, v{vL}")
    srd(dX, pX, sT0, 1152)
    xr = V.get(8, 4)
    A.vmem(f"buffer_load_dwordx4 {vr(xr,4)}, v{vX}, {sr(dX,4)}, 0 offen")
    x1 = A.vmem(f"buffer_load_dwordx4 {vr(xr+4,4)}, v{vX}, {sr(dX,4)}, 0 offen offset:16")
    A(f"s_mul_i32 s{sT1}, s{sS}, {144*9216}"); A(f"s_mul_i32 s{sT2}, s{sG}, 144"); A(f"s_add_u32 s{sT1}, s{sT1}, s{sT2}")
    srd(dW1, pW1, sT1, 143 * 9216 + 144)
    def ragged(d, lbase, rounds, magic, rowpad):
        vP16 = V.get(); vMul = V.get(); vo = V.get()
        def mk(r):
            def f():
                with quiet():
                    if r == 0: A(f"v_lshlrev_b32 v{vP16}, 4, v0"); A(f"v_mul_u32_u24 v{vMul}, {magic}, v0")
                    else: A(f"v_add_u32 v{vP16}, 0x1000, v{vP16}"); A(f"v_add_u32 v{vMul}, {magic*256}, v{vMul}")
                    A(f"s_movk_i32 s{sC}, {rowpad}")
                    A(f"v_lshrrev_b32 v{vo}, 16, v{vMul}")
                    A(f"s_add_u32 m0, s{sM}, {lbase + r*4096}")
                    A(f"v_mad_u32_u24 v{vo}, v{vo}, s{sC}, v{vP16}")
                    q = A.vmem(f"buffer_load_dwordx4 v{vo}, {sr(d,4)}, 0 offen nt lds")
                if lt and r == 5: A.vm[q].light = True
                if r == rounds - 1: V.put(vP16); V.put(vMul); V.put(vo)
                return q
            return f
        return [mk(r) for r in range(rounds)]
    w1q = ragged(dW1, L_W1, 6, 7282, 9072); lastA = [None]
    V.put(vWq); V.put(vX); V.put(vPa, 2)
    stamp()
    C("K / V window of (batch, kv head); the four splits interleave in 16 KB pieces")
    GAP = 3 << sb; VAL = 0x7f000 & ~GAP
    A(f"s_and_b32 s{sB}, s{sG}, 3"); A(f"s_lshr_b32 s{sHKV}, s{sG}, 2")
    A(f"s_lshl4_add_u32 s{sT0}, s{sB}, s{sHKV}"); A(f"s_lshl_b32 s{sT0}, s{sT0}, 21")
    A(f"s_lshl_b32 s{sT1}, s{sS}, {sb}"); A(f"s_add_u32 s{sT0}, s{sT0}, s{sT1}"); A(f"s_add_u32 s{sT0}, s{sT0}, {6144*256}")
    srd(dK, pK, sT0, VAL + 4096); srd(dV, pV, sT0, VAL + 4096)
    A(f"s_lshl2_add_u32 s{sBOX}, s{sG}, s{sS}")
    C("start block of the walk over this workgroup's 32 blocks of 16 keys (spreads the load over the memory channels)")
    A(f"s_mov_b32 s{sRot}, 0")
    for w, bit in zip(rc, (5, 6, 7, 4, 2, 3, 0, 1)):
        if w: A(f"s_bitcmp1_b32 s{sBOX}, {bit}"); A(f"s_cselect_b32 s{sT1}, {w}, 0"); A(f"s_add_u32 s{sRot}, s{sRot}, s{sT1}")
    if rtab: A("s_waitcnt lgkmcnt(0)"); A(f"s_mov_b32 s{sRot}, s100")
    A(f"s_lshl_b32 s{sRot}, s{sRot}, 12"); A(f"s_and_b32 s{sRot}, s{sRot}, 0x1f000")
    A(f"s_and_b32 s{sT1}, s{sRot}, {hex(0x1f000 & ~((1 << sb) - 1))}"); A(f"s_mul_i32 s{sT1}, s{sT1}, 3"); A(f"s_add_u32 s{sRot}, s{sRot}, s{sT1}")
    vG = V.get(); vI = V.get(); vKo = V.get(4); vVo = V.get()
    A(f"v_lshrrev_b32 v{vG}, 4, v{vL}"); A(f"v_and_b32 v{vI}, 15, v{vL}")
    A(f"v_lshlrev_b32 v{vVo}, 4, v0")
    A(f"v_lshlrev_b32 v{t0}, 6, v{vG}"); A(f"v_xor_b32 v{vKo}, v{vVo}, v{t0}")
    for i in range(1, 4): A(f"v_xor_b32 v{vKo+i}, {i*16}, v{vKo}")

    kseq = []; vseq = []; lim = [0]; incomp = [0]
    def pace(d):
        k = 0; n = 0
        if DC and incomp[0]: d = DC
        for x in reversed(A.vm):
            heavy = " nt" in x.text and not getattr(x, "light", False)
            if heavy and k == d - 1: break
            k += heavy; n += 1
        A(f"s_waitcnt vmcnt({n})")
    def so(j):
        if j == 0: A(f"s_mov_b32 s{sSo}, s{sRot}")
        else: A(f"s_add_u32 s{sSo}, s{sSo}, {hex(GAP + 0x1000)}"); A(f"s_and_b32 s{sSo}, s{sSo}, {hex(VAL)}")
    def pos(): return len(kseq) + len(vseq)
    def step(n=1):
        for _ in range(n):
            if len(kseq) < 32:
                j = len(kseq)
                A(f"s_add_u32 m0, s{sM}, {j*4096}"); so(j); pace(D)
                kseq.append(A.vmem(f"buffer_load_dwordx4 v{vKo + (j & 3)}, {sr(dK,4)}, s{sSo} offen nt lds"))
                if w1q: pace(D); lastA[0] = w1q.pop(0)()
            else:
                j = len(vseq)
                so(j); pace(DV)
                vseq.append(A.vmem(f"buffer_load_dwordx4 {ar(4*j,4)}, v{vVo}, {sr(dV,4)}, s{sSo} offen nt"))
    def auto():
        incomp[0] = 1
        if pos() < lim[0]: step(1)
        incomp[0] = 0
    def allred_rows(v, t, op):
        A(f"v_mov_b32 v{t}, v{v}"); A(f"v_permlane16_swap_b32 v{v}, v{t}"); A(f"{op} v{v}, v{v}, v{t}")
        A(f"v_mov_b32 v{t}, v{v}"); A(f"v_permlane32_swap_b32 v{v}, v{t}"); A(f"{op} v{v}, v{v}, v{t}")
    def allred64(v, t):
        for k in (8, 4, 2, 1): A(f"v_add_f32_dpp v{v}, v{v}, v{v} row_ror:{k} row_mask:0xf bank_mask:0xf")
        allred_rows(v, t, "v_add_f32")
    def unpack(dst, src, n):
        for k in range(n): A(f"v_and_b32 v{dst+2*k+1}, 0xffff0000, v{src+k}"); A(f"v_lshlrev_b32 v{dst+2*k}, 16, v{src+k}")
    def pk_sub(d, a, b): A(f"v_pk_add_f32 {vr(d,2)}, {vr(a,2)}, {vr(b,2)} op_sel_hi:[1,0] neg_lo:[0,1] neg_hi:[0,1]")
    def pk_scale(d, a, b): A(f"v_pk_mul_f32 {vr(d,2)}, {vr(a,2)}, {vr(b,2)} op_sel_hi:[1,0]")

    def srdW():
        A(f"s_mul_i32 s{sT1}, s{sS}, 288")
        A(f"s_mul_i32 s{sT0}, s{sG}, {72*1152}"); A(f"s_add_u32 s{sT0}, s{sT0}, s{sT1}"); srd(dW2, pW2, sT0, 71 * 1152 + 288)
        A(f"s_mul_i32 s{sT0}, s{sG}, {64*1152}"); A(f"s_add_u32 s{sT0}, s{sT0}, s{sT1}"); srd(dWO, pWO, sT0, 63 * 1152 + 288)
    step(1)
    A("s_waitcnt lgkmcnt(0)")
    A(f"s_load_dword s{sE}, s[{pWS}:{pWS+1}], 0")
    if probe2:
        A("s_lshr_b32 s100, s2, 3"); A(f"s_or_b32 s100, s100, s{sW}"); A("s_cbranch_scc1 L_pr2"); A(f"s_mov_b32 s100, s{sSt}")
        if probe2 is True: A("s_atomic_add s100, s[14:15], 0")
        elif probe2 == "skew":
            A("s_not_b32 s101, s100"); A("s_atomic_umax s100, s[14:15], 0"); A("s_atomic_umax s101, s[14:15], 4")
        else:
            A(f"s_sub_u32 s101, 0, s100"); A(f"s_bitcmp1_b32 {probe2}, s2"); A("s_cselect_b32 s100, s100, s101"); A("s_atomic_add s100, s[14:15], 0")
        A.label("L_pr2")
    srd(dWS, pWS, None, 0x800000 if stamps else WS_AC + 192 * 128)
    A(f"s_mov_b32 s{sMode}, {1 if force1 else 0}"); A(f"s_mov_b32 s{sIt}, 0")
    step(n0 - 1)
    C("layer norm of batch w, lanes 0..35 hold 16 values each; bf16 roundings as in the reference")
    A.wait_vm(x1)
    stamp()
    A.cyc = 0; lim[0] = D + 6; A.auto = auto
    xf = V.get(16); d16 = V.get(16); p2 = V.get(2); pm = V.get(2)
    unpack(xf, xr, 8)
    A(f"v_pk_add_f32 {vr(p2,2)}, {vr(xf,2)}, {vr(xf+2,2)}")
    for k in range(2, 8): A(f"v_pk_add_f32 {vr(p2,2)}, {vr(p2,2)}, {vr(xf+2*k,2)}")
    A(f"v_add_f32 v{pm}, v{p2}, v{p2+1}")
    allred64(pm, t0)
    A(f"v_mul_f32 v{pm}, {hex(f2u(1/576))}, v{pm}")
    for k in range(8): pk_sub(d16 + 2 * k, xf + 2 * k, pm)
    A(f"v_pk_mul_f32 {vr(p2,2)}, {vr(d16,2)}, {vr(d16,2)}")
    for k in range(1, 8): A(f"v_pk_fma_f32 {vr(p2,2)}, {vr(d16+2*k,2)}, {vr(d16+2*k,2)}, {vr(p2,2)}")
    A(f"v_cmp_gt_u32 vcc, 36, v{vL}"); A(f"v_add_f32 v{t1}, v{p2}, v{p2+1}"); A(f"v_cndmask_b32 v{t1}, 0, v{t1}, vcc")
    allred64(t1, t0)
    A(f"v_mul_f32 v{t1}, {hex(f2u(1/576))}, v{t1}")
    A(f"v_cvt_pk_bf16_f32 v{t0}, v{pm}, v{t1}")
    A(f"v_lshlrev_b32 v{pm}, 16, v{t0}"); A(f"v_and_b32 v{t1}, 0xffff0000, v{t0}")
    A(f"v_add_f32 v{t1}, {hex(f2u(1e-5))}, v{t1}")
    A(f"v_cvt_pk_bf16_f32 v{t1}, v{t1}, v{t1}"); A(f"v_lshlrev_b32 v{t1}, 16, v{t1}")
    A(f"v_sqrt_f32 v{t1}, v{t1}")
    A(f"v_cvt_pk_bf16_f32 v{t1}, v{t1}, v{t1}"); A(f"v_lshlrev_b32 v{t1}, 16, v{t1}")
    A(f"v_rcp_f32 v{p2}, v{t1}")
    for k in range(8): pk_sub(d16 + 2 * k, xf + 2 * k, pm)
    for k in range(8): A(f"v_cvt_pk_bf16_f32 v{xr+k}, v{d16+2*k}, v{d16+2*k+1}")
    unpack(xf, xr, 8)
    for k in range(8): pk_scale(xf + 2 * k, xf + 2 * k, p2)
    for k in range(8): A(f"v_cvt_pk_bf16_f32 v{xr+k}, v{xf+2*k}, v{xf+2*k+1}")
    A(f"s_mul_i32 s{sT0}, s{sS}, 9"); A(f"s_sub_u32 s{sT1}, s{sW}, s{sS}"); A(f"s_mul_i32 s{sT1}, s{sT1}, 288"); A(f"s_add_u32 s{sT1}, s{sT1}, {L_XN}")
    A(f"v_lshl_add_u32 v{t0}, v{vL}, 5, s{sT1}")
    with quiet():
        A(f"s_lshl_b64 exec, 0x1ff, s{sT0}")
        A(f"ds_write_b128 v{t0}, {vr(xr,4)}"); A(f"ds_write_b128 v{t0}, {vr(xr+4,4)} offset:16")
        A("s_mov_b64 exec, -1")
    V.put(xf, 16); V.put(d16, 16); V.put(p2, 2); V.put(pm, 2)
    A("s_waitcnt lgkmcnt(0)")
    V.put(xr, 8)
    C("tags of this launch; first value of the arrival counts")
    vT1 = V.get(); vT2 = V.get()
    A(f"s_add_u32 s{sE}, s{sE}, 1"); A(f"s_mul_i32 s{sT0}, s{sE}, 0x9E3779B1")
    A(f"s_getreg_b32 s{sT1}, hwreg(HW_REG_XCC_ID, 0, 4)"); A(f"s_lshl_b32 s{sT1}, s{sT1}, 28")
    A(f"s_add_u32 s{sT2}, s{sT0}, 0x4a3c5e12"); A(f"s_xor_b32 s{sT0}, s{sT0}, s{sT1}")
    A(f"v_mov_b32 v{vT1}, s{sT0}"); A(f"v_mov_b32 v{vT2}, s{sT2}")
    A(f"s_lshl_b32 s{sS0}, s{sE}, 8"); A(f"s_and_b32 s{sS0}, s{sS0}, 0x7fff00"); A(f"s_or_b32 s{sS0}, s{sS0}, 0x4b000000")
    if not lateinit: initacc()
    for r in range(4): A(f"s_mov_b32 s{sSel+r}, {hex(0x07060500 + r)}")
    A(f"s_mov_b32 s{sSelA}, 0x0c0c0400"); A(f"s_mov_b32 s{sSelB}, 0x04000c0c")
    def lanemask(s_, m): A(f"s_mov_b32 s{s_}, {hex(m)}"); A(f"s_mov_b32 s{s_+1}, {hex(m)}")
    lanemask(sU1, 0x00f000f0); lanemask(sU2, 0x0f000f00)
    A(f"s_mov_b32 s{sSpin}, {spin}")
    def tag(v, vT):
        for r in range(4): A(f"v_perm_b32 v{v+r}, v{v+r}, v{vT}, s{sSel+r}")
    def chk(v, dst, vT):
        A(f"v_perm_b32 v{t0}, v{v+1}, v{v}, s{sSelA}"); A(f"v_perm_b32 v{t1}, v{v+3}, v{v+2}, s{sSelB}")
        A(f"v_or_b32 v{t0}, v{t0}, v{t1}"); A(f"v_cmp_ne_u32 {dst}, v{t0}, v{vT}")
    def untag(d, v):
        for r in range(4): A(f"v_and_b32 v{d+r}, 0xffffff00, v{v+r}")
    def tred(v):
        A(f"v_permlane32_swap_b32 v{v}, v{v+2}"); A(f"v_permlane32_swap_b32 v{v+1}, v{v+3}")
        A(f"v_add_f32 v{v}, v{v}, v{v+2}"); A(f"v_add_f32 v{v+1}, v{v+1}, v{v+3}")
        A(f"v_permlane16_swap_b32 v{v}, v{v+1}"); A(f"v_add_f32 v{v}, v{v}, v{v+1}")
    C("addresses of the projection stage")
    vB3 = V.get(); vQ4 = V.get()
    A(f"v_and_b32 v{vB3}, 3, v{vL}"); A(f"v_lshrrev_b32 v{vQ4}, 2, v{vL}")
    aXb = V.get(); aWq = V.get(); aW1 = V.get(); aW1h = V.get(); aH1 = V.get()
    A(f"v_mul_u32_u24 v{aXb}, 288, v{vB3}"); A(f"v_lshl_add_u32 v{aXb}, v{vG}, 3, v{aXb}"); A(f"v_add_u32 v{aXb}, {L_XN}, v{aXb}")
    A(f"s_lshl_b32 s{sT0}, s{sW}, 5"); A(f"v_lshlrev_b32 v{t2}, 3, v{vB3}")
    A(f"v_lshl_add_u32 v{aWq}, v{vQ4}, 7, v{t2}"); A(f"s_add_u32 s{sT1}, s{sT0}, {L_WQ}"); A(f"v_add_u32 v{aWq}, s{sT1}, v{aWq}")
    A(f"v_mul_u32_u24 v{aW1h}, 144, v{vQ4}"); A(f"v_add_u32 v{aW1h}, v{aW1h}, v{t2}"); A(f"v_add_u32 v{aW1h}, {L_W1}, v{aW1h}")
    A(f"v_add_u32 v{aW1}, s{sT0}, v{aW1h}")
    A(f"s_lshl_b32 s{sT0}, s{sW}, 6"); A(f"v_lshlrev_b32 v{t2}, 4, v{vG}")
    A(f"v_lshl_add_u32 v{aH1}, v{vB3}, 8, v{t2}"); A(f"v_add_u32 v{aH1}, s{sT0}, v{aH1}")
    A(f"v_mul_u32_u24 v{t3}, 288, v{vB3}"); A(f"v_add_u32 v{t3}, v{t3}, v{t2}")
    A(f"s_add_u32 s{sT0}, s{sT0}, 1024"); A(f"v_add_u32 v{t0}, s{sT0}, v{t3}")
    A(f"v_cndmask_b32 v{aH1}, v{aH1}, v{t0}, {sr(sU1,2)}")
    A(f"v_add_u32 v{t0}, {1024+256}, v{t3}")
    A(f"v_cndmask_b32 v{aH1}, v{aH1}, v{t0}, {sr(sU2,2)}")
    A(f"s_lshl_b32 s{sT0}, 0x01000100, s{sW}"); A(f"s_or_b32 vcc_lo, s{sT0}, 0x00ff00ff"); A("s_mov_b32 vcc_hi, 0x00ff00ff")
    A(f"s_mul_i32 s{sT0}, s{sBOX}, {BOX}"); A(f"s_add_u32 s{sT0}, s{sT0}, {WS_BOX}")
    A(f"v_add_u32 v{aH1}, s{sT0}, v{aH1}"); A(f"v_mov_b32 v{t0}, {hex(OOB)}"); A(f"v_cndmask_b32 v{aH1}, v{t0}, v{aH1}, vcc")
    while len(kseq) < D + 6: step(1)
    assert not w1q
    A.wait_vm(lastA[0])
    C("B1: wq / w1 tiles and xn are in LDS")
    A("s_barrier")
    step(1); A.cyc = 0; lim[0] = 26
    stamp()
    fr = [V.get(24), V.get(24)]; acc = V.get(12, 4)
    def batchA(bi):
        f = fr[bi & 1]
        for k in range(3):
            st = 3 * bi + k
            A(f"ds_read_b64 {vr(f+8*k,2)}, v{aXb} offset:{st*32}")
            A(f"ds_read_b64_tr_b16 {vr(f+8*k+2,2)}, v{aWq} offset:{st*2048}")
            A(f"ds_read_b64_tr_b16 {vr(f+8*k+4,2)}, v{aW1} offset:{st*2304}")
            A(f"ds_read_b64_tr_b16 {vr(f+8*k+6,2)}, v{aW1h} offset:{st*2304+128}")
    def mfmaA(bi):
        f = fr[bi & 1]
        for k in range(3):
            for tl in range(3):
                c = "0" if (bi == 0 and k == 0) else vr(acc+4*tl, 4)
                A(f"v_mfma_f32_16x16x16_bf16 {vr(acc+4*tl,4)}, {vr(f+8*k+2+2*tl,2)}, {vr(f+8*k,2)}, {c}")
    batchA(0); A("s_waitcnt lgkmcnt(0)")
    batchA(1); mfmaA(0); A("s_waitcnt lgkmcnt(0)")
    A("s_nop 7")
    batchA(2); mfmaA(1); A("s_waitcnt lgkmcnt(0)")
    mfmaA(2)
    o4 = V.get(4, 4)
    for r in range(4): A(f"v_cndmask_b32 v{o4+r}, v{acc+r}, v{acc+4+r}, {sr(sU1,2)}")
    for r in range(4): A(f"v_cndmask_b32 v{o4+r}, v{o4+r}, v{acc+8+r}, {sr(sU2,2)}")
    tag(o4, vT1)
    A.vmem(f"buffer_store_dwordx4 {vr(o4,4)}, v{aH1}, {WS}, 0 offen")
    stamp()
    V.put(fr[0], 24); V.put(fr[1], 24); V.put(acc, 12)
    for r in (aXb, aWq, aW1, aW1h): V.put(r)
    step(1)
    assert len(kseq) <= 27
    C("B1b: the wq staging area may be overwritten by K")
    A("s_barrier")
    V.put(aH1); V.put(o4, 4)
    lim[0] = GK
    C("addresses of everything later, in the shadow of the K stream")
    aGq = V.get(); aGh = V.get(); aGh2 = V.get()
    A(f"v_mul_u32_u24 v{t2}, {BOX}, v{vG}"); A(f"v_lshl_add_u32 v{t2}, v{vI}, 4, v{t2}")
    A(f"s_lshl2_add_u32 s{sT0}, s{sHKV}, s{sW}"); A(f"s_mul_i32 s{sT0}, s{sT0}, {4*BOX}"); A(f"s_lshl_b32 s{sT1}, s{sB}, 8"); A(f"s_add_u32 s{sT0}, s{sT0}, s{sT1}"); A(f"s_add_u32 s{sT0}, s{sT0}, {WS_BOX}")
    A(f"v_add_u32 v{aGq}, s{sT0}, v{t2}")
    A(f"s_mul_i32 s{sT0}, s{sG}, {4*BOX}"); A(f"s_mul_i32 s{sT1}, s{sW}, 288"); A(f"s_add_u32 s{sT0}, s{sT0}, s{sT1}"); A(f"s_add_u32 s{sT0}, s{sT0}, {WS_BOX+1024}")
    A(f"v_add_u32 v{aGh}, s{sT0}, v{t2}")
    A(f"v_cmp_gt_u32 vcc, 2, v{vI}"); A(f"v_add_u32 v{aGh2}, 256, v{aGh}"); A(f"v_mov_b32 v{t0}, {hex(OOB)}")
    A(f"v_cndmask_b32 v{aGh2}, v{t0}, v{aGh2}, vcc")
    vM = V.get(4)
    A(f"v_and_b32 v{t0}, 1, v{vL}"); A(f"v_lshlrev_b32 v{t0}, 4, v{t0}"); A(f"v_mov_b32 v{t1}, 0xffff"); A(f"v_lshlrev_b32 v{t1}, v{t0}, v{t1}")
    A(f"v_bfe_u32 v{t0}, v{vL}, 1, 2")
    for k in range(4): A(f"v_cmp_eq_u32 vcc, {k}, v{t0}"); A(f"v_cndmask_b32 v{vM+k}, 0, v{t1}, vcc")
    aQw = V.get(); aHw = V.get(); aQr = V.get(); aKr = V.get(4)
    A(f"v_lshl_add_u32 v{t0}, v{vI}, 2, v{vG}"); A(f"v_lshlrev_b32 v{t0}, 1, v{t0}")
    A(f"s_lshl_b32 s{sT0}, s{sW}, 7"); A(f"s_add_u32 s{sT0}, s{sT0}, {L_Q}"); A(f"v_add_u32 v{aQw}, s{sT0}, v{t0}")
    A(f"s_mul_i32 s{sT0}, s{sW}, 160"); A(f"s_add_u32 s{sT0}, s{sT0}, {L_H}"); A(f"v_add_u32 v{aHw}, s{sT0}, v{t0}")
    A(f"v_lshrrev_b32 v{t0}, 3, v{vI}"); A(f"v_lshlrev_b32 v{t0}, 8, v{t0}"); A(f"v_lshl_add_u32 v{aQr}, v{vG}, 4, v{t0}"); A(f"v_add_u32 v{aQr}, {L_Q}, v{aQr}")
    A(f"v_xor_b32 v{t0}, v{vG}, v{vI}"); A(f"v_lshlrev_b32 v{t0}, 4, v{t0}")
    A(f"v_lshl_add_u32 v{t0}, v{vB3}, 12, v{t0}"); A(f"v_lshrrev_b32 v{t1}, 2, v{vI}"); A(f"v_lshl_add_u32 v{t0}, v{t1}, 8, v{t0}")
    A(f"v_add_u32 v{aKr}, s{sM}, v{t0}")
    for k in range(1, 4): A(f"v_xor_b32 v{aKr+k}, {k*64}, v{aKr}")
    aOPw = V.get(); aOPr = V.get(); aH2 = V.get(); aG2 = V.get(); aGm = V.get(); aOw = V.get(); aOr = V.get(); aHr = V.get()
    aW = V.get(); aAc = V.get(); aOut = V.get(); xr2 = V.get(2)
    A(f"v_lshrrev_b32 v{t0}, 1, v{vG}"); A(f"v_lshlrev_b32 v{t0}, 9, v{t0}"); A(f"v_lshl_add_u32 v{t0}, v{vI}, 5, v{t0}")
    A(f"v_and_b32 v{t1}, 1, v{vG}"); A(f"v_lshl_add_u32 v{t0}, v{t1}, 4, v{t0}"); A(f"v_add_u32 v{aOPw}, s{sM}, v{t0}")
    A(f"s_lshl_b32 s{sT1}, s{sW}, 8"); A(f"v_lshl_add_u32 v{aOPr}, v{vI}, 4, s{sT1}")
    A(f"s_mul_i32 s{sT0}, s{sBOX}, {BOX}"); A(f"s_add_u32 s{sT0}, s{sT0}, {WS_BOX}"); A(f"v_add_u32 v{aH2}, s{sT0}, v{aOPr}")
    A(f"v_and_b32 v{t0}, 12, v{vL}"); A(f"v_add_u32 v{t0}, v{t0}, v{vG}"); A(f"v_mul_u32_u24 v{t0}, {BOX}, v{t0}")
    A(f"s_mul_i32 s{sT0}, s{sHKV}, {16*BOX}"); A(f"s_add_u32 s{sT0}, s{sT0}, {WS_BOX}")
    A(f"s_add_u32 s{sT1}, s{sT0}, {MLO}"); A(f"v_add_u32 v{aGm}, s{sT1}, v{t0}")
    A(f"s_lshl2_add_u32 s{sT1}, s{sB}, s{sW}"); A(f"s_lshl_b32 s{sT1}, s{sT1}, 6"); A(f"s_add_u32 s{sT0}, s{sT0}, s{sT1}")
    A(f"v_lshl_add_u32 v{t0}, v{vB3}, 4, v{t0}"); A(f"v_add_u32 v{aG2}, s{sT0}, v{t0}")
    A(f"s_lshr_b32 s{sT0}, s{sW}, 1"); A(f"s_lshl_b32 s{sT0}, s{sT0}, 6"); A(f"s_and_b32 s{sT1}, s{sW}, 1"); A(f"s_lshl3_add_u32 s{sT0}, s{sT1}, s{sT0}"); A(f"s_add_u32 s{sT0}, s{sT0}, {L_O}")
    A(f"v_and_b32 v{t0}, 12, v{vL}"); A(f"v_lshlrev_b32 v{t0}, 5, v{t0}"); A(f"v_lshl_add_u32 v{t0}, v{vB3}, 4, v{t0}"); A(f"v_lshl_add_u32 v{t0}, v{vG}, 1, v{t0}")
    A(f"v_add_u32 v{aOw}, s{sT0}, v{t0}")
    A(f"v_and_b32 v{t1}, 3, v{vQ4}")
    A(f"v_lshlrev_b32 v{t0}, 7, v{t1}"); A(f"v_lshl_add_u32 v{t0}, v{vG}, 4, v{t0}"); A(f"v_add_u32 v{aOr}, {L_O}, v{t0}")
    A(f"v_mul_u32_u24 v{t0}, 160, v{t1}"); A(f"v_lshl_add_u32 v{t0}, v{vG}, 3, v{t0}"); A(f"v_add_u32 v{aHr}, {L_H}, v{t0}")
    A(f"v_mul_u32_u24 v{t0}, 288, v{vQ4}"); A(f"v_lshl_add_u32 v{t0}, v{vB3}, 3, v{t0}")
    A(f"s_mul_i32 s{sT2}, s{sW}, 96"); A(f"s_add_u32 s{sT0}, s{sT2}, {L_WO}"); A(f"v_add_u32 v{aW}, s{sT0}, v{t0}")
    A(f"s_mul_i32 s{sT0}, s{sS}, 3"); A(f"s_add_u32 s{sT0}, s{sT0}, s{sW}"); A(f"s_lshl_b32 s{sT0}, s{sT0}, 11"); A(f"s_add_u32 s{sT0}, s{sT0}, {WS_AC}")
    A(f"v_lshlrev_b32 v{t0}, 9, v{vG}"); A(f"v_lshl_add_u32 v{t0}, v{vI}, 2, v{t0}"); A(f"v_add_u32 v{aAc}, s{sT0}, v{t0}")
    srdW()
    A(f"s_add_u32 s{sT0}, s{sT1}, s{sT2}")
    A(f"v_mul_u32_u24 v{t0}, 1152, v{t1}"); A(f"v_lshl_add_u32 v{t0}, v{vB3}, 5, v{t0}")
    A(f"v_lshl_add_u32 v{t0}, v{vG}, 3, v{t0}"); A(f"v_add_u32 v{aOut}, s{sT0}, v{t0}")
    lanemask(sU1, 0x22222222); lanemask(sU2, 0x44444444); lanemask(sU3, 0x88888888)
    A(f"v_mov_b32 v{t0}, {hex(OOB)}"); A(f"v_cndmask_b32 v{aOut}, v{aOut}, v{t0}, {sr(sU3,2)}")
    C("the residual x enters through the workgroups with g = 0")
    srd(dX, pX, None, 4608); srd(dOUT, pOUT, None, 4608)
    A(f"s_cmp_eq_u32 s{sG}, 0"); A(f"s_cselect_b32 s{dX+2}, s{dX+2}, 0")
    A.vmem(f"buffer_load_dwordx2 {vr(xr2,2)}, v{aOut}, {sr(dX,4)}, 0 offen")
    A.auto = None
    while len(kseq) < GK: step(1)
    stamp()
    gq = V.get(4, 4); gh = V.get(4, 4); gh2 = V.get(4, 4); cp = V.get(4, 4); cpa = V.get()
    def gatherH1():
        A.vmem(f"buffer_load_dwordx4 {vr(gq,4)}, v{aGq}, {WS}, 0 offen sc1")
        A.vmem(f"buffer_load_dwordx4 {vr(gh,4)}, v{aGh}, {WS}, 0 offen sc1")
        return A.vmem(f"buffer_load_dwordx4 {vr(gh2,4)}, v{aGh2}, {WS}, 0 offen sc1")
    C("gather the q and h partials")
    g1 = gatherH1()
    step(D)
    A.wait_vm(g1)
    stamp()
    A.label("L_chk1")
    chk(gq, sr(sP, 2), vT1); chk(gh, sr(sP + 2, 2), vT1); chk(gh2, "vcc", vT1)
    A("s_and_b32 vcc_lo, vcc_lo, 0x00030003"); A("s_and_b32 vcc_hi, vcc_hi, 0x00030003")
    A(f"s_or_b64 vcc, vcc, {sr(sP,2)}"); A(f"s_or_b64 vcc, vcc, {sr(sP+2,2)}")
    A("s_cbranch_scc1 L_slow1")
    A.label("L_ok1")
    spinrec(58)
    def copybox(nm):
        C("write this workgroup's valid q / h granules through to memory, for readers on other XCDs")
        A(f"s_mul_i32 s{sT0}, s{sBOX}, {BOX}"); A(f"s_add_u32 s{sT0}, s{sT0}, {WS_BOX}"); A(f"v_lshl_add_u32 v{cpa}, v{vL}, 4, s{sT0}")
        for k in range(3):
            if k == 2: A("s_mov_b64 exec, 0xff")
            A.vmem(f"buffer_load_dwordx4 {vr(cp,4)}, v{cpa}, {WS}, 0 offen offset:{k*1024} sc1")
            A("s_waitcnt vmcnt(0)")
            chk(cp, "vcc", vT1)
            A("s_andn2_b64 exec, exec, vcc"); A(f"s_cbranch_execz L_cp{nm}{k}")
            A.vmem(f"buffer_store_dwordx4 {vr(cp,4)}, v{cpa}, {WS}, 0 offen offset:{k*1024} sc1")
            A.label(f"L_cp{nm}{k}")
            A("s_mov_b64 exec, -1"); A("s_waitcnt vmcnt(0)")
    def slow1():
        A.label("L_slow1"); bounded()
        C("a granule of this launch from another XCD differs from the own tag in the top nibble only")
        A(f"s_mov_b64 {sr(sP,2)}, 0")
        for v in (gq, gh, gh2):
            if v == gh2: A("s_mov_b32 exec_lo, 0x00030003"); A("s_mov_b32 exec_hi, 0x00030003")
            chk(v, sr(sP + 2, 2), vT1)
            A(f"v_xor_b32 v{t0}, v{t0}, v{vT1}"); A(f"v_lshlrev_b32 v{t0}, 4, v{t0}"); A(f"v_cmp_ne_u32 vcc, 0, v{t0}")
            A(f"s_or_b64 {sr(sP,2)}, {sr(sP,2)}, vcc")
            A(f"s_andn2_b64 vcc, {sr(sP+2,2)}, vcc"); A(f"s_cselect_b32 s{sMode}, 1, s{sMode}")
        A("s_mov_b64 exec, -1")
        A(f"s_cmp_eq_u64 {sr(sP,2)}, 0"); A("s_cbranch_scc1 L_ok1")
        A(f"s_add_u32 s{sIt}, s{sIt}, 1"); A(f"s_cmp_lt_u32 s{sIt}, 4"); A("s_cbranch_scc1 L_slow1b")
        copybox("a")
        A.label("L_slow1b")
        gatherH1(); A("s_waitcnt vmcnt(0)"); A("s_branch L_chk1")
    slow.append(slow1)
    def pubstore(nm, text):
        A(f"s_cmp_lg_u32 s{sMode}, 0"); A(f"s_cbranch_scc1 L_alt{nm}")
        A.vmem(text)
        A.label(f"L_altb{nm}")
        def alt():
            A.label(f"L_alt{nm}"); A.vmem(text + " sc1"); A("s_nop 1"); A(f"s_branch L_altb{nm}")
        slow.append(alt)
    step(1); A.cyc = 0; lim[0] = 60; A.auto = auto
    for v in (gq, gh, gh2): untag(v, v)
    for v in (gq, gh, gh2): tred(v)
    A(f"v_cvt_pk_bf16_f32 v{gq}, v{gq}, v{gq}"); A(f"ds_write_b16 v{aQw}, v{gq}")
    A(f"s_lshl2_add_u32 s{sT0}, s{sW}, {L_FL}"); A(f"v_mov_b32 v{t2}, s{sT0}"); A(f"v_mov_b32 v{t3}, s{sMode}")
    A(f"ds_write_b32 v{t2}, v{t3}")
    C("silu")
    A(f"v_cvt_pk_bf16_f32 v{t0}, v{gh}, v{gh2}")
    A(f"v_lshlrev_b32 v{gh}, 16, v{t0}"); A(f"v_and_b32 v{gh2}, 0xffff0000, v{t0}")
    for v in (gh, gh2): A(f"v_mul_f32 v{v+1}, {hex(LOG2E | 0x80000000)}, v{v}")
    for v in (gh, gh2): A(f"v_exp_f32 v{v+1}, v{v+1}")
    for v in (gh, gh2): A(f"v_add_f32 v{v+1}, 1.0, v{v+1}")
    for v in (gh, gh2): A(f"v_rcp_f32 v{v+1}, v{v+1}")
    for v in (gh, gh2): A(f"v_mul_f32 v{v}, v{v}, v{v+1}")
    A(f"v_cvt_pk_bf16_f32 v{t0}, v{gh}, v{gh2}")
    A(f"ds_write_b16 v{aHw}, v{t0}")
    with quiet():
        A("s_mov_b32 exec_lo, 0x000f000f"); A("s_mov_b32 exec_hi, 0x000f000f")
        A(f"ds_write_b16_d16_hi v{aHw}, v{t0} offset:128")
        A("s_mov_b64 exec, -1")
    step(1); A.cyc = 0
    A("s_waitcnt lgkmcnt(0)")
    C("B2: q, silu(h) and the placement flags are in LDS")
    A("s_barrier")
    stamp()
    A(f"v_mov_b32 v{t2}, {L_FL}"); A(f"ds_read_b128 {vr(gq,4)}, v{t2}")
    def modecheck():
        with quiet():
            A(f"v_or3_b32 v{t2}, v{gq}, v{gq+1}, v{gq+2}"); A(f"v_or_b32 v{t2}, v{t2}, v{gq+3}")
            A(f"v_readfirstlane_b32 s{sMode}, v{t2}")
            A(f"s_cmp_lg_u32 s{sMode}, 0"); A("s_cbranch_scc1 L_mode1")
            A.label("L_mode1b")
        def mode1(): A.label("L_mode1"); copybox("b"); A("s_branch L_mode1b")
        slow.append(mode1)
    V.put(aQw); V.put(aHw)
    C("scores: lane (g', n) register 4 t + r = key row g' of round 4 t + r, head n >> 3")
    qf = V.get(16, 4); kf = [V.get(16, 4), V.get(16, 4)]; S = V.get(32, 4)
    for st in range(4): A(f"ds_read_b128 {vr(qf+4*st,4)}, v{aQr} offset:{st*64}")
    def rdK(t):
        if 4 * t + 3 >= GK:
            while pos() < 4 * t + 3 + D: step(1); A.cyc = 0
            A.wait_vm(kseq[4 * t + 3])
        if t == 4:
            for k in range(4): A(f"v_add_u32 v{aKr+k}, 0x10000, v{aKr+k}")
        for st in range(4): A(f"ds_read_b128 {vr(kf[t&1]+4*st,4)}, v{aKr+st} offset:{(t&3)*16384}")
    rdK(0)
    for t in range(8):
        if t < 7: rdK(t + 1); A("s_waitcnt lgkmcnt(4)")
        else: A("s_waitcnt lgkmcnt(0)")
        for st in range(4):
            c = "0" if st == 0 else vr(S+4*t, 4)
            A(f"v_mfma_f32_16x16x32_bf16 {vr(S+4*t,4)}, {vr(kf[t&1]+4*st,4)}, {vr(qf+4*st,4)}, {c}")
        if t < 7: A("s_nop 3")
        if t == 0: modecheck()
    V.put(qf, 16); V.put(kf[0], 16); V.put(kf[1], 16); V.put(aQr); V.put(aKr, 4); V.put(vKo, 4)
    for v in (gq, gh, gh2, cp): V.put(v, 4)
    V.put(cpa)
    pc = V.get(2); tp = V.get(8); ml = V.get(2); pl = V.get(2)
    A(f"v_mov_b32 v{pc}, {hex(SCALE)}")
    for h in range(2):
        for k in range(8): A(f"v_cvt_pk_bf16_f32 v{tp+k}, v{S+16*h+2*k}, v{S+16*h+2*k+1}")
        unpack(S + 16 * h, tp, 8)
        for k in range(8): pk_scale(S + 16 * h + 2 * k, S + 16 * h + 2 * k, pc)
        for k in range(8): A(f"v_cvt_pk_bf16_f32 v{tp+k}, v{S+16*h+2*k}, v{S+16*h+2*k+1}")
        unpack(S + 16 * h, tp, 8)
    A(f"v_max_f32 v{ml}, v{S}, v{S+1}")
    for k in range(1, 16): A(f"v_max3_f32 v{ml}, v{S+2*k}, v{S+2*k+1}, v{ml}")
    allred_rows(ml, t0, "v_max_f32")
    A(f"v_mov_b32 v{pc}, {hex(LOG2E)}")
    for k in range(16): pk_sub(S + 2 * k, S + 2 * k, ml)
    for k in range(16): pk_scale(S + 2 * k, S + 2 * k, pc)
    for k in range(32): A(f"v_exp_f32 v{S+k}, v{S+k}")
    A(f"v_pk_add_f32 {vr(pl,2)}, {vr(S,2)}, {vr(S+2,2)}")
    for k in range(2, 16): A(f"v_pk_add_f32 {vr(pl,2)}, {vr(pl,2)}, {vr(S+2*k,2)}")
    A(f"v_add_f32 v{ml+1}, v{pl}, v{pl+1}")
    allred_rows(ml + 1, t0, "v_add_f32")
    A(f"s_lshl_b32 s{sT0}, s{sW}, 4"); A(f"s_add_u32 s{sT0}, s{sT0}, {L_ML}")
    A(f"v_and_b32 v{t0}, 8, v{vL}"); A(f"v_add_u32 v{t0}, s{sT0}, v{t0}")
    A(f"ds_write_b64 v{t0}, {vr(ml,2)}")
    for k in range(32): A(f"v_cvt_pk_bf16_f32 v{S+k}, v{S+k}, v{S+k}")
    A("s_waitcnt lgkmcnt(0)")
    C("B3: K is consumed, the waves' (max, sum) are in LDS")
    A("s_barrier")
    stamp()
    A(f"v_lshrrev_b32 v{t0}, 5, v{vL}"); A(f"v_lshlrev_b32 v{t0}, 3, v{t0}"); A(f"v_add_u32 v{t1}, s{sT0}, v{t0}"); A(f"v_add_u32 v{t0}, {L_ML}, v{t0}")
    for k in range(4): A(f"ds_read_b64 {vr(tp+2*k,2)}, v{t0} offset:{16*k}")
    A(f"ds_read_b32 v{pl}, v{t1}")
    A("s_waitcnt lgkmcnt(0)")
    vF = V.get(2); g4 = V.get(4, 4)
    A(f"v_max3_f32 v{g4}, v{tp}, v{tp+2}, v{tp+4}"); A(f"v_max_f32 v{g4}, v{g4}, v{tp+6}")
    for r in (tp, tp + 2, tp + 4, tp + 6, pl): A(f"v_sub_f32 v{r}, v{r}, v{g4}")
    for r in (tp, tp + 2, tp + 4, tp + 6, pl): A(f"v_mul_f32 v{r}, {hex(LOG2E)}, v{r}")
    for r in (tp, tp + 2, tp + 4, tp + 6): A(f"v_exp_f32 v{r}, v{r}")
    A(f"v_exp_f32 v{vF}, v{pl}")
    A(f"v_mul_f32 v{g4+1}, v{tp}, v{tp+1}")
    for k in range(1, 4): A(f"v_fmac_f32 v{g4+1}, v{tp+2*k}, v{tp+2*k+1}")
    A(f"v_mov_b32 v{g4+2}, v{g4}"); A(f"v_mov_b32 v{g4+3}, v{g4+1}")
    A(f"v_permlane32_swap_b32 v{g4}, v{g4+2}"); A(f"v_permlane32_swap_b32 v{g4+1}, v{g4+3}")
    tag(g4, vT2)
    A(f"s_mul_i32 s{sT0}, s{sBOX}, {BOX}"); A(f"s_add_u32 s{sT1}, s{sT0}, {WS_BOX+MLO}")
    A(f"v_cmp_gt_u32 vcc, 8, v0"); A(f"v_mov_b32 v{t0}, {hex(OOB)}"); A(f"v_lshl_add_u32 v{t1}, v0, 4, s{sT1}")
    A(f"v_cndmask_b32 v{t0}, v{t0}, v{t1}, vcc")
    A.auto = None
    C("publish the workgroup's (max, sum) of both heads")
    pubstore("m", f"buffer_store_dwordx4 {vr(g4,4)}, v{t0}, {WS}, 0 offen")
    V.put(pc, 2); V.put(tp, 8); V.put(ml, 2); V.put(pl, 2)
    print("V rounds issued at the end of the softmax:", len(vseq), file=sys.stderr)
    oacc = V.get(4, 4); NQ = 8; aq = V.get(4 * NQ, 4)
    built = [0]; done = [0]
    def build(n):
        for _ in range(n):
            j = built[0]
            if j >= 32: return
            assert j - done[0] < NQ
            for k in range(4): A(f"v_and_b32 v{aq+4*(j%NQ)+k}, v{S+j}, v{vM+k}")
            built[0] += 1
    def pv():
        j = done[0]
        assert built[0] > j
        A.wait_vm(vseq[j])
        A(f"v_mfma_f32_16x16x32_bf16 {vr(oacc,4)}, {vr(aq+4*(j%NQ),4)}, {ar(4*j,4)}, {'0' if j == 0 else vr(oacc,4)}")
        done[0] += 1
    gp = V.get(4, 4); gm = V.get(4, 4); vWg = V.get(2); xc = V.get(4, 4)
    unpack(xc, xr2, 2)
    def gatherO(): return A.vmem(f"buffer_load_dwordx4 {vr(gp,4)}, v{aG2}, {WS}, 0 offen sc1")
    def gatherML(): return A.vmem(f"buffer_load_dwordx4 {vr(gm,4)}, v{aGm}, {WS}, 0 offen sc1")
    build(2)
    assert len(vseq) < GM
    while len(vseq) < 32:
        step(1)
        if len(vseq) == GM: gml = gatherML()
        n = 0
        while done[0] < min(len(vseq) - DV - 1, GM - 1) and n < 4: pv(); build(1); n += 1
    V.put(g4, 4)
    stamp()
    def weights():
        C("softmax weights of the four splits from the gathered (max, sum)")
        A.wait_vm(gml)
        A.label("L_chk2")
        chk(gm, "vcc", vT2)
        A("s_cbranch_vccnz L_slow2")
        spinrec(59)
        def slow2(): A.label("L_slow2"); bounded(); gatherML(); A("s_waitcnt vmcnt(0)"); A("s_branch L_chk2")
        slow.append(slow2)
        A(f"s_cmp_ge_u32 s{sB}, 2"); A("s_cselect_b64 vcc, -1, 0")
        A(f"v_cndmask_b32 v{t2}, v{gm}, v{gm+2}, vcc"); A(f"v_cndmask_b32 v{t3}, v{gm+1}, v{gm+3}, vcc")
        A(f"v_and_b32 v{t2}, 0xffffff00, v{t2}"); A(f"v_and_b32 v{t3}, 0xffffff00, v{t3}")
        A(f"v_mov_b32 v{vWg}, v{t2}"); allred_rows(vWg, t0, "v_max_f32")
        A(f"v_sub_f32 v{t2}, v{t2}, v{vWg}"); A(f"v_mul_f32 v{t2}, {hex(LOG2E)}, v{t2}"); A(f"v_exp_f32 v{t2}, v{t2}")
        A(f"v_mul_f32 v{t3}, v{t2}, v{t3}"); allred_rows(t3, t0, "v_add_f32")
        A(f"v_rcp_f32 v{t3}, v{t3}"); A(f"v_mul_f32 v{vWg}, v{t2}, v{t3}")
    C("w2 and wo tiles -> LDS behind V")
    tail = ragged(dW2, L_W2, 6, 3641, 864) + ragged(dWO, L_WO, 5, 3641, 864)
    wseq = []
    while len(tail) > hold:
        pace(DW)
        wseq.append(tail.pop(0)())
        while done[0] < min(32 + len(wseq) - DW - 1, GM - 1): build(NQ - (built[0] - done[0])); pv()
    while done[0] < 32:
        build(NQ - (built[0] - done[0])); pv()
        if done[0] == GM: weights()
    stamp()
    pk_scale(oacc, oacc, vF); pk_scale(oacc + 2, oacc + 2, vF)
    A(f"ds_write_b128 v{aOPw}, {vr(oacc,4)}")
    A("s_waitcnt lgkmcnt(0)")
    C("B4: the waves' o are in LDS; wave w sums and publishes a quarter")
    A("s_barrier")
    V.put(S, 32); V.put(aq, 4 * NQ); V.put(vM, 4)
    r16 = V.get(16, 4)
    A("s_mov_b64 exec, 0xffff")
    for k in range(4): A(f"ds_read_b128 {vr(r16+4*k,4)}, v{aOPr} offset:{L_OP + 1024*k}")
    A("s_waitcnt lgkmcnt(2)")
    for h in range(2): A(f"v_pk_add_f32 {vr(r16+2*h,2)}, {vr(r16+2*h,2)}, {vr(r16+4+2*h,2)}")
    A("s_waitcnt lgkmcnt(0)")
    for h in range(2): A(f"v_pk_add_f32 {vr(r16+8+2*h,2)}, {vr(r16+8+2*h,2)}, {vr(r16+12+2*h,2)}")
    for h in range(2): A(f"v_pk_add_f32 {vr(r16+2*h,2)}, {vr(r16+2*h,2)}, {vr(r16+8+2*h,2)}")
    tag(r16, vT2)
    pubstore("o", f"buffer_store_dwordx4 {vr(r16,4)}, v{aH2}, {WS}, 0 offen")
    A("s_mov_b64 exec, -1")
    stamp()
    g2 = None
    while tail:
        wseq.append(tail.pop(0)())
        if len(tail) == hold - pp and tail: g2 = gatherO()
    hf = V.get(10, 4); w2f = V.get(36, 4); wof = V.get(24, 4); yacc = V.get(12, 4)
    W2D = L_W2 - L_WO
    for st in range(5): A(f"ds_read_b64 {vr(hf+2*st,2)}, v{aHr} offset:{st*32}")
    C("the polls of o overlap: a granule that has turned valid stays valid")
    g3 = gatherO()
    if g2 is None: g2 = g3
    A(f"s_cmp_eq_u32 s{sW}, 3")
    A.wait_vm(wseq[5], "lgkmcnt(0)", trust=True)
    C("B5: w2 tile landed")
    A("s_barrier")
    stamp()
    gatherO()
    A("s_cbranch_scc1 L_noffn")
    for st in (4, 0, 1, 2, 3):
        for tl in range(3): A(f"ds_read_b64_tr_b16 {vr(w2f+12*tl+2*st,2)}, v{aW} offset:{W2D+st*4608+32*tl}")
    A("s_waitcnt lgkmcnt(12)")
    for tl in range(3): A(f"v_mfma_f32_16x16x16_bf16 {vr(yacc+4*tl,4)}, {vr(w2f+12*tl+8,2)}, {vr(hf+8,2)}, {vr(xc,4)}")
    for st in range(2):
        A(f"s_waitcnt lgkmcnt({6-6*st})")
        for tl in range(3): A(f"v_mfma_f32_16x16x32_bf16 {vr(yacc+4*tl,4)}, {vr(w2f+12*tl+4*st,4)}, {vr(hf+4*st,4)}, {vr(yacc+4*tl,4)}")
    A.label("L_noffn")
    gatherO()
    A.wait_vm(g2)
    stamp()
    A.label("L_chk3")
    chk(gp, "vcc", vT2)
    A("s_cbranch_vccnz L_slow3")
    spinrec(60)
    def slow3():
        A.label("L_slow3"); bounded()
        A("s_mov_b64 exec, vcc"); gatherO(); A("s_mov_b64 exec, -1")
        A("s_waitcnt vmcnt(1)"); A("s_branch L_chk3")
    slow.append(slow3)
    stamp()
    go = V.get(4, 4)
    untag(go, gp); pk_scale(go, go, vWg); pk_scale(go + 2, go + 2, vWg)
    tred(go)
    A(f"v_cvt_pk_bf16_f32 v{go}, v{go}, v{go}")
    A(f"ds_write_b16 v{aOw}, v{go}")
    if lateinit:
        with uncounted(): initacc()
        A("s_waitcnt vmcnt(0)")
    A(f"s_add_u32 s{sT0}, s{sS0}, 63"); A(f"v_mov_b32 v{t2}, s{sT0}"); A(f"v_mov_b32 v{t1}, {hex(OOB)}")
    A(f"s_cmp_eq_u32 s{sW}, 3")
    A.wait_vm(wseq[-1], "lgkmcnt(0)")
    C("B6: normalised o and the wo tile are in LDS")
    A("s_barrier")
    A("s_cbranch_scc1 L_fin")
    of = V.get(8, 4)
    for st in range(2):
        A(f"ds_read_b128 {vr(of+4*st,4)}, v{aOr} offset:{64*st}")
        for k in range(2):
            for tl in range(3): A(f"ds_read_b64_tr_b16 {vr(wof+8*tl+4*st+2*k,2)}, v{aW} offset:{(2*st+k)*4608+32*tl}")
    for st in range(2):
        A(f"s_waitcnt lgkmcnt({7-7*st})")
        for tl in range(3): A(f"v_mfma_f32_16x16x32_bf16 {vr(yacc+4*tl,4)}, {vr(wof+8*tl+4*st,4)}, {vr(of+4*st,4)}, {vr(yacc+4*tl,4)}")
    C("add into the accumulators; 63 earlier arrivals mean that the returned value completes the sum")
    own = V.get(4, 4); ret = V.get(4, 4); cur = V.get(); dc = V.get(4)
    for r in range(4): A(f"v_cndmask_b32 v{own+r}, v{yacc+r}, 1.0, {sr(sU3,2)}")
    for r in range(4): A(f"v_cndmask_b32 v{own+r}, v{own+r}, v{yacc+4+r}, {sr(sU1,2)}")
    def atom(r): return A.vmem(f"buffer_atomic_add_f32 v{ret+r}, v{aAc}, {WS}, 0 offen offset:{128*r} sc0 sc1")
    for r in range(4): A(f"v_cndmask_b32 v{ret+r}, v{own+r}, v{yacc+8+r}, {sr(sU2,2)}"); atom(r)
    stamp()
    for r in range(4): A(f"v_cndmask_b32 v{own+r}, v{own+r}, v{yacc+8+r}, {sr(sU2,2)}")
    def arrivals(d, v): A(f"v_sub_u32_dpp v{d}, v{v}, v{t2} quad_perm:[3,3,3,3] row_mask:0xf bank_mask:0xf")
    A("s_waitcnt vmcnt(2)")
    A.label("L_chk4")
    arrivals(dc, ret); arrivals(dc + 1, ret + 1)
    A(f"v_pk_add_f32 {vr(of,2)}, {vr(ret,2)}, {vr(own,2)}")
    A(f"v_or_b32 v{t0}, v{dc}, v{dc+1}")
    A(f"v_cvt_pk_bf16_f32 v{of+4}, v{of}, v{of+1}")
    A("s_waitcnt vmcnt(0)")
    arrivals(dc + 2, ret + 2); arrivals(dc + 3, ret + 3)
    A(f"v_or3_b32 v{t0}, v{t0}, v{dc+2}, v{dc+3}")
    A(f"v_cmp_eq_u32 vcc, 0, v{t0}")
    A(f"v_pk_add_f32 {vr(of+2,2)}, {vr(ret+2,2)}, {vr(own+2,2)}")
    A(f"v_cvt_pk_bf16_f32 v{of+5}, v{of+2}, v{of+3}")
    A(f"v_cndmask_b32 v{of+6}, v{t1}, v{aOut}, vcc")
    A.vmem(f"buffer_store_dwordx2 {vr(of+4,2)}, v{of+6}, {sr(dOUT,4)}, 0 offen")
    stamp()
    A(f"v_min3_u32 v{t3}, v{dc}, v{dc+1}, v{dc+2}"); A(f"v_min_u32 v{t3}, v{t3}, v{dc+3}"); A(f"s_movk_i32 s{sT0}, -63")
    A(f"v_cmp_gt_u32 {sr(sP,2)}, s{sT0}, v{t3}")
    A(f"v_cmp_eq_u32 {sr(sL,2)}, 0, v{dc}")
    A(f"s_andn2_b64 {sr(sP,2)}, {sr(sP,2)}, vcc")
    def singles():
        C("last arrival on some of the four lines only: single elements")
        sQ = 4
        A(f"v_cndmask_b32 v{of+7}, v{t1}, v{aOut}, {sr(sP,2)}")
        for r in range(1, 4): A(f"v_cmp_eq_u32 {sr(sQ+2*r,2)}, 0, v{dc+r}")
        for r in range(4):
            A(f"v_cndmask_b32 v{of+r}, v{t1}, v{of+7}, {sr(sQ+2*r if r else sL,2)}")
            A.vmem(f"buffer_store_short{'_d16_hi' if r & 1 else ''} v{of+4+(r>>1)}, v{of+r}, {sr(dOUT,4)}, 0 offen offset:{2*r}")
        for r in range(4): A(f"v_add_u32 v{dc+r}, 63, v{dc+r}")
        A(f"v_max3_u32 v{t3}, v{dc}, v{dc+1}, v{dc+2}"); A(f"v_max_u32 v{t3}, v{t3}, v{dc+3}")
        A(f"v_cmp_lt_u32 vcc, 63, v{t3}")
    A("s_cbranch_scc0 L_mixedb"); singles(); A("s_cbranch_vccnz L_mixed")
    A.label("L_mixedb")
    def mixed():
        A.label("L_mixed")
        C("an add that reached a line before its initialisation is lost: wait for the initialisation, add again")
        bounded()
        for r in range(4):
            A(f"v_cmp_lt_u32 vcc, 63, v{dc+r}"); A("s_and_b64 exec, exec, vcc"); A(f"s_cbranch_scc0 L_rt{r}")
            A.vmem(f"buffer_load_dword v{cur}, v{aAc}, {WS}, 0 offen offset:{128*r} sc1")
            A("s_waitcnt vmcnt(0)")
            arrivals(t0, cur); A(f"v_add_u32 v{t0}, 63, v{t0}")
            A(f"v_cmp_ge_u32 vcc, 63, v{t0}"); A("s_and_b64 exec, exec, vcc"); A(f"s_cbranch_scc0 L_rt{r}")
            A(f"v_mov_b32 v{ret+r}, v{own+r}"); atom(r)
            A("s_waitcnt vmcnt(0)")
            A.label(f"L_rt{r}")
            A("s_mov_b64 exec, -1")
        A("s_branch L_chk4")
    slow.append(mixed)
    C("the last arrival on the first chunk has seen every workgroup past its read of the epoch word: advance it")
    A(f"s_or_b32 s{sT0}, s{sS}, s{sW}"); A("s_cbranch_scc1 L_fin")
    A(f"s_bitcmp1_b32 s{sL}, 3"); A("s_cbranch_scc0 L_fin")
    A(f"v_mov_b32 v{t0}, s{sE}"); A(f"v_mov_b32 v{t1}, 0"); A("s_mov_b64 exec, 1")
    A.vmem(f"buffer_store_dword v{t0}, v{t1}, {WS}, 0 offen")
    if probe2:
        A("s_waitcnt vmcnt(0)"); A(f"s_memrealtime s[{sSt}:{sSt+1}]"); A("s_mov_b32 s100, 0"); A("s_atomic_add s100, s[14:15], 0 glc"); A("s_waitcnt lgkmcnt(0)")
        if probe2 is True: A(f"s_lshl_b32 s{sT0}, s{sSt}, 3"); A(f"s_sub_u32 s{sT0}, s{sT0}, s100")
        elif probe2 == "skew":
            A("s_mov_b32 s101, 0"); A("s_atomic_add s101, s[14:15], 4 glc"); A("s_waitcnt lgkmcnt(0)")
            A("s_not_b32 s101, s101"); A(f"s_sub_u32 s{sT0}, s100, s101"); A(f"s_mul_i32 s{sT0}, s{sT0}, 40")
        else: A(f"s_mul_i32 s{sT0}, s100, 10"); A(f"s_add_u32 s{sT0}, s{sT0}, 10000")
        A(f"s_min_u32 s{sT0}, s{sT0}, 100000")
        A.label("L_probe")
        A("s_memrealtime s[100:101]"); A("s_waitcnt lgkmcnt(0)"); A(f"s_sub_u32 s100, s100, s{sSt}"); A(f"s_cmp_lt_u32 s100, s{sT0}"); A("s_cbranch_scc1 L_probe")
    A.label("L_fin")
    if stamps:
        A("s_mov_b64 exec, -1"); A("s_waitcnt vmcnt(0)")
        A(f"s_memrealtime s[{sSt}:{sSt+1}]"); A("s_waitcnt lgkmcnt(0)"); A(f"v_writelane_b32 v{vSt}, s{sSt}, 62")
        A(f"v_writelane_b32 v{vSt}, s{sSpin}, 61")
        A(f"s_getreg_b32 s{sSt}, hwreg(HW_REG_XCC_ID, 0, 4)"); A(f"v_writelane_b32 v{vSt}, s{sSt}, 63")
        A(f"s_lshl_b32 s{sT0}, s2, 10"); A(f"s_add_u32 s{sT0}, s{sT0}, {WS_ST}"); A(f"v_lshl_add_u32 v{t0}, v0, 2, s{sT0}")
        if stamps == "tiny":
            A(f"s_lshl2_add_u32 s{sT0}, s2, s{sW}"); A(f"s_lshl3_add_u32 s{sT0}, s{sT0}, {WS_ST}"); A(f"v_lshrrev_b32 v{t0}, 5, v{vL}"); A(f"v_lshl_add_u32 v{t0}, v{t0}, 2, s{sT0}")
            A("s_mov_b32 exec_lo, 1"); A("s_mov_b32 exec_hi, 0x40000000")
        A.vmem(f"buffer_store_dword v{vSt}, v{t0}, {WS}, 0 offen")
    A("s_endpgm")
    C("---- rare paths")
    for f in slow: f()
    A.label("L_end")
    A("s_endpgm")
    acc_off = (V.top + 3) // 4 * 4
    A.raw('.section .rodata,"a"'); A.raw(".p2align 6"); A.raw(f".amdhsa_kernel {NAME}_kernel")
    A.raw(f"  .amdhsa_next_free_vgpr {acc_off + 128}"); A.raw("  .amdhsa_next_free_sgpr 102"); A.raw(f"  .amdhsa_accum_offset {acc_off}")
    A.raw("  .amdhsa_group_segment_fixed_size 0"); A.raw("  .amdhsa_kernarg_size 88"); A.raw("  .amdhsa_user_sgpr_count 2")
    A.raw("  .amdhsa_user_sgpr_kernarg_segment_ptr 1"); A.raw("  .amdhsa_system_sgpr_workgroup_id_x 1"); A.raw(".end_amdhsa_kernel")
    return A.text()

if __name__ == "__main__":
    kw = eval("dict(" + (sys.argv[2] if len(sys.argv) > 2 else "") + ")")
    open(sys.argv[1], "w").write(gen(**kw))
```

```python
import sys, struct
from asmlib import *
NAME = "parallel_sum__sliding_block_cached__dense_activation_silu__decode"

def f2u(x): return struct.unpack("<I", struct.pack("<f", x))[0]
LOG2E = f2u(1.4426950408889634); SCALE = f2u(128 ** -0.5)
OOB = 0x40000000
WS_BOX, BOX = 0x1000, 2304
MLO = 2176
WS_AC = 0x100000
WS_ST = 0x400000
L_WQ = 131072 - 20480; L_WO = L_WQ
L_XN = 131072; L_Q = L_XN + 1152; L_H = L_Q + 512; L_ML = L_H + 640; L_O = L_ML + 128; L_FL = L_O + 512
L_W1 = 134144; L_W2 = L_W1; L_OP = 0
LDS_BYTES = L_W1 + 24576
HEADER = open("cdna_kernels/" + NAME + ".s.ref").read().split("; Override launch")[0]

DOC = """;
;   2. attention over 512 of the 2048 window keys for the two query heads of (batch, kv head)
; exchange through its L2 with plain stores, any other placement switches to write-through stores.
"""

def gen(D=6, DV=6, DW=8, TH=300, GK=26, GM=20, hold=3, pp=2, sb=14, rc=(1, 0, 0, 0, 3, 0, 0, 2),
        stamps=False, sel=None, scramble=False, force1=False, lateinit=False, spin=None, rtab=False, m2=0, wi=1, Dlo=0, pk=0, thr=8, nlo=99, probe2=False, n0=3, lt=1, DC=7):
    if spin is None: spin = 20000 if stamps else 1 << 21
    A = Asm(); V = VAlloc(1, 256); A.th = TH
    def C(t): A.raw("    ; " + t)
    A.raw(HEADER.rstrip("\n"))
    A.raw(f"; @launch grid=(256,1,1) block=(256,1,1) lds={LDS_BYTES}")
    A.raw(DOC.rstrip("\n"))
    A.raw('.amdgcn_target "amdgcn-amd-amdhsa--gfx950"')
    A.raw(".text"); A.raw(f".globl {NAME}_kernel"); A.raw(".p2align 8"); A.raw(f".type {NAME}_kernel,@function")
    A.label(f"{NAME}_kernel")
    sW = 3
    pX, pK, pV, pWQ, pWO, pW1, pW2, pOUT, pWS = 4, 6, 8, 10, 12, 16, 18, 20, 24
    sMode, sIt, sPC = 22, 23, 26
    dX, dK, dV, dWQ, dW1, dW2, dWO, dWS, dOUT = 28, 32, 36, 40, 44, 48, 52, 56, 60
    sG, sS, sB, sHKV, sBOX, sRot, sSo, sE, sT0, sT1, sT2, sS0 = 64, 65, 66, 67, 68, 69, 70, 71, 72, 73, 74, 75
    sSel, sSelA, sSelB, sU1, sU2, sSpin, sC, sM, sP, sL, sU3, sSt = 76, 80, 81, 82, 84, 86, 87, 88, 90, 94, 96, 98
    WS = sr(dWS, 4)
    slow = []
    vSt = V.get() if stamps else None
    nst = [1]; cnt = [0]
    class quiet:
        def __enter__(s): s.a = A.auto; A.auto = None
        def __exit__(s, *a): A.auto = s.a
    class uncounted:
        def __enter__(s): s.n = len(A.vm)
        def __exit__(s, *a): del A.vm[s.n:]
    def stamp():
        cnt[0] += 1
        if stamps is True and (sel is None or cnt[0] in sel):
            with quiet():
                A(f"s_memrealtime s[{sSt}:{sSt+1}]"); A("s_waitcnt lgkmcnt(0)"); A(f"v_writelane_b32 v{vSt}, s{sSt}, {nst[0]}"); nst[0] += 1
    def spinrec(k):
        if stamps: A(f"v_writelane_b32 v{vSt}, s{sSpin}, {k}")
    def srd(d, p, off_s, nrec):
        if off_s is None: A(f"s_mov_b32 s{d}, s{p}"); A(f"s_mov_b32 s{d+1}, s{p+1}")
        else: A(f"s_add_u32 s{d}, s{p}, s{off_s}"); A(f"s_addc_u32 s{d+1}, s{p+1}, 0")
        A(f"s_mov_b32 s{d+2}, {nrec}"); A(f"s_mov_b32 s{d+3}, 0x20000")
    def bounded(): A(f"s_sub_u32 s{sSpin}, s{sSpin}, 1"); A("s_cbranch_scc1 L_end")

    def initacc():
        C("workgroup (g < 48, s) initialises accumulator line 48 s + g")
        with quiet():
            i4 = V.get(4, 4)
            for r in range(3): A(f"v_mov_b32 v{i4+r}, 0")
            A(f"v_mov_b32 v{i4+3}, s{sS0}")
            A(f"s_mul_i32 s{sT0}, s{sS}, 48"); A(f"s_add_u32 s{sT0}, s{sT0}, s{sG}"); A(f"s_lshl_b32 s{sT0}, s{sT0}, 7"); A(f"s_add_u32 s{sT0}, s{sT0}, {WS_AC}")
            A(f"s_cmp_lt_u32 s{sG}, 48"); A(f"s_cselect_b32 s{sT1}, 4, 0")
            A(f"v_lshl_add_u32 v{t0}, v0, 4, s{sT0}"); A(f"v_cmp_gt_u32 vcc, s{sT1}, v0"); A(f"v_mov_b32 v{t1}, {hex(OOB)}")
            A(f"v_cndmask_b32 v{t0}, v{t1}, v{t0}, vcc")
            A.vmem(f"buffer_store_dwordx4 {vr(i4,4)}, v{t0}, {WS}, 0 offen sc1")
            V.put(i4, 4)
    vJ = V.get(); vPa = V.get(2); vL = V.get(); t0 = V.get(); t1 = V.get(); t2 = V.get(); t3 = V.get(); vX = V.get(); vWq = V.get()
    A("s_load_dwordx16 s[4:19], s[0:1], 0")
    if stamps or probe2: A(f"s_memrealtime s[{sSt}:{sSt+1}]")
    A("s_cmpk_ge_u32 s2, 256"); A("s_cbranch_scc1 L_end")
    A(f"v_readfirstlane_b32 s{sM}, v0")
    if scramble:
        A(f"s_lshr_b32 s{sG}, s2, 2"); A(f"s_and_b32 s{sS}, s2, 3")
    else:
        A(f"s_and_b32 s{sT0}, s2, 7"); A(f"s_bfe_u32 s{sT1}, s2, 0x30003"); A(f"s_lshl3_add_u32 s{sG}, s{sT0}, s{sT1}")
        A(f"s_lshr_b32 s{sS}, s2, 6")
    C("pull this kernel's text into L2, one dword per 64 bytes")
    A(f"s_getpc_b64 s[{sPC}:{sPC+1}]")
    A.label("L_pc")
    A(f"v_lshlrev_b32 v{vPa}, 6, v0"); A(f"v_min_u32 v{vPa}, L_end-L_pc, v{vPa}"); A(f"v_mov_b32 v{vPa+1}, s{sPC+1}")
    A(f"v_add_co_u32 v{vPa}, vcc, s{sPC}, v{vPa}")
    A(f"v_and_b32 v{vL}, 63, v0"); A(f"s_lshr_b32 s{sW}, s{sM}, 6")
    A(f"v_addc_co_u32 v{vPa+1}, vcc, 0, v{vPa+1}, vcc")
    A.vmem(f"global_load_dword v{vJ}, {vr(vPa,2)}, off")
    C("wq tile: rows 144 s.., columns 64 g.. -> LDS")
    A(f"v_lshrrev_b32 v{t0}, 3, v0"); A(f"v_and_b32 v{t1}, 7, v0"); A(f"v_lshlrev_b32 v{t1}, 4, v{t1}")
    A(f"v_lshl_or_b32 v{vWq}, v{t0}, 13, v{t1}")
    A(f"s_lshl4_add_u32 m0, s{sM}, {L_WQ}")
    A(f"s_mul_i32 s{sT1}, s{sS}, {144*8192}"); A(f"s_lshl_b32 s{sT2}, s{sG}, 7"); A(f"s_add_u32 s{sT1}, s{sT1}, s{sT2}")
    A(f"s_mov_b32 s{dWQ+2}, {143*8192+128}"); A(f"s_mov_b32 s{dWQ+3}, 0x20000"); A(f"s_lshl_b32 s{sC}, s{dWQ+3}, 1")
    A("s_waitcnt lgkmcnt(0)")
    A(f"s_add_u32 s{dWQ}, s{pWQ}, s{sT1}"); A(f"s_addc_u32 s{dWQ+1}, s{pWQ+1}, 0")
    for r in range(5):
        if r: A("s_addk_i32 m0, 0x1000"); A(f"v_add_u32 v{vWq}, s{sC}, v{vWq}")
        A.vmem(f"buffer_load_dwordx4 v{vWq}, {sr(dWQ,4)}, 0 offen nt lds")
    A("s_load_dwordx2 s[20:21], s[0:1], 64"); A("s_load_dwordx2 s[24:25], s[0:1], 80")
    if probe2: A("s_load_dwordx2 s[14:15], s[0:1], 72")
    if rtab:
        A(f"s_lshl_b32 s{sT0}, s2, 2"); A(f"s_load_dword s100, s[14:15], s{sT0}")
    if stamps: A(f"v_mov_b32 v{vSt}, 0"); A(f"v_writelane_b32 v{vSt}, s{sSt}, 0")
    C("x row of batch w")
    A(f"s_mul_i32 s{sT0}, s{sM}, 18"); A(f"s_lshl_b32 s{sM}, s{sM}, 4")
    A(f"v_lshlrev_b32 v{vX}, 5, v{vL}")
    srd(dX, pX, sT0, 1152)
    xr = V.get(8, 4)
    A.vmem(f"buffer_load_dwordx4 {vr(xr,4)}, v{vX}, {sr(dX,4)}, 0 offen")
    x1 = A.vmem(f"buffer_load_dwordx4 {vr(xr+4,4)}, v{vX}, {sr(dX,4)}, 0 offen offset:16")
    A(f"s_mul_i32 s{sT1}, s{sS}, {144*9216}"); A(f"s_mul_i32 s{sT2}, s{sG}, 144"); A(f"s_add_u32 s{sT1}, s{sT1}, s{sT2}")
    srd(dW1, pW1, sT1, 143 * 9216 + 144)
    def ragged(d, lbase, rounds, magic, rowpad):
        vP16 = V.get(); vMul = V.get(); vo = V.get()
        def mk(r):
            def f():
                with quiet():
                    if r == 0: A(f"v_lshlrev_b32 v{vP16}, 4, v0"); A(f"v_mul_u32_u24 v{vMul}, {magic}, v0")
                    else: A(f"v_add_u32 v{vP16}, 0x1000, v{vP16}"); A(f"v_add_u32 v{vMul}, {magic*256}, v{vMul}")
                    A(f"s_movk_i32 s{sC}, {rowpad}")
                    A(f"v_lshrrev_b32 v{vo}, 16, v{vMul}")
                    A(f"s_add_u32 m0, s{sM}, {lbase + r*4096}")
                    A(f"v_mad_u32_u24 v{vo}, v{vo}, s{sC}, v{vP16}")
                    q = A.vmem(f"buffer_load_dwordx4 v{vo}, {sr(d,4)}, 0 offen nt lds")
                if lt and r == 5: A.vm[q].light = True
                if r == rounds - 1: V.put(vP16); V.put(vMul); V.put(vo)
                return q
            return f
        return [mk(r) for r in range(rounds)]
    w1q = ragged(dW1, L_W1, 6, 7282, 9072); lastA = [None]
    V.put(vWq); V.put(vX); V.put(vPa, 2)
    stamp()
    C("K / V window of (batch, kv head); the four splits interleave in 16 KB pieces")
    GAP = 3 << sb; VAL = 0x7f000 & ~GAP
    A(f"s_and_b32 s{sB}, s{sG}, 3"); A(f"s_lshr_b32 s{sHKV}, s{sG}, 2")
    A(f"s_lshl4_add_u32 s{sT0}, s{sB}, s{sHKV}"); A(f"s_lshl_b32 s{sT0}, s{sT0}, 21")
    A(f"s_lshl_b32 s{sT1}, s{sS}, {sb}"); A(f"s_add_u32 s{sT0}, s{sT0}, s{sT1}"); A(f"s_add_u32 s{sT0}, s{sT0}, {6144*256}")
    srd(dK, pK, sT0, VAL + 4096); srd(dV, pV, sT0, VAL + 4096)
    A(f"s_lshl2_add_u32 s{sBOX}, s{sG}, s{sS}")
    C("start block of the walk over this workgroup's 32 blocks of 16 keys (spreads the load over the memory channels)")
    A(f"s_mov_b32 s{sRot}, 0")
    for w, bit in zip(rc, (5, 6, 7, 4, 2, 3, 0, 1)):
        if w: A(f"s_bitcmp1_b32 s{sBOX}, {bit}"); A(f"s_cselect_b32 s{sT1}, {w}, 0"); A(f"s_add_u32 s{sRot}, s{sRot}, s{sT1}")
    if rtab: A("s_waitcnt lgkmcnt(0)"); A(f"s_mov_b32 s{sRot}, s100")
    A(f"s_lshl_b32 s{sRot}, s{sRot}, 12"); A(f"s_and_b32 s{sRot}, s{sRot}, 0x1f000")
    A(f"s_and_b32 s{sT1}, s{sRot}, {hex(0x1f000 & ~((1 << sb) - 1))}"); A(f"s_mul_i32 s{sT1}, s{sT1}, 3"); A(f"s_add_u32 s{sRot}, s{sRot}, s{sT1}")
    vG = V.get(); vI = V.get(); vKo = V.get(4); vVo = V.get()
    A(f"v_lshrrev_b32 v{vG}, 4, v{vL}"); A(f"v_and_b32 v{vI}, 15, v{vL}")
    A(f"v_lshlrev_b32 v{vVo}, 4, v0")
    A(f"v_lshlrev_b32 v{t0}, 6, v{vG}"); A(f"v_xor_b32 v{vKo}, v{vVo}, v{t0}")
    for i in range(1, 4): A(f"v_xor_b32 v{vKo+i}, {i*16}, v{vKo}")

    kseq = []; vseq = []; lim = [0]; incomp = [0]
    dyn = [0]; sLo = 26
    def pace(d):
        if DC and incomp[0]: d = DC
        def wait(d):
            k = 0; n = 0
            for x in reversed(A.vm):
                heavy = " nt" in x.text and not getattr(x, "light", False)
                if heavy and k == d - 1: break
                k += heavy; n += 1
            A(f"s_waitcnt vmcnt({n})")
        if 0 < dyn[0] <= nlo:
            A(f"s_cmp_eq_u32 s{sLo}, 0"); A(f"s_cbranch_scc1 L_pa{dyn[0]}"); wait(Dlo); A.label(f"L_pa{dyn[0]}"); dyn[0] += 1
        wait(d)
    def so(j):
        if j == 0: A(f"s_mov_b32 s{sSo}, s{sRot}")
        else: A(f"s_add_u32 s{sSo}, s{sSo}, {hex(GAP + 0x1000)}"); A(f"s_and_b32 s{sSo}, s{sSo}, {hex(VAL)}")
    def pos(): return len(kseq) + len(vseq)
    def step(n=1):
        for _ in range(n):
            if len(kseq) < 32:
                j = len(kseq)
                A(f"s_add_u32 m0, s{sM}, {j*4096}"); so(j); pace(D)
                kseq.append(A.vmem(f"buffer_load_dwordx4 v{vKo + (j & 3)}, {sr(dK,4)}, s{sSo} offen nt lds"))
                if w1q: pace(D); lastA[0] = w1q.pop(0)()
            else:
                j = len(vseq)
                so(j); pace(DV)
                vseq.append(A.vmem(f"buffer_load_dwordx4 {ar(4*j,4)}, v{vVo}, {sr(dV,4)}, s{sSo} offen nt"))
    def auto():
        incomp[0] = 1
        if pos() < lim[0]: step(1)
        incomp[0] = 0
    def allred_rows(v, t, op):
        A(f"v_mov_b32 v{t}, v{v}"); A(f"v_permlane16_swap_b32 v{v}, v{t}"); A(f"{op} v{v}, v{v}, v{t}")
        A(f"v_mov_b32 v{t}, v{v}"); A(f"v_permlane32_swap_b32 v{v}, v{t}"); A(f"{op} v{v}, v{v}, v{t}")
    def allred64(v, t):
        for k in (8, 4, 2, 1): A(f"v_add_f32_dpp v{v}, v{v}, v{v} row_ror:{k} row_mask:0xf bank_mask:0xf")
        allred_rows(v, t, "v_add_f32")
    def unpack(dst, src, n):
        for k in range(n): A(f"v_and_b32 v{dst+2*k+1}, 0xffff0000, v{src+k}"); A(f"v_lshlrev_b32 v{dst+2*k}, 16, v{src+k}")
    def pk_sub(d, a, b): A(f"v_pk_add_f32 {vr(d,2)}, {vr(a,2)}, {vr(b,2)} op_sel_hi:[1,0] neg_lo:[0,1] neg_hi:[0,1]")
    def pk_scale(d, a, b): A(f"v_pk_mul_f32 {vr(d,2)}, {vr(a,2)}, {vr(b,2)} op_sel_hi:[1,0]")

    def srdW():
        A(f"s_mul_i32 s{sT1}, s{sS}, 288")
        A(f"s_mul_i32 s{sT0}, s{sG}, {72*1152}"); A(f"s_add_u32 s{sT0}, s{sT0}, s{sT1}"); srd(dW2, pW2, sT0, 71 * 1152 + 288)
        A(f"s_mul_i32 s{sT0}, s{sG}, {64*1152}"); A(f"s_add_u32 s{sT0}, s{sT0}, s{sT1}"); srd(dWO, pWO, sT0, 63 * 1152 + 288)
    step(1)
    A("s_waitcnt lgkmcnt(0)")
    A(f"s_load_dword s{sE}, s[{pWS}:{pWS+1}], 0")
    if probe2:
        A("s_lshr_b32 s100, s2, 3"); A(f"s_or_b32 s100, s100, s{sW}"); A("s_cbranch_scc1 L_pr2"); A(f"s_mov_b32 s100, s{sSt}")
        if probe2 is True: A("s_atomic_add s100, s[14:15], 0")
        elif probe2 == "skew":
            A("s_not_b32 s101, s100"); A("s_atomic_umax s100, s[14:15], 0"); A("s_atomic_umax s101, s[14:15], 4")
        else:
            A(f"s_sub_u32 s101, 0, s100"); A(f"s_bitcmp1_b32 {probe2}, s2"); A("s_cselect_b32 s100, s100, s101"); A("s_atomic_add s100, s[14:15], 0")
        A.label("L_pr2")
    srd(dWS, pWS, None, 0x800000 if stamps else WS_AC + 192 * 128)
    A(f"s_mov_b32 s{sMode}, {1 if force1 else 0}"); A(f"s_mov_b32 s{sIt}, 0")
    step(n0 - 1)
    C("layer norm of batch w, lanes 0..35 hold 16 values each; bf16 roundings as in the reference")
    A.wait_vm(x1)
    stamp()
    A.cyc = 0; lim[0] = D + 6; A.auto = auto
    xf = V.get(16); d16 = V.get(16); p2 = V.get(2); pm = V.get(2)
    unpack(xf, xr, 8)
    A(f"v_pk_add_f32 {vr(p2,2)}, {vr(xf,2)}, {vr(xf+2,2)}")
    for k in range(2, 8): A(f"v_pk_add_f32 {vr(p2,2)}, {vr(p2,2)}, {vr(xf+2*k,2)}")
    A(f"v_add_f32 v{pm}, v{p2}, v{p2+1}")
    allred64(pm, t0)
    A(f"v_mul_f32 v{pm}, {hex(f2u(1/576))}, v{pm}")
    for k in range(8): pk_sub(d16 + 2 * k, xf + 2 * k, pm)
    A(f"v_pk_mul_f32 {vr(p2,2)}, {vr(d16,2)}, {vr(d16,2)}")
    for k in range(1, 8): A(f"v_pk_fma_f32 {vr(p2,2)}, {vr(d16+2*k,2)}, {vr(d16+2*k,2)}, {vr(p2,2)}")
    A(f"v_cmp_gt_u32 vcc, 36, v{vL}"); A(f"v_add_f32 v{t1}, v{p2}, v{p2+1}"); A(f"v_cndmask_b32 v{t1}, 0, v{t1}, vcc")
    allred64(t1, t0)
    A(f"v_mul_f32 v{t1}, {hex(f2u(1/576))}, v{t1}")
    A(f"v_cvt_pk_bf16_f32 v{t0}, v{pm}, v{t1}")
    A(f"v_lshlrev_b32 v{pm}, 16, v{t0}"); A(f"v_and_b32 v{t1}, 0xffff0000, v{t0}")
    A(f"v_add_f32 v{t1}, {hex(f2u(1e-5))}, v{t1}")
    A(f"v_cvt_pk_bf16_f32 v{t1}, v{t1}, v{t1}"); A(f"v_lshlrev_b32 v{t1}, 16, v{t1}")
    A(f"v_sqrt_f32 v{t1}, v{t1}")
    A(f"v_cvt_pk_bf16_f32 v{t1}, v{t1}, v{t1}"); A(f"v_lshlrev_b32 v{t1}, 16, v{t1}")
    A(f"v_rcp_f32 v{p2}, v{t1}")
    for k in range(8): pk_sub(d16 + 2 * k, xf + 2 * k, pm)
    for k in range(8): A(f"v_cvt_pk_bf16_f32 v{xr+k}, v{d16+2*k}, v{d16+2*k+1}")
    unpack(xf, xr, 8)
    for k in range(8): pk_scale(xf + 2 * k, xf + 2 * k, p2)
    for k in range(8): A(f"v_cvt_pk_bf16_f32 v{xr+k}, v{xf+2*k}, v{xf+2*k+1}")
    A(f"s_mul_i32 s{sT0}, s{sS}, 9"); A(f"s_sub_u32 s{sT1}, s{sW}, s{sS}"); A(f"s_mul_i32 s{sT1}, s{sT1}, 288"); A(f"s_add_u32 s{sT1}, s{sT1}, {L_XN}")
    A(f"v_lshl_add_u32 v{t0}, v{vL}, 5, s{sT1}")
    with quiet():
        A(f"s_lshl_b64 exec, 0x1ff, s{sT0}")
        A(f"ds_write_b128 v{t0}, {vr(xr,4)}"); A(f"ds_write_b128 v{t0}, {vr(xr+4,4)} offset:16")
        A("s_mov_b64 exec, -1")
    V.put(xf, 16); V.put(d16, 16); V.put(p2, 2); V.put(pm, 2)
    A("s_waitcnt lgkmcnt(0)")
    V.put(xr, 8)
    C("tags of this launch; first value of the arrival counts")
    vT1 = V.get(); vT2 = V.get()
    A(f"s_add_u32 s{sE}, s{sE}, 1"); A(f"s_mul_i32 s{sT0}, s{sE}, 0x9E3779B1")
    A(f"s_getreg_b32 s{sT1}, hwreg(HW_REG_XCC_ID, 0, 4)"); A(f"s_lshl_b32 s{sT1}, s{sT1}, 28")
    A(f"s_add_u32 s{sT2}, s{sT0}, 0x4a3c5e12"); A(f"s_xor_b32 s{sT0}, s{sT0}, s{sT1}")
    A(f"v_mov_b32 v{vT1}, s{sT0}"); A(f"v_mov_b32 v{vT2}, s{sT2}")
    A(f"s_lshl_b32 s{sS0}, s{sE}, 8"); A(f"s_and_b32 s{sS0}, s{sS0}, 0x7fff00"); A(f"s_or_b32 s{sS0}, s{sS0}, 0x4b000000")
    if not lateinit: initacc()
    for r in range(4): A(f"s_mov_b32 s{sSel+r}, {hex(0x07060500 + r)}")
    A(f"s_mov_b32 s{sSelA}, 0x0c0c0400"); A(f"s_mov_b32 s{sSelB}, 0x04000c0c")
    def lanemask(s_, m): A(f"s_mov_b32 s{s_}, {hex(m)}"); A(f"s_mov_b32 s{s_+1}, {hex(m)}")
    lanemask(sU1, 0x00f000f0); lanemask(sU2, 0x0f000f00)
    A(f"s_mov_b32 s{sSpin}, {spin}")
    def tag(v, vT):
        for r in range(4): A(f"v_perm_b32 v{v+r}, v{v+r}, v{vT}, s{sSel+r}")
    def chk(v, dst, vT):
        A(f"v_perm_b32 v{t0}, v{v+1}, v{v}, s{sSelA}"); A(f"v_perm_b32 v{t1}, v{v+3}, v{v+2}, s{sSelB}")
        A(f"v_or_b32 v{t0}, v{t0}, v{t1}"); A(f"v_cmp_ne_u32 {dst}, v{t0}, v{vT}")
    def untag(d, v):
        for r in range(4): A(f"v_and_b32 v{d+r}, 0xffffff00, v{v+r}")
    def tred(v):
        A(f"v_permlane32_swap_b32 v{v}, v{v+2}"); A(f"v_permlane32_swap_b32 v{v+1}, v{v+3}")
        A(f"v_add_f32 v{v}, v{v}, v{v+2}"); A(f"v_add_f32 v{v+1}, v{v+1}, v{v+3}")
        A(f"v_permlane16_swap_b32 v{v}, v{v+1}"); A(f"v_add_f32 v{v}, v{v}, v{v+1}")
    C("addresses of the projection stage")
    vB3 = V.get(); vQ4 = V.get()
    A(f"v_and_b32 v{vB3}, 3, v{vL}"); A(f"v_lshrrev_b32 v{vQ4}, 2, v{vL}")
    aXb = V.get(); aWq = V.get(); aW1 = V.get(); aW1h = V.get(); aH1 = V.get()
    A(f"v_mul_u32_u24 v{aXb}, 288, v{vB3}"); A(f"v_lshl_add_u32 v{aXb}, v{vG}, 3, v{aXb}"); A(f"v_add_u32 v{aXb}, {L_XN}, v{aXb}")
    A(f"s_lshl_b32 s{sT0}, s{sW}, 5"); A(f"v_lshlrev_b32 v{t2}, 3, v{vB3}")
    A(f"v_lshl_add_u32 v{aWq}, v{vQ4}, 7, v{t2}"); A(f"s_add_u32 s{sT1}, s{sT0}, {L_WQ}"); A(f"v_add_u32 v{aWq}, s{sT1}, v{aWq}")
    A(f"v_mul_u32_u24 v{aW1h}, 144, v{vQ4}"); A(f"v_add_u32 v{aW1h}, v{aW1h}, v{t2}"); A(f"v_add_u32 v{aW1h}, {L_W1}, v{aW1h}")
    A(f"v_add_u32 v{aW1}, s{sT0}, v{aW1h}")
    A(f"s_lshl_b32 s{sT0}, s{sW}, 6"); A(f"v_lshlrev_b32 v{t2}, 4, v{vG}")
    A(f"v_lshl_add_u32 v{aH1}, v{vB3}, 8, v{t2}"); A(f"v_add_u32 v{aH1}, s{sT0}, v{aH1}")
    A(f"v_mul_u32_u24 v{t3}, 288, v{vB3}"); A(f"v_add_u32 v{t3}, v{t3}, v{t2}")
    A(f"s_add_u32 s{sT0}, s{sT0}, 1024"); A(f"v_add_u32 v{t0}, s{sT0}, v{t3}")
    A(f"v_cndmask_b32 v{aH1}, v{aH1}, v{t0}, {sr(sU1,2)}")
    A(f"v_add_u32 v{t0}, {1024+256}, v{t3}")
    A(f"v_cndmask_b32 v{aH1}, v{aH1}, v{t0}, {sr(sU2,2)}")
    A(f"s_lshl_b32 s{sT0}, 0x01000100, s{sW}"); A(f"s_or_b32 vcc_lo, s{sT0}, 0x00ff00ff"); A("s_mov_b32 vcc_hi, 0x00ff00ff")
    A(f"s_mul_i32 s{sT0}, s{sBOX}, {BOX}"); A(f"s_add_u32 s{sT0}, s{sT0}, {WS_BOX}")
    A(f"v_add_u32 v{aH1}, s{sT0}, v{aH1}"); A(f"v_mov_b32 v{t0}, {hex(OOB)}"); A(f"v_cndmask_b32 v{aH1}, v{t0}, v{aH1}, vcc")
    while len(kseq) < D + 6: step(1)
    assert not w1q
    A.wait_vm(lastA[0])
    C("B1: wq / w1 tiles and xn are in LDS")
    A("s_barrier")
    step(1); A.cyc = 0; lim[0] = 26
    stamp()
    fr = [V.get(24), V.get(24)]; acc = V.get(12, 4)
    def batchA(bi):
        f = fr[bi & 1]
        for k in range(3):
            st = 3 * bi + k
            A(f"ds_read_b64 {vr(f+8*k,2)}, v{aXb} offset:{st*32}")
            A(f"ds_read_b64_tr_b16 {vr(f+8*k+2,2)}, v{aWq} offset:{st*2048}")
            A(f"ds_read_b64_tr_b16 {vr(f+8*k+4,2)}, v{aW1} offset:{st*2304}")
            A(f"ds_read_b64_tr_b16 {vr(f+8*k+6,2)}, v{aW1h} offset:{st*2304+128}")
    def mfmaA(bi):
        f = fr[bi & 1]
        for k in range(3):
            for tl in range(3):
                c = "0" if (bi == 0 and k == 0) else vr(acc+4*tl, 4)
                A(f"v_mfma_f32_16x16x16_bf16 {vr(acc+4*tl,4)}, {vr(f+8*k+2+2*tl,2)}, {vr(f+8*k,2)}, {c}")
    batchA(0); A("s_waitcnt lgkmcnt(0)")
    batchA(1); mfmaA(0); A("s_waitcnt lgkmcnt(0)")
    A("s_nop 7")
    batchA(2); mfmaA(1); A("s_waitcnt lgkmcnt(0)")
    mfmaA(2)
    o4 = V.get(4, 4)
    for r in range(4): A(f"v_cndmask_b32 v{o4+r}, v{acc+r}, v{acc+4+r}, {sr(sU1,2)}")
    for r in range(4): A(f"v_cndmask_b32 v{o4+r}, v{o4+r}, v{acc+8+r}, {sr(sU2,2)}")
    tag(o4, vT1)
    A.vmem(f"buffer_store_dwordx4 {vr(o4,4)}, v{aH1}, {WS}, 0 offen")
    stamp()
    V.put(fr[0], 24); V.put(fr[1], 24); V.put(acc, 12)
    for r in (aXb, aWq, aW1, aW1h): V.put(r)
    step(1)
    assert len(kseq) <= 27
    C("B1b: the wq staging area may be overwritten by K")
    A("s_barrier")
    V.put(aH1); V.put(o4, 4)
    lim[0] = GK
    C("addresses of everything later, in the shadow of the K stream")
    aGq = V.get(); aGh = V.get(); aGh2 = V.get()
    A(f"v_mul_u32_u24 v{t2}, {BOX}, v{vG}"); A(f"v_lshl_add_u32 v{t2}, v{vI}, 4, v{t2}")
    A(f"s_lshl2_add_u32 s{sT0}, s{sHKV}, s{sW}"); A(f"s_mul_i32 s{sT0}, s{sT0}, {4*BOX}"); A(f"s_lshl_b32 s{sT1}, s{sB}, 8"); A(f"s_add_u32 s{sT0}, s{sT0}, s{sT1}"); A(f"s_add_u32 s{sT0}, s{sT0}, {WS_BOX}")
    A(f"v_add_u32 v{aGq}, s{sT0}, v{t2}")
    A(f"s_mul_i32 s{sT0}, s{sG}, {4*BOX}"); A(f"s_mul_i32 s{sT1}, s{sW}, 288"); A(f"s_add_u32 s{sT0}, s{sT0}, s{sT1}"); A(f"s_add_u32 s{sT0}, s{sT0}, {WS_BOX+1024}")
    A(f"v_add_u32 v{aGh}, s{sT0}, v{t2}")
    A(f"v_cmp_gt_u32 vcc, 2, v{vI}"); A(f"v_add_u32 v{aGh2}, 256, v{aGh}"); A(f"v_mov_b32 v{t0}, {hex(OOB)}")
    A(f"v_cndmask_b32 v{aGh2}, v{t0}, v{aGh2}, vcc")
    vM = V.get(4)
    A(f"v_and_b32 v{t0}, 1, v{vL}"); A(f"v_lshlrev_b32 v{t0}, 4, v{t0}"); A(f"v_mov_b32 v{t1}, 0xffff"); A(f"v_lshlrev_b32 v{t1}, v{t0}, v{t1}")
    A(f"v_bfe_u32 v{t0}, v{vL}, 1, 2")
    for k in range(4): A(f"v_cmp_eq_u32 vcc, {k}, v{t0}"); A(f"v_cndmask_b32 v{vM+k}, 0, v{t1}, vcc")
    aQw = V.get(); aHw = V.get(); aQr = V.get(); aKr = V.get(4)
    A(f"v_lshl_add_u32 v{t0}, v{vI}, 2, v{vG}"); A(f"v_lshlrev_b32 v{t0}, 1, v{t0}")
    A(f"s_lshl_b32 s{sT0}, s{sW}, 7"); A(f"s_add_u32 s{sT0}, s{sT0}, {L_Q}"); A(f"v_add_u32 v{aQw}, s{sT0}, v{t0}")
    A(f"s_mul_i32 s{sT0}, s{sW}, 160"); A(f"s_add_u32 s{sT0}, s{sT0}, {L_H}"); A(f"v_add_u32 v{aHw}, s{sT0}, v{t0}")
    A(f"v_lshrrev_b32 v{t0}, 3, v{vI}"); A(f"v_lshlrev_b32 v{t0}, 8, v{t0}"); A(f"v_lshl_add_u32 v{aQr}, v{vG}, 4, v{t0}"); A(f"v_add_u32 v{aQr}, {L_Q}, v{aQr}")
    A(f"v_xor_b32 v{t0}, v{vG}, v{vI}"); A(f"v_lshlrev_b32 v{t0}, 4, v{t0}")
    A(f"v_lshl_add_u32 v{t0}, v{vB3}, 12, v{t0}"); A(f"v_lshrrev_b32 v{t1}, 2, v{vI}"); A(f"v_lshl_add_u32 v{t0}, v{t1}, 8, v{t0}")
    A(f"v_add_u32 v{aKr}, s{sM}, v{t0}")
    for k in range(1, 4): A(f"v_xor_b32 v{aKr+k}, {k*64}, v{aKr}")
    aOPw = V.get(); aOPr = V.get(); aH2 = V.get(); aG2 = V.get(); aGm = V.get(); aOw = V.get(); aOr = V.get(); aHr = V.get()
    aW = V.get(); aAc = V.get(); aOut = V.get(); xr2 = V.get(2)
    A(f"v_lshrrev_b32 v{t0}, 1, v{vG}"); A(f"v_lshlrev_b32 v{t0}, 9, v{t0}"); A(f"v_lshl_add_u32 v{t0}, v{vI}, 5, v{t0}")
    A(f"v_and_b32 v{t1}, 1, v{vG}"); A(f"v_lshl_add_u32 v{t0}, v{t1}, 4, v{t0}"); A(f"v_add_u32 v{aOPw}, s{sM}, v{t0}")
    A(f"s_lshl_b32 s{sT1}, s{sW}, 8"); A(f"v_lshl_add_u32 v{aOPr}, v{vI}, 4, s{sT1}")
    A(f"s_mul_i32 s{sT0}, s{sBOX}, {BOX}"); A(f"s_add_u32 s{sT0}, s{sT0}, {WS_BOX}"); A(f"v_add_u32 v{aH2}, s{sT0}, v{aOPr}")
    A(f"v_and_b32 v{t0}, 12, v{vL}"); A(f"v_add_u32 v{t0}, v{t0}, v{vG}"); A(f"v_mul_u32_u24 v{t0}, {BOX}, v{t0}")
    A(f"s_mul_i32 s{sT0}, s{sHKV}, {16*BOX}"); A(f"s_add_u32 s{sT0}, s{sT0}, {WS_BOX}")
    A(f"s_add_u32 s{sT1}, s{sT0}, {MLO}"); A(f"v_add_u32 v{aGm}, s{sT1}, v{t0}")
    A(f"s_lshl2_add_u32 s{sT1}, s{sB}, s{sW}"); A(f"s_lshl_b32 s{sT1}, s{sT1}, 6"); A(f"s_add_u32 s{sT0}, s{sT0}, s{sT1}")
    A(f"v_lshl_add_u32 v{t0}, v{vB3}, 4, v{t0}"); A(f"v_add_u32 v{aG2}, s{sT0}, v{t0}")
    A(f"s_lshr_b32 s{sT0}, s{sW}, 1"); A(f"s_lshl_b32 s{sT0}, s{sT0}, 6"); A(f"s_and_b32 s{sT1}, s{sW}, 1"); A(f"s_lshl3_add_u32 s{sT0}, s{sT1}, s{sT0}"); A(f"s_add_u32 s{sT0}, s{sT0}, {L_O}")
    A(f"v_and_b32 v{t0}, 12, v{vL}"); A(f"v_lshlrev_b32 v{t0}, 5, v{t0}"); A(f"v_lshl_add_u32 v{t0}, v{vB3}, 4, v{t0}"); A(f"v_lshl_add_u32 v{t0}, v{vG}, 1, v{t0}")
    A(f"v_add_u32 v{aOw}, s{sT0}, v{t0}")
    A(f"v_and_b32 v{t1}, 3, v{vQ4}")
    A(f"v_lshlrev_b32 v{t0}, 7, v{t1}"); A(f"v_lshl_add_u32 v{t0}, v{vG}, 4, v{t0}"); A(f"v_add_u32 v{aOr}, {L_O}, v{t0}")
    A(f"v_mul_u32_u24 v{t0}, 160, v{t1}"); A(f"v_lshl_add_u32 v{t0}, v{vG}, 3, v{t0}"); A(f"v_add_u32 v{aHr}, {L_H}, v{t0}")
    A(f"v_mul_u32_u24 v{t0}, 288, v{vQ4}"); A(f"v_lshl_add_u32 v{t0}, v{vB3}, 3, v{t0}")
    A(f"s_mul_i32 s{sT2}, s{sW}, 96"); A(f"s_add_u32 s{sT0}, s{sT2}, {L_WO}"); A(f"v_add_u32 v{aW}, s{sT0}, v{t0}")
    A(f"s_mul_i32 s{sT0}, s{sS}, 3"); A(f"s_add_u32 s{sT0}, s{sT0}, s{sW}"); A(f"s_lshl_b32 s{sT0}, s{sT0}, 11"); A(f"s_add_u32 s{sT0}, s{sT0}, {WS_AC}")
    A(f"v_lshlrev_b32 v{t0}, 9, v{vG}"); A(f"v_lshl_add_u32 v{t0}, v{vI}, 2, v{t0}"); A(f"v_add_u32 v{aAc}, s{sT0}, v{t0}")
    srdW()
    A(f"s_add_u32 s{sT0}, s{sT1}, s{sT2}")
    A(f"v_mul_u32_u24 v{t0}, 1152, v{t1}"); A(f"v_lshl_add_u32 v{t0}, v{vB3}, 5, v{t0}")
    A(f"v_lshl_add_u32 v{t0}, v{vG}, 3, v{t0}"); A(f"v_add_u32 v{aOut}, s{sT0}, v{t0}")
    lanemask(sU1, 0x22222222); lanemask(sU2, 0x44444444); lanemask(sU3, 0x88888888)
    A(f"v_mov_b32 v{t0}, {hex(OOB)}"); A(f"v_cndmask_b32 v{aOut}, v{aOut}, v{t0}, {sr(sU3,2)}")
    C("the residual x enters through the workgroups with g = 0")
    srd(dX, pX, None, 4608); srd(dOUT, pOUT, None, 4608)
    A(f"s_cmp_eq_u32 s{sG}, 0"); A(f"s_cselect_b32 s{dX+2}, s{dX+2}, 0")
    A.vmem(f"buffer_load_dwordx2 {vr(xr2,2)}, v{aOut}, {sr(dX,4)}, 0 offen")
    A.auto = None
    while len(kseq) < GK: step(1)
    stamp()
    gq = V.get(4, 4); gh = V.get(4, 4); gh2 = V.get(4, 4); cp = V.get(4, 4); cpa = V.get()
    def gatherH1():
        A.vmem(f"buffer_load_dwordx4 {vr(gq,4)}, v{aGq}, {WS}, 0 offen sc1")
        A.vmem(f"buffer_load_dwordx4 {vr(gh,4)}, v{aGh}, {WS}, 0 offen sc1")
        return A.vmem(f"buffer_load_dwordx4 {vr(gh2,4)}, v{aGh2}, {WS}, 0 offen sc1")
    C("gather the q and h partials")
    g1 = gatherH1()
    step(D)
    A.wait_vm(g1)
    stamp()
    A.label("L_chk1")
    chk(gq, sr(sP, 2), vT1); chk(gh, sr(sP + 2, 2), vT1); chk(gh2, "vcc", vT1)
    A("s_and_b32 vcc_lo, vcc_lo, 0x00030003"); A("s_and_b32 vcc_hi, vcc_hi, 0x00030003")
    A(f"s_or_b64 vcc, vcc, {sr(sP,2)}"); A(f"s_or_b64 vcc, vcc, {sr(sP+2,2)}")
    A("s_cbranch_scc1 L_slow1")
    A.label("L_ok1")
    spinrec(58)
    def copybox(nm):
        C("write this workgroup's valid q / h granules through to memory, for readers on other XCDs")
        A(f"s_mul_i32 s{sT0}, s{sBOX}, {BOX}"); A(f"s_add_u32 s{sT0}, s{sT0}, {WS_BOX}"); A(f"v_lshl_add_u32 v{cpa}, v{vL}, 4, s{sT0}")
        for k in range(3):
            if k == 2: A("s_mov_b64 exec, 0xff")
            A.vmem(f"buffer_load_dwordx4 {vr(cp,4)}, v{cpa}, {WS}, 0 offen offset:{k*1024} sc1")
            A("s_waitcnt vmcnt(0)")
            chk(cp, "vcc", vT1)
            A("s_andn2_b64 exec, exec, vcc"); A(f"s_cbranch_execz L_cp{nm}{k}")
            A.vmem(f"buffer_store_dwordx4 {vr(cp,4)}, v{cpa}, {WS}, 0 offen offset:{k*1024} sc1")
            A.label(f"L_cp{nm}{k}")
            A("s_mov_b64 exec, -1"); A("s_waitcnt vmcnt(0)")
    def slow1():
        A.label("L_slow1"); bounded()
        C("a granule of this launch from another XCD differs from the own tag in the top nibble only")
        A(f"s_mov_b64 {sr(sP,2)}, 0")
        for v in (gq, gh, gh2):
            if v == gh2: A("s_mov_b32 exec_lo, 0x00030003"); A("s_mov_b32 exec_hi, 0x00030003")
            chk(v, sr(sP + 2, 2), vT1)
            A(f"v_xor_b32 v{t0}, v{t0}, v{vT1}"); A(f"v_lshlrev_b32 v{t0}, 4, v{t0}"); A(f"v_cmp_ne_u32 vcc, 0, v{t0}")
            A(f"s_or_b64 {sr(sP,2)}, {sr(sP,2)}, vcc")
            A(f"s_andn2_b64 vcc, {sr(sP+2,2)}, vcc"); A(f"s_cselect_b32 s{sMode}, 1, s{sMode}")
        A("s_mov_b64 exec, -1")
        A(f"s_cmp_eq_u64 {sr(sP,2)}, 0"); A("s_cbranch_scc1 L_ok1")
        A(f"s_add_u32 s{sIt}, s{sIt}, 1"); A(f"s_cmp_lt_u32 s{sIt}, 4"); A("s_cbranch_scc1 L_slow1b")
        copybox("a")
        A.label("L_slow1b")
        gatherH1(); A("s_waitcnt vmcnt(0)"); A("s_branch L_chk1")
    slow.append(slow1)
    def pubstore(nm, text):
        A(f"s_cmp_lg_u32 s{sMode}, 0"); A(f"s_cbranch_scc1 L_alt{nm}")
        A.vmem(text)
        A.label(f"L_altb{nm}")
        def alt():
            A.label(f"L_alt{nm}"); A.vmem(text + " sc1"); A("s_nop 1"); A(f"s_branch L_altb{nm}")
        slow.append(alt)
    step(1); A.cyc = 0; lim[0] = 60; A.auto = auto
    for v in (gq, gh, gh2): untag(v, v)
    for v in (gq, gh, gh2): tred(v)
    A(f"v_cvt_pk_bf16_f32 v{gq}, v{gq}, v{gq}"); A(f"ds_write_b16 v{aQw}, v{gq}")
    A(f"s_lshl2_add_u32 s{sT0}, s{sW}, {L_FL}"); A(f"v_mov_b32 v{t2}, s{sT0}"); A(f"v_mov_b32 v{t3}, s{sMode}")
    A(f"ds_write_b32 v{t2}, v{t3}")
    C("silu")
    A(f"v_cvt_pk_bf16_f32 v{t0}, v{gh}, v{gh2}")
    A(f"v_lshlrev_b32 v{gh}, 16, v{t0}"); A(f"v_and_b32 v{gh2}, 0xffff0000, v{t0}")
    for v in (gh, gh2): A(f"v_mul_f32 v{v+1}, {hex(LOG2E | 0x80000000)}, v{v}")
    for v in (gh, gh2): A(f"v_exp_f32 v{v+1}, v{v+1}")
    for v in (gh, gh2): A(f"v_add_f32 v{v+1}, 1.0, v{v+1}")
    for v in (gh, gh2): A(f"v_rcp_f32 v{v+1}, v{v+1}")
    for v in (gh, gh2): A(f"v_mul_f32 v{v}, v{v}, v{v+1}")
    A(f"v_cvt_pk_bf16_f32 v{t0}, v{gh}, v{gh2}")
    A(f"ds_write_b16 v{aHw}, v{t0}")
    with quiet():
        A("s_mov_b32 exec_lo, 0x000f000f"); A("s_mov_b32 exec_hi, 0x000f000f")
        A(f"ds_write_b16_d16_hi v{aHw}, v{t0} offset:128")
        A("s_mov_b64 exec, -1")
    step(1); A.cyc = 0
    A("s_waitcnt lgkmcnt(0)")
    C("B2: q, silu(h) and the placement flags are in LDS")
    A("s_barrier")
    stamp()
    A(f"v_mov_b32 v{t2}, {L_FL}"); A(f"ds_read_b128 {vr(gq,4)}, v{t2}")
    def modecheck():
        with quiet():
            A(f"v_or3_b32 v{t2}, v{gq}, v{gq+1}, v{gq+2}"); A(f"v_or_b32 v{t2}, v{t2}, v{gq+3}")
            A(f"v_readfirstlane_b32 s{sMode}, v{t2}")
            A(f"s_cmp_lg_u32 s{sMode}, 0"); A("s_cbranch_scc1 L_mode1")
            A.label("L_mode1b")
        def mode1(): A.label("L_mode1"); copybox("b"); A("s_branch L_mode1b")
        slow.append(mode1)
    V.put(aQw); V.put(aHw)
    C("scores: lane (g', n) register 4 t + r = key row g' of round 4 t + r, head n >> 3")
    qf = V.get(16, 4); kf = [V.get(16, 4), V.get(16, 4)]; S = V.get(32, 4)
    for st in range(4): A(f"ds_read_b128 {vr(qf+4*st,4)}, v{aQr} offset:{st*64}")
    def rdK(t):
        if 4 * t + 3 >= GK:
            while pos() < 4 * t + 3 + D: step(1); A.cyc = 0
            A.wait_vm(kseq[4 * t + 3])
        if t == 4:
            for k in range(4): A(f"v_add_u32 v{aKr+k}, 0x10000, v{aKr+k}")
        for st in range(4): A(f"ds_read_b128 {vr(kf[t&1]+4*st,4)}, v{aKr+st} offset:{(t&3)*16384}")
    rdK(0)
    for t in range(8):
        if t < 7: rdK(t + 1); A("s_waitcnt lgkmcnt(4)")
        else: A("s_waitcnt lgkmcnt(0)")
        for st in range(4):
            c = "0" if st == 0 else vr(S+4*t, 4)
            A(f"v_mfma_f32_16x16x32_bf16 {vr(S+4*t,4)}, {vr(kf[t&1]+4*st,4)}, {vr(qf+4*st,4)}, {c}")
        if t < 7: A("s_nop 3")
        if t == 0: modecheck()
    V.put(qf, 16); V.put(kf[0], 16); V.put(kf[1], 16); V.put(aQr); V.put(aKr, 4); V.put(vKo, 4)
    for v in (gq, gh, gh2, cp): V.put(v, 4)
    V.put(cpa)
    pc = V.get(2); tp = V.get(8); ml = V.get(2); pl = V.get(2)
    A(f"v_mov_b32 v{pc}, {hex(SCALE)}")
    for h in range(2):
        for k in range(8): A(f"v_cvt_pk_bf16_f32 v{tp+k}, v{S+16*h+2*k}, v{S+16*h+2*k+1}")
        unpack(S + 16 * h, tp, 8)
        for k in range(8): pk_scale(S + 16 * h + 2 * k, S + 16 * h + 2 * k, pc)
        for k in range(8): A(f"v_cvt_pk_bf16_f32 v{tp+k}, v{S+16*h+2*k}, v{S+16*h+2*k+1}")
        unpack(S + 16 * h, tp, 8)
    A(f"v_max_f32 v{ml}, v{S}, v{S+1}")
    for k in range(1, 16): A(f"v_max3_f32 v{ml}, v{S+2*k}, v{S+2*k+1}, v{ml}")
    allred_rows(ml, t0, "v_max_f32")
    A(f"v_mov_b32 v{pc}, {hex(LOG2E)}")
    for k in range(16): pk_sub(S + 2 * k, S + 2 * k, ml)
    for k in range(16): pk_scale(S + 2 * k, S + 2 * k, pc)
    for k in range(32): A(f"v_exp_f32 v{S+k}, v{S+k}")
    A(f"v_pk_add_f32 {vr(pl,2)}, {vr(S,2)}, {vr(S+2,2)}")
    for k in range(2, 16): A(f"v_pk_add_f32 {vr(pl,2)}, {vr(pl,2)}, {vr(S+2*k,2)}")
    A(f"v_add_f32 v{ml+1}, v{pl}, v{pl+1}")
    allred_rows(ml + 1, t0, "v_add_f32")
    A(f"s_lshl_b32 s{sT0}, s{sW}, 4"); A(f"s_add_u32 s{sT0}, s{sT0}, {L_ML}")
    A(f"v_and_b32 v{t0}, 8, v{vL}"); A(f"v_add_u32 v{t0}, s{sT0}, v{t0}")
    A(f"ds_write_b64 v{t0}, {vr(ml,2)}")
    for k in range(32): A(f"v_cvt_pk_bf16_f32 v{S+k}, v{S+k}, v{S+k}")
    A("s_waitcnt lgkmcnt(0)")
    C("B3: K is consumed, the waves' (max, sum) are in LDS")
    A("s_barrier")
    stamp()
    A(f"v_lshrrev_b32 v{t0}, 5, v{vL}"); A(f"v_lshlrev_b32 v{t0}, 3, v{t0}"); A(f"v_add_u32 v{t1}, s{sT0}, v{t0}"); A(f"v_add_u32 v{t0}, {L_ML}, v{t0}")
    for k in range(4): A(f"ds_read_b64 {vr(tp+2*k,2)}, v{t0} offset:{16*k}")
    A(f"ds_read_b32 v{pl}, v{t1}")
    A("s_waitcnt lgkmcnt(0)")
    vF = V.get(2); g4 = V.get(4, 4)
    A(f"v_max3_f32 v{g4}, v{tp}, v{tp+2}, v{tp+4}"); A(f"v_max_f32 v{g4}, v{g4}, v{tp+6}")
    for r in (tp, tp + 2, tp + 4, tp + 6, pl): A(f"v_sub_f32 v{r}, v{r}, v{g4}")
    for r in (tp, tp + 2, tp + 4, tp + 6, pl): A(f"v_mul_f32 v{r}, {hex(LOG2E)}, v{r}")
    for r in (tp, tp + 2, tp + 4, tp + 6): A(f"v_exp_f32 v{r}, v{r}")
    A(f"v_exp_f32 v{vF}, v{pl}")
    A(f"v_mul_f32 v{g4+1}, v{tp}, v{tp+1}")
    for k in range(1, 4): A(f"v_fmac_f32 v{g4+1}, v{tp+2*k}, v{tp+2*k+1}")
    A(f"v_mov_b32 v{g4+2}, v{g4}"); A(f"v_mov_b32 v{g4+3}, v{g4+1}")
    A(f"v_permlane32_swap_b32 v{g4}, v{g4+2}"); A(f"v_permlane32_swap_b32 v{g4+1}, v{g4+3}")
    tag(g4, vT2)
    A(f"s_mul_i32 s{sT0}, s{sBOX}, {BOX}"); A(f"s_add_u32 s{sT1}, s{sT0}, {WS_BOX+MLO}")
    A(f"v_cmp_gt_u32 vcc, 8, v0"); A(f"v_mov_b32 v{t0}, {hex(OOB)}"); A(f"v_lshl_add_u32 v{t1}, v0, 4, s{sT1}")
    A(f"v_cndmask_b32 v{t0}, v{t0}, v{t1}, vcc")
    A.auto = None
    C("publish the workgroup's (max, sum) of both heads")
    pubstore("m", f"buffer_store_dwordx4 {vr(g4,4)}, v{t0}, {WS}, 0 offen")
    V.put(pc, 2); V.put(tp, 8); V.put(ml, 2); V.put(pl, 2)
    print("V rounds issued at the end of the softmax:", len(vseq), file=sys.stderr)
    oacc = V.get(4, 4); NQ = 8; aq = V.get(4 * NQ, 4)
    built = [0]; done = [0]
    def build(n):
        for _ in range(n):
            j = built[0]
            if j >= 32: return
            assert j - done[0] < NQ
            for k in range(4): A(f"v_and_b32 v{aq+4*(j%NQ)+k}, v{S+j}, v{vM+k}")
            built[0] += 1
    def pv():
        j = done[0]
        assert built[0] > j
        A.wait_vm(vseq[j])
        A(f"v_mfma_f32_16x16x32_bf16 {vr(oacc,4)}, {vr(aq+4*(j%NQ),4)}, {ar(4*j,4)}, {'0' if j == 0 else vr(oacc,4)}")
        done[0] += 1
        if done[0] == GM: weights()
    gp = V.get(4, 4); gm = V.get(4, 4); vWg = V.get(2); xc = V.get(4, 4)
    unpack(xc, xr2, 2)
    def gatherO(): return A.vmem(f"buffer_load_dwordx4 {vr(gp,4)}, v{aG2}, {WS}, 0 offen sc1")
    def gatherML(): return A.vmem(f"buffer_load_dwordx4 {vr(gm,4)}, v{aGm}, {WS}, 0 offen sc1")
    gml = [None]
    def weights():
        C("softmax weights of the four splits from the gathered (max, sum)")
        A.wait_vm(gml[0])
        A.label("L_chk2")
        chk(gm, "vcc", vT2)
        A("s_cbranch_vccnz L_slow2")
        spinrec(59)
        def slow2(): A.label("L_slow2"); bounded(); gatherML(); A("s_waitcnt vmcnt(0)"); A("s_branch L_chk2")
        slow.append(slow2)
        A(f"s_cmp_ge_u32 s{sB}, 2"); A("s_cselect_b64 vcc, -1, 0")
        A(f"v_cndmask_b32 v{t2}, v{gm}, v{gm+2}, vcc"); A(f"v_cndmask_b32 v{t3}, v{gm+1}, v{gm+3}, vcc")
        A(f"v_and_b32 v{t2}, 0xffffff00, v{t2}"); A(f"v_and_b32 v{t3}, 0xffffff00, v{t3}")
        A(f"v_mov_b32 v{vWg}, v{t2}"); allred_rows(vWg, t0, "v_max_f32")
        A(f"v_sub_f32 v{t2}, v{t2}, v{vWg}"); A(f"v_mul_f32 v{t2}, {hex(LOG2E)}, v{t2}"); A(f"v_exp_f32 v{t2}, v{t2}")
        A(f"v_mul_f32 v{t3}, v{t2}, v{t3}"); allred_rows(t3, t0, "v_add_f32")
        A(f"v_rcp_f32 v{t3}, v{t3}"); A(f"v_mul_f32 v{vWg}, v{t2}, v{t3}")
    cap = 32 if wi else GM - 1
    build(2)
    assert len(vseq) < GM
    pv0 = len(vseq) + pk
    if Dlo and pk == 0: pq = A.vmem(f"buffer_load_dwordx4 {vr(gp,4)}, v{aGm}, {WS}, 0 offen sc1")
    while len(vseq) < 32:
        step(1)
        if Dlo and pk and len(vseq) == pv0: pq = A.vmem(f"buffer_load_dwordx4 {vr(gp,4)}, v{aGm}, {WS}, 0 offen sc1")
        if Dlo and len(vseq) == pv0 + DV:
            A.wait_vm(pq); chk(gp, "vcc", vT2); A(f"s_bcnt1_i32_b64 s{sLo}, vcc"); A(f"s_cmp_ge_u32 s{sLo}, {4*thr}"); A(f"s_cselect_b32 s{sLo}, 1, 0")
            dyn[0] = 1
        if len(vseq) == GM: gml[0] = gatherML()
        n = 0
        while done[0] < min(len(vseq) - DV - 1, cap) and n < 4: pv(); build(1); n += 1
    dyn[0] = 0
    V.put(g4, 4)
    stamp()
    C("w2 and wo tiles -> LDS behind V")
    tail = ragged(dW2, L_W2, 6, 3641, 864) + ragged(dWO, L_WO, 5, 3641, 864)
    wseq = []
    while len(tail) > hold:
        pace(DW)
        wseq.append(tail.pop(0)())
        while done[0] < min(32 + len(wseq) - DW - 1, cap): build(NQ - (built[0] - done[0])); pv()
    while done[0] < 32:
        build(NQ - (built[0] - done[0])); pv()
    stamp()
    pk_scale(oacc, oacc, vF); pk_scale(oacc + 2, oacc + 2, vF)
    A(f"ds_write_b128 v{aOPw}, {vr(oacc,4)}")
    A("s_waitcnt lgkmcnt(0)")
    C("B4: the waves' o are in LDS; wave w sums and publishes a quarter")
    A("s_barrier")
    V.put(S, 32); V.put(aq, 4 * NQ); V.put(vM, 4)
    r16 = V.get(16, 4)
    A("s_mov_b64 exec, 0xffff")
    for k in range(4): A(f"ds_read_b128 {vr(r16+4*k,4)}, v{aOPr} offset:{L_OP + 1024*k}")
    A("s_waitcnt lgkmcnt(2)")
    for h in range(2): A(f"v_pk_add_f32 {vr(r16+2*h,2)}, {vr(r16+2*h,2)}, {vr(r16+4+2*h,2)}")
    A("s_waitcnt lgkmcnt(0)")
    for h in range(2): A(f"v_pk_add_f32 {vr(r16+8+2*h,2)}, {vr(r16+8+2*h,2)}, {vr(r16+12+2*h,2)}")
    for h in range(2): A(f"v_pk_add_f32 {vr(r16+2*h,2)}, {vr(r16+2*h,2)}, {vr(r16+8+2*h,2)}")
    tag(r16, vT2)
    pubstore("o", f"buffer_store_dwordx4 {vr(r16,4)}, v{aH2}, {WS}, 0 offen")
    A("s_mov_b64 exec, -1")
    stamp()
    g2 = None
    while tail:
        wseq.append(tail.pop(0)())
        if len(tail) == hold - pp and tail: g2 = gatherO()
    hf = V.get(10, 4); w2f = V.get(36, 4); wof = V.get(24, 4); yacc = V.get(12, 4)
    W2D = L_W2 - L_WO
    for st in range(5): A(f"ds_read_b64 {vr(hf+2*st,2)}, v{aHr} offset:{st*32}")
    C("the polls of o overlap: a granule that has turned valid stays valid")
    g3 = gatherO()
    if g2 is None: g2 = g3
    A(f"s_cmp_eq_u32 s{sW}, 3")
    A.wait_vm(wseq[5], "lgkmcnt(0)", trust=True)
    C("B5: w2 tile landed")
    A("s_barrier")
    stamp()
    gatherO()
    A("s_cbranch_scc1 L_noffn")
    for st in (4, 0, 1, 2, 3):
        for tl in range(3): A(f"ds_read_b64_tr_b16 {vr(w2f+12*tl+2*st,2)}, v{aW} offset:{W2D+st*4608+32*tl}")
    A("s_waitcnt lgkmcnt(12)")
    for tl in range(3): A(f"v_mfma_f32_16x16x16_bf16 {vr(yacc+4*tl,4)}, {vr(w2f+12*tl+8,2)}, {vr(hf+8,2)}, {vr(xc,4)}")
    for st in range(2):
        A(f"s_waitcnt lgkmcnt({6-6*st})")
        for tl in range(3): A(f"v_mfma_f32_16x16x32_bf16 {vr(yacc+4*tl,4)}, {vr(w2f+12*tl+4*st,4)}, {vr(hf+4*st,4)}, {vr(yacc+4*tl,4)}")
    A.label("L_noffn")
    gatherO()
    A.wait_vm(g2)
    stamp()
    A.label("L_chk3")
    chk(gp, "vcc", vT2)
    A("s_cbranch_vccnz L_slow3")
    spinrec(60)
    def slow3():
        A.label("L_slow3"); bounded()
        A("s_mov_b64 exec, vcc"); gatherO(); A("s_mov_b64 exec, -1")
        A("s_waitcnt vmcnt(1)"); A("s_branch L_chk3")
    slow.append(slow3)
    stamp()
    go = V.get(4, 4)
    untag(go, gp); pk_scale(go, go, vWg); pk_scale(go + 2, go + 2, vWg)
    tred(go)
    A(f"v_cvt_pk_bf16_f32 v{go}, v{go}, v{go}")
    A(f"ds_write_b16 v{aOw}, v{go}")
    if lateinit:
        with uncounted(): initacc()
        A("s_waitcnt vmcnt(0)")
    A(f"s_add_u32 s{sT0}, s{sS0}, 63"); A(f"v_mov_b32 v{t2}, s{sT0}"); A(f"v_mov_b32 v{t1}, {hex(OOB)}")
    A(f"s_cmp_eq_u32 s{sW}, 3")
    A.wait_vm(wseq[-1], "lgkmcnt(0)")
    C("B6: normalised o and the wo tile are in LDS")
    A("s_barrier")
    A("s_cbranch_scc1 L_fin")
    of = V.get(8, 4)
    def rdq(q):
        for tl in range(3): A(f"ds_read_b64_tr_b16 {vr(wof+8*tl+2*q,2)}, v{aW} offset:{q*4608+32*tl}")
    for st in range(2): A(f"ds_read_b128 {vr(of+4*st,4)}, v{aOr} offset:{64*st}"); rdq(2 * st); rdq(2 * st + 1)
    for st in range(2):
        A(f"s_waitcnt lgkmcnt({7-7*st})")
        for tl in range(3): A(f"v_mfma_f32_16x16x32_bf16 {vr(yacc+4*tl,4)}, {vr(wof+8*tl+4*st,4)}, {vr(of+4*st,4)}, {vr(yacc+4*tl,4)}")
    C("add into the accumulators; 63 earlier arrivals mean that the returned value completes the sum")
    own = V.get(4, 4); ret = V.get(4, 4); cur = V.get(); dc = V.get(4)
    def atom(r): return A.vmem(f"buffer_atomic_add_f32 v{ret+r}, v{aAc}, {WS}, 0 offen offset:{128*r} sc0 sc1")
    for rs in (((0,), (1,), (2,), (3,)) if m2 else ((0, 1, 2, 3),)):
        for r in rs: A(f"v_cndmask_b32 v{own+r}, v{yacc+r}, 1.0, {sr(sU3,2)}")
        for r in rs: A(f"v_cndmask_b32 v{own+r}, v{own+r}, v{yacc+4+r}, {sr(sU1,2)}")
        for r in rs: A(f"v_cndmask_b32 v{ret+r}, v{own+r}, v{yacc+8+r}, {sr(sU2,2)}"); atom(r)
    stamp()
    for r in range(4): A(f"v_cndmask_b32 v{own+r}, v{own+r}, v{yacc+8+r}, {sr(sU2,2)}")
    def arrivals(d, v): A(f"v_sub_u32_dpp v{d}, v{v}, v{t2} quad_perm:[3,3,3,3] row_mask:0xf bank_mask:0xf")
    A("s_waitcnt vmcnt(2)")
    A.label("L_chk4")
    arrivals(dc, ret); arrivals(dc + 1, ret + 1)
    A(f"v_pk_add_f32 {vr(of,2)}, {vr(ret,2)}, {vr(own,2)}")
    A(f"v_or_b32 v{t0}, v{dc}, v{dc+1}")
    A(f"v_cvt_pk_bf16_f32 v{of+4}, v{of}, v{of+1}")
    A("s_waitcnt vmcnt(0)")
    arrivals(dc + 2, ret + 2); arrivals(dc + 3, ret + 3)
    A(f"v_or3_b32 v{t0}, v{t0}, v{dc+2}, v{dc+3}")
    A(f"v_cmp_eq_u32 vcc, 0, v{t0}")
    A(f"v_pk_add_f32 {vr(of+2,2)}, {vr(ret+2,2)}, {vr(own+2,2)}")
    A(f"v_cvt_pk_bf16_f32 v{of+5}, v{of+2}, v{of+3}")
    A(f"v_cndmask_b32 v{of+6}, v{t1}, v{aOut}, vcc")
    A.vmem(f"buffer_store_dwordx2 {vr(of+4,2)}, v{of+6}, {sr(dOUT,4)}, 0 offen")
    stamp()
    A(f"v_min3_u32 v{t3}, v{dc}, v{dc+1}, v{dc+2}"); A(f"v_min_u32 v{t3}, v{t3}, v{dc+3}"); A(f"s_movk_i32 s{sT0}, -63")
    A(f"v_cmp_gt_u32 {sr(sP,2)}, s{sT0}, v{t3}")
    A(f"v_cmp_eq_u32 {sr(sL,2)}, 0, v{dc}")
    A(f"s_andn2_b64 {sr(sP,2)}, {sr(sP,2)}, vcc")
    def singles():
        C("last arrival on some of the four lines only: single elements")
        sQ = 4
        A(f"v_cndmask_b32 v{of+7}, v{t1}, v{aOut}, {sr(sP,2)}")
        for r in range(1, 4): A(f"v_cmp_eq_u32 {sr(sQ+2*r,2)}, 0, v{dc+r}")
        for r in range(4):
            A(f"v_cndmask_b32 v{of+r}, v{t1}, v{of+7}, {sr(sQ+2*r if r else sL,2)}")
            A.vmem(f"buffer_store_short{'_d16_hi' if r & 1 else ''} v{of+4+(r>>1)}, v{of+r}, {sr(dOUT,4)}, 0 offen offset:{2*r}")
        for r in range(4): A(f"v_add_u32 v{dc+r}, 63, v{dc+r}")
        A(f"v_max3_u32 v{t3}, v{dc}, v{dc+1}, v{dc+2}"); A(f"v_max_u32 v{t3}, v{t3}, v{dc+3}")
        A(f"v_cmp_lt_u32 vcc, 63, v{t3}")
    A("s_cbranch_scc0 L_mixedb"); singles(); A("s_cbranch_vccnz L_mixed")
    A.label("L_mixedb")
    def mixed():
        A.label("L_mixed")
        C("an add that reached a line before its initialisation is lost: wait for the initialisation, add again")
        bounded()
        for r in range(4):
            A(f"v_cmp_lt_u32 vcc, 63, v{dc+r}"); A("s_and_b64 exec, exec, vcc"); A(f"s_cbranch_scc0 L_rt{r}")
            A.vmem(f"buffer_load_dword v{cur}, v{aAc}, {WS}, 0 offen offset:{128*r} sc1")
            A("s_waitcnt vmcnt(0)")
            arrivals(t0, cur); A(f"v_add_u32 v{t0}, 63, v{t0}")
            A(f"v_cmp_ge_u32 vcc, 63, v{t0}"); A("s_and_b64 exec, exec, vcc"); A(f"s_cbranch_scc0 L_rt{r}")
            A(f"v_mov_b32 v{ret+r}, v{own+r}"); atom(r)
            A("s_waitcnt vmcnt(0)")
            A.label(f"L_rt{r}")
            A("s_mov_b64 exec, -1")
        A("s_branch L_chk4")
    slow.append(mixed)
    C("the last arrival on the first chunk has seen every workgroup past its read of the epoch word: advance it")
    A(f"s_or_b32 s{sT0}, s{sS}, s{sW}"); A("s_cbranch_scc1 L_fin")
    A(f"s_bitcmp1_b32 s{sL}, 3"); A("s_cbranch_scc0 L_fin")
    A(f"v_mov_b32 v{t0}, s{sE}"); A(f"v_mov_b32 v{t1}, 0"); A("s_mov_b64 exec, 1")
    A.vmem(f"buffer_store_dword v{t0}, v{t1}, {WS}, 0 offen")
    if probe2:
        A("s_waitcnt vmcnt(0)"); A(f"s_memrealtime s[{sSt}:{sSt+1}]"); A("s_mov_b32 s100, 0"); A("s_atomic_add s100, s[14:15], 0 glc"); A("s_waitcnt lgkmcnt(0)")
        if probe2 is True: A(f"s_lshl_b32 s{sT0}, s{sSt}, 3"); A(f"s_sub_u32 s{sT0}, s{sT0}, s100")
        elif probe2 == "skew":
            A("s_mov_b32 s101, 0"); A("s_atomic_add s101, s[14:15], 4 glc"); A("s_waitcnt lgkmcnt(0)")
            A("s_not_b32 s101, s101"); A(f"s_sub_u32 s{sT0}, s100, s101"); A(f"s_mul_i32 s{sT0}, s{sT0}, 40")
        else: A(f"s_mul_i32 s{sT0}, s100, 10"); A(f"s_add_u32 s{sT0}, s{sT0}, 10000")
        A(f"s_min_u32 s{sT0}, s{sT0}, 100000")
        A.label("L_probe")
        A("s_memrealtime s[100:101]"); A("s_waitcnt lgkmcnt(0)"); A(f"s_sub_u32 s100, s100, s{sSt}"); A(f"s_cmp_lt_u32 s100, s{sT0}"); A("s_cbranch_scc1 L_probe")
    A.label("L_fin")
    if stamps:
        A("s_mov_b64 exec, -1"); A("s_waitcnt vmcnt(0)")
        A(f"s_memrealtime s[{sSt}:{sSt+1}]"); A("s_waitcnt lgkmcnt(0)"); A(f"v_writelane_b32 v{vSt}, s{sSt}, 62")
        A(f"v_writelane_b32 v{vSt}, s{sSpin}, 61")
        A(f"s_getreg_b32 s{sSt}, hwreg(HW_REG_XCC_ID, 0, 4)"); A(f"v_writelane_b32 v{vSt}, s{sSt}, 63")
        A(f"s_lshl_b32 s{sT0}, s2, 10"); A(f"s_add_u32 s{sT0}, s{sT0}, {WS_ST}"); A(f"v_lshl_add_u32 v{t0}, v0, 2, s{sT0}")
        if stamps == "tiny":
            A(f"s_lshl2_add_u32 s{sT0}, s2, s{sW}"); A(f"s_lshl3_add_u32 s{sT0}, s{sT0}, {WS_ST}"); A(f"v_lshrrev_b32 v{t0}, 5, v{vL}"); A(f"v_lshl_add_u32 v{t0}, v{t0}, 2, s{sT0}")
            A("s_mov_b32 exec_lo, 1"); A("s_mov_b32 exec_hi, 0x40000000")
        A.vmem(f"buffer_store_dword v{vSt}, v{t0}, {WS}, 0 offen")
    A("s_endpgm")
    C("---- rare paths")
    for f in slow: f()
    A.label("L_end")
    A("s_endpgm")
    acc_off = (V.top + 3) // 4 * 4
    A.raw('.section .rodata,"a"'); A.raw(".p2align 6"); A.raw(f".amdhsa_kernel {NAME}_kernel")
    A.raw(f"  .amdhsa_next_free_vgpr {acc_off + 128}"); A.raw("  .amdhsa_next_free_sgpr 102"); A.raw(f"  .amdhsa_accum_offset {acc_off}")
    A.raw("  .amdhsa_group_segment_fixed_size 0"); A.raw("  .amdhsa_kernarg_size 88"); A.raw("  .amdhsa_user_sgpr_count 2")
    A.raw("  .amdhsa_user_sgpr_kernarg_segment_ptr 1"); A.raw("  .amdhsa_system_sgpr_workgroup_id_x 1"); A.raw(".end_amdhsa_kernel")
    return A.text()

if __name__ == "__main__":
    kw = eval("dict(" + (sys.argv[2] if len(sys.argv) > 2 else "") + ")")
    open(sys.argv[1], "w").write(gen(**kw))
```

```python
import sys, struct
from asmlib import *
NAME = "parallel_sum__sliding_block_cached__dense_activation_silu__decode"

def f2u(x): return struct.unpack("<I", struct.pack("<f", x))[0]
LOG2E = f2u(1.4426950408889634); SCALE = f2u(128 ** -0.5)
OOB = 0x40000000
WS_BOX, BOX = 0x1000, 2304
MLO = 2176
WS_AC = 0x100000
WS_ST = 0x400000
L_WQ = 131072 - 20480; L_WO = L_WQ
L_XN = 131072; L_Q = L_XN + 1152; L_H = L_Q + 512; L_ML = L_H + 640; L_O = L_ML + 128; L_FL = L_O + 512
L_W1 = 134144; L_W2 = L_W1; L_OP = 0
LDS_BYTES = L_W1 + 24576
HEADER = open("cdna_kernels/" + NAME + ".s.ref").read().split("; Override launch")[0]

DOC = """;
;   2. attention over 512 of the 2048 window keys for the two query heads of (batch, kv head)
; exchange through its L2 with plain stores, any other placement switches to write-through stores.
"""

def gen(D=6, DV=6, DW=8, TH=300, GK=26, GM=20, hold=3, pp=2, sb=14, rc=(1, 0, 0, 0, 3, 0, 0, 2),
        stamps=False, sel=None, scramble=False, force1=False, lateinit=False, spin=None, rtab=False, m2=0, wi=1, Dlo=0, pk=0, thr=8, nlo=99, probe2=False, n0=3, lt=1, DC=7):
    if spin is None: spin = 20000 if stamps else 1 << 21
    A = Asm(); V = VAlloc(1, 256); A.th = TH
    def C(t): A.raw("    ; " + t)
    A.raw(HEADER.rstrip("\n"))
    A.raw(f"; @launch grid=(256,1,1) block=(256,1,1) lds={LDS_BYTES}")
    A.raw(DOC.rstrip("\n"))
    A.raw('.amdgcn_target "amdgcn-amd-amdhsa--gfx950"')
    A.raw(".text"); A.raw(f".globl {NAME}_kernel"); A.raw(".p2align 8"); A.raw(f".type {NAME}_kernel,@function")
    A.label(f"{NAME}_kernel")
    sW = 3
    pX, pK, pV, pWQ, pWO, pW1, pW2, pOUT, pWS = 4, 6, 8, 10, 12, 16, 18, 20, 24
    sMode, sIt, sPC = 22, 23, 26
    dX, dK, dV, dWQ, dW1, dW2, dWO, dWS, dOUT = 28, 32, 36, 40, 44, 48, 52, 56, 60
    sG, sS, sB, sHKV, sBOX, sRot, sSo, sE, sT0, sT1, sT2, sS0 = 64, 65, 66, 67, 68, 69, 70, 71, 72, 73, 74, 75
    sSel, sSelA, sSelB, sU1, sU2, sSpin, sC, sM, sP, sL, sU3, sSt = 76, 80, 81, 82, 84, 86, 87, 88, 90, 94, 96, 98
    WS = sr(dWS, 4)
    slow = []
    vSt = V.get() if stamps else None
    nst = [1]; cnt = [0]
    class quiet:
        def __enter__(s): s.a = A.auto; A.auto = None
        def __exit__(s, *a): A.auto = s.a
    class uncounted:
        def __enter__(s): s.n = len(A.vm)
        def __exit__(s, *a): del A.vm[s.n:]
    def stamp():
        cnt[0] += 1
        if stamps is True and (sel is None or cnt[0] in sel):
            with quiet():
                A(f"s_memrealtime s[{sSt}:{sSt+1}]"); A("s_waitcnt lgkmcnt(0)"); A(f"v_writelane_b32 v{vSt}, s{sSt}, {nst[0]}"); nst[0] += 1
    def spinrec(k):
        if stamps: A(f"v_writelane_b32 v{vSt}, s{sSpin}, {k}")
    def srd(d, p, off_s, nrec):
        if off_s is None: A(f"s_mov_b32 s{d}, s{p}"); A(f"s_mov_b32 s{d+1}, s{p+1}")
        else: A(f"s_add_u32 s{d}, s{p}, s{off_s}"); A(f"s_addc_u32 s{d+1}, s{p+1}, 0")
        A(f"s_mov_b32 s{d+2}, {nrec}"); A(f"s_mov_b32 s{d+3}, 0x20000")
    def bounded(): A(f"s_sub_u32 s{sSpin}, s{sSpin}, 1"); A("s_cbranch_scc1 L_end")

    def initacc():
        C("workgroup (g < 48, s) initialises accumulator line 48 s + g")
        with quiet():
            i4 = V.get(4, 4)
            for r in range(3): A(f"v_mov_b32 v{i4+r}, 0")
            A(f"v_mov_b32 v{i4+3}, s{sS0}")
            A(f"s_mul_i32 s{sT0}, s{sS}, 48"); A(f"s_add_u32 s{sT0}, s{sT0}, s{sG}"); A(f"s_lshl_b32 s{sT0}, s{sT0}, 7"); A(f"s_add_u32 s{sT0}, s{sT0}, {WS_AC}")
            A(f"s_cmp_lt_u32 s{sG}, 48"); A(f"s_cselect_b32 s{sT1}, 4, 0")
            A(f"v_lshl_add_u32 v{t0}, v0, 4, s{sT0}"); A(f"v_cmp_gt_u32 vcc, s{sT1}, v0"); A(f"v_mov_b32 v{t1}, {hex(OOB)}")
            A(f"v_cndmask_b32 v{t0}, v{t1}, v{t0}, vcc")
            A.vmem(f"buffer_store_dwordx4 {vr(i4,4)}, v{t0}, {WS}, 0 offen sc1")
            V.put(i4, 4)
    vJ = V.get(); vPa = V.get(2); vL = V.get(); t0 = V.get(); t1 = V.get(); t2 = V.get(); t3 = V.get(); vX = V.get(); vWq = V.get()
    A("s_load_dwordx16 s[4:19], s[0:1], 0")
    if stamps or probe2: A(f"s_memrealtime s[{sSt}:{sSt+1}]")
    A("s_cmpk_ge_u32 s2, 256"); A("s_cbranch_scc1 L_end")
    A(f"v_readfirstlane_b32 s{sM}, v0")
    if scramble:
        A(f"s_lshr_b32 s{sG}, s2, 2"); A(f"s_and_b32 s{sS}, s2, 3")
    else:
        A(f"s_and_b32 s{sT0}, s2, 7"); A(f"s_bfe_u32 s{sT1}, s2, 0x30003"); A(f"s_lshl3_add_u32 s{sG}, s{sT0}, s{sT1}")
        A(f"s_lshr_b32 s{sS}, s2, 6")
    C("pull this kernel's text into L2, one dword per 64 bytes")
    A(f"s_getpc_b64 s[{sPC}:{sPC+1}]")
    A.label("L_pc")
    A(f"v_lshlrev_b32 v{vPa}, 6, v0"); A(f"v_min_u32 v{vPa}, L_end-L_pc, v{vPa}"); A(f"v_mov_b32 v{vPa+1}, s{sPC+1}")
    A(f"v_add_co_u32 v{vPa}, vcc, s{sPC}, v{vPa}")
    A(f"v_and_b32 v{vL}, 63, v0"); A(f"s_lshr_b32 s{sW}, s{sM}, 6")
    A(f"v_addc_co_u32 v{vPa+1}, vcc, 0, v{vPa+1}, vcc")
    A.vmem(f"global_load_dword v{vJ}, {vr(vPa,2)}, off")
    C("wq tile: rows 144 s.., columns 64 g.. -> LDS")
    A(f"v_lshrrev_b32 v{t0}, 3, v0"); A(f"v_and_b32 v{t1}, 7, v0"); A(f"v_lshlrev_b32 v{t1}, 4, v{t1}")
    A(f"v_lshl_or_b32 v{vWq}, v{t0}, 13, v{t1}")
    A(f"s_lshl4_add_u32 m0, s{sM}, {L_WQ}")
    A(f"s_mul_i32 s{sT1}, s{sS}, {144*8192}"); A(f"s_lshl_b32 s{sT2}, s{sG}, 7"); A(f"s_add_u32 s{sT1}, s{sT1}, s{sT2}")
    A(f"s_mov_b32 s{dWQ+2}, {143*8192+128}"); A(f"s_mov_b32 s{dWQ+3}, 0x20000"); A(f"s_lshl_b32 s{sC}, s{dWQ+3}, 1")
    A("s_waitcnt lgkmcnt(0)")
    A(f"s_add_u32 s{dWQ}, s{pWQ}, s{sT1}"); A(f"s_addc_u32 s{dWQ+1}, s{pWQ+1}, 0")
    for r in range(5):
        if r: A("s_addk_i32 m0, 0x1000"); A(f"v_add_u32 v{vWq}, s{sC}, v{vWq}")
        A.vmem(f"buffer_load_dwordx4 v{vWq}, {sr(dWQ,4)}, 0 offen nt lds")
    A("s_load_dwordx2 s[20:21], s[0:1], 64"); A("s_load_dwordx2 s[24:25], s[0:1], 80")
    if probe2: A("s_load_dwordx2 s[14:15], s[0:1], 72")
    if rtab:
        A(f"s_lshl_b32 s{sT0}, s2, 2"); A(f"s_load_dword s100, s[14:15], s{sT0}")
    if stamps: A(f"v_mov_b32 v{vSt}, 0"); A(f"v_writelane_b32 v{vSt}, s{sSt}, 0")
    C("x row of batch w")
    A(f"s_mul_i32 s{sT0}, s{sM}, 18"); A(f"s_lshl_b32 s{sM}, s{sM}, 4")
    A(f"v_lshlrev_b32 v{vX}, 5, v{vL}")
    srd(dX, pX, sT0, 1152)
    xr = V.get(8, 4)
    A.vmem(f"buffer_load_dwordx4 {vr(xr,4)}, v{vX}, {sr(dX,4)}, 0 offen")
    x1 = A.vmem(f"buffer_load_dwordx4 {vr(xr+4,4)}, v{vX}, {sr(dX,4)}, 0 offen offset:16")
    A(f"s_mul_i32 s{sT1}, s{sS}, {144*9216}"); A(f"s_mul_i32 s{sT2}, s{sG}, 144"); A(f"s_add_u32 s{sT1}, s{sT1}, s{sT2}")
    srd(dW1, pW1, sT1, 143 * 9216 + 144)
    def ragged(d, lbase, rounds, magic, rowpad):
        vP16 = V.get(); vMul = V.get(); vo = V.get()
        def mk(r):
            def f():
                with quiet():
                    if r == 0: A(f"v_lshlrev_b32 v{vP16}, 4, v0"); A(f"v_mul_u32_u24 v{vMul}, {magic}, v0")
                    else: A(f"v_add_u32 v{vP16}, 0x1000, v{vP16}"); A(f"v_add_u32 v{vMul}, {magic*256}, v{vMul}")
                    A(f"s_movk_i32 s{sC}, {rowpad}")
                    A(f"v_lshrrev_b32 v{vo}, 16, v{vMul}")
                    A(f"s_add_u32 m0, s{sM}, {lbase + r*4096}")
                    A(f"v_mad_u32_u24 v{vo}, v{vo}, s{sC}, v{vP16}")
                    q = A.vmem(f"buffer_load_dwordx4 v{vo}, {sr(d,4)}, 0 offen nt lds")
                if lt and r == 5: A.vm[q].light = True
                if r == rounds - 1: V.put(vP16); V.put(vMul); V.put(vo)
                return q
            return f
        return [mk(r) for r in range(rounds)]
    w1q = ragged(dW1, L_W1, 6, 7282, 9072); lastA = [None]
    V.put(vWq); V.put(vX); V.put(vPa, 2)
    stamp()
    C("K / V window of (batch, kv head); the four splits interleave in 16 KB pieces")
    GAP = 3 << sb; VAL = 0x7f000 & ~GAP
    A(f"s_and_b32 s{sB}, s{sG}, 3"); A(f"s_lshr_b32 s{sHKV}, s{sG}, 2")
    A(f"s_lshl4_add_u32 s{sT0}, s{sB}, s{sHKV}"); A(f"s_lshl_b32 s{sT0}, s{sT0}, 21")
    A(f"s_lshl_b32 s{sT1}, s{sS}, {sb}"); A(f"s_add_u32 s{sT0}, s{sT0}, s{sT1}"); A(f"s_add_u32 s{sT0}, s{sT0}, {6144*256}")
    srd(dK, pK, sT0, VAL + 4096); srd(dV, pV, sT0, VAL + 4096)
    A(f"s_lshl2_add_u32 s{sBOX}, s{sG}, s{sS}")
    C("start block of the walk over this workgroup's 32 blocks of 16 keys (spreads the load over the memory channels)")
    A(f"s_mov_b32 s{sRot}, 0")
    for w, bit in zip(rc, (5, 6, 7, 4, 2, 3, 0, 1)):
        if w: A(f"s_bitcmp1_b32 s{sBOX}, {bit}"); A(f"s_cselect_b32 s{sT1}, {w}, 0"); A(f"s_add_u32 s{sRot}, s{sRot}, s{sT1}")
    if rtab: A("s_waitcnt lgkmcnt(0)"); A(f"s_mov_b32 s{sRot}, s100")
    A(f"s_lshl_b32 s{sRot}, s{sRot}, 12"); A(f"s_and_b32 s{sRot}, s{sRot}, 0x1f000")
    A(f"s_and_b32 s{sT1}, s{sRot}, {hex(0x1f000 & ~((1 << sb) - 1))}"); A(f"s_mul_i32 s{sT1}, s{sT1}, 3"); A(f"s_add_u32 s{sRot}, s{sRot}, s{sT1}")
    vG = V.get(); vI = V.get(); vKo = V.get(4); vVo = V.get()
    A(f"v_lshrrev_b32 v{vG}, 4, v{vL}"); A(f"v_and_b32 v{vI}, 15, v{vL}")
    A(f"v_lshlrev_b32 v{vVo}, 4, v0")
    A(f"v_lshlrev_b32 v{t0}, 6, v{vG}"); A(f"v_xor_b32 v{vKo}, v{vVo}, v{t0}")
    for i in range(1, 4): A(f"v_xor_b32 v{vKo+i}, {i*16}, v{vKo}")

    kseq = []; vseq = []; lim = [0]; incomp = [0]
    dyn = [0]; sLo = 26
    def pace(d):
        if DC and incomp[0]: d = DC
        def wait(d):
            k = 0; n = 0
            for x in reversed(A.vm):
                heavy = " nt" in x.text and not getattr(x, "light", False)
                if heavy and k == d - 1: break
                k += heavy; n += 1
            A(f"s_waitcnt vmcnt({n})")
        if 0 < dyn[0] <= nlo:
            A(f"s_cmp_eq_u32 s{sLo}, 0"); A(f"s_cbranch_scc1 L_pa{dyn[0]}"); wait(Dlo); A.label(f"L_pa{dyn[0]}"); dyn[0] += 1
        wait(d)
    def so(j):
        if j == 0: A(f"s_mov_b32 s{sSo}, s{sRot}")
        else: A(f"s_add_u32 s{sSo}, s{sSo}, {hex(GAP + 0x1000)}"); A(f"s_and_b32 s{sSo}, s{sSo}, {hex(VAL)}")
    def pos(): return len(kseq) + len(vseq)
    def step(n=1):
        for _ in range(n):
            if len(kseq) < 32:
                j = len(kseq)
                A(f"s_add_u32 m0, s{sM}, {j*4096}"); so(j); pace(D)
                kseq.append(A.vmem(f"buffer_load_dwordx4 v{vKo + (j & 3)}, {sr(dK,4)}, s{sSo} offen nt lds"))
                if w1q: pace(D); lastA[0] = w1q.pop(0)()
            else:
                j = len(vseq)
                so(j); pace(DV)
                vseq.append(A.vmem(f"buffer_load_dwordx4 {ar(4*j,4)}, v{vVo}, {sr(dV,4)}, s{sSo} offen nt"))
    def auto():
        incomp[0] = 1
        if pos() < lim[0]: step(1)
        incomp[0] = 0
    def allred_rows(v, t, op):
        A(f"v_mov_b32 v{t}, v{v}"); A(f"v_permlane16_swap_b32 v{v}, v{t}"); A(f"{op} v{v}, v{v}, v{t}")
        A(f"v_mov_b32 v{t}, v{v}"); A(f"v_permlane32_swap_b32 v{v}, v{t}"); A(f"{op} v{v}, v{v}, v{t}")
    def allred64(v, t):
        for k in (8, 4, 2, 1): A(f"v_add_f32_dpp v{v}, v{v}, v{v} row_ror:{k} row_mask:0xf bank_mask:0xf")
        allred_rows(v, t, "v_add_f32")
    def unpack(dst, src, n):
        for k in range(n): A(f"v_and_b32 v{dst+2*k+1}, 0xffff0000, v{src+k}"); A(f"v_lshlrev_b32 v{dst+2*k}, 16, v{src+k}")
    def pk_sub(d, a, b): A(f"v_pk_add_f32 {vr(d,2)}, {vr(a,2)}, {vr(b,2)} op_sel_hi:[1,0] neg_lo:[0,1] neg_hi:[0,1]")
    def pk_scale(d, a, b): A(f"v_pk_mul_f32 {vr(d,2)}, {vr(a,2)}, {vr(b,2)} op_sel_hi:[1,0]")

    def srdW():
        A(f"s_mul_i32 s{sT1}, s{sS}, 288")
        A(f"s_mul_i32 s{sT0}, s{sG}, {72*1152}"); A(f"s_add_u32 s{sT0}, s{sT0}, s{sT1}"); srd(dW2, pW2, sT0, 71 * 1152 + 288)
        A(f"s_mul_i32 s{sT0}, s{sG}, {64*1152}"); A(f"s_add_u32 s{sT0}, s{sT0}, s{sT1}"); srd(dWO, pWO, sT0, 63 * 1152 + 288)
    step(1)
    A("s_waitcnt lgkmcnt(0)")
    A(f"s_load_dword s{sE}, s[{pWS}:{pWS+1}], 0")
    if probe2:
        A("s_lshr_b32 s100, s2, 3"); A(f"s_or_b32 s100, s100, s{sW}"); A("s_cbranch_scc1 L_pr2"); A(f"s_mov_b32 s100, s{sSt}")
        if probe2 is True: A("s_atomic_add s100, s[14:15], 0")
        elif probe2 == "skew":
            A("s_not_b32 s101, s100"); A("s_atomic_umax s100, s[14:15], 0"); A("s_atomic_umax s101, s[14:15], 4")
        else:
            A(f"s_sub_u32 s101, 0, s100"); A(f"s_bitcmp1_b32 {probe2}, s2"); A("s_cselect_b32 s100, s100, s101"); A("s_atomic_add s100, s[14:15], 0")
        A.label("L_pr2")
    srd(dWS, pWS, None, 0x800000 if stamps else WS_AC + 192 * 128)
    A(f"s_mov_b32 s{sMode}, {1 if force1 else 0}"); A(f"s_mov_b32 s{sIt}, 0")
    step(n0 - 1)
    C("layer norm of batch w, lanes 0..35 hold 16 values each; bf16 roundings as in the reference")
    A.wait_vm(x1)
    stamp()
    A.cyc = 0; lim[0] = D + 6; A.auto = auto
    xf = V.get(16); d16 = V.get(16); p2 = V.get(2); pm = V.get(2)
    unpack(xf, xr, 8)
    A(f"v_pk_add_f32 {vr(p2,2)}, {vr(xf,2)}, {vr(xf+2,2)}")
    for k in range(2, 8): A(f"v_pk_add_f32 {vr(p2,2)}, {vr(p2,2)}, {vr(xf+2*k,2)}")
    A(f"v_add_f32 v{pm}, v{p2}, v{p2+1}")
    allred64(pm, t0)
    A(f"v_mul_f32 v{pm}, {hex(f2u(1/576))}, v{pm}")
    for k in range(8): pk_sub(d16 + 2 * k, xf + 2 * k, pm)
    A(f"v_pk_mul_f32 {vr(p2,2)}, {vr(d16,2)}, {vr(d16,2)}")
    for k in range(1, 8): A(f"v_pk_fma_f32 {vr(p2,2)}, {vr(d16+2*k,2)}, {vr(d16+2*k,2)}, {vr(p2,2)}")
    A(f"v_cmp_gt_u32 vcc, 36, v{vL}"); A(f"v_add_f32 v{t1}, v{p2}, v{p2+1}"); A(f"v_cndmask_b32 v{t1}, 0, v{t1}, vcc")
    allred64(t1, t0)
    A(f"v_mul_f32 v{t1}, {hex(f2u(1/576))}, v{t1}")
    A(f"v_cvt_pk_bf16_f32 v{t0}, v{pm}, v{t1}")
    A(f"v_lshlrev_b32 v{pm}, 16, v{t0}"); A(f"v_and_b32 v{t1}, 0xffff0000, v{t0}")
    A(f"v_add_f32 v{t1}, {hex(f2u(1e-5))}, v{t1}")
    A(f"v_cvt_pk_bf16_f32 v{t1}, v{t1}, v{t1}"); A(f"v_lshlrev_b32 v{t1}, 16, v{t1}")
    A(f"v_sqrt_f32 v{t1}, v{t1}")
    A(f"v_cvt_pk_bf16_f32 v{t1}, v{t1}, v{t1}"); A(f"v_lshlrev_b32 v{t1}, 16, v{t1}")
    A(f"v_rcp_f32 v{p2}, v{t1}")
    for k in range(8): pk_sub(d16 + 2 * k, xf + 2 * k, pm)
    for k in range(8): A(f"v_cvt_pk_bf16_f32 v{xr+k}, v{d16+2*k}, v{d16+2*k+1}")
    unpack(xf, xr, 8)
    for k in range(8): pk_scale(xf + 2 * k, xf + 2 * k, p2)
    for k in range(8): A(f"v_cvt_pk_bf16_f32 v{xr+k}, v{xf+2*k}, v{xf+2*k+1}")
    A(f"s_mul_i32 s{sT0}, s{sS}, 9"); A(f"s_sub_u32 s{sT1}, s{sW}, s{sS}"); A(f"s_mul_i32 s{sT1}, s{sT1}, 288"); A(f"s_add_u32 s{sT1}, s{sT1}, {L_XN}")
    A(f"v_lshl_add_u32 v{t0}, v{vL}, 5, s{sT1}")
    with quiet():
        A(f"s_lshl_b64 exec, 0x1ff, s{sT0}")
        A(f"ds_write_b128 v{t0}, {vr(xr,4)}"); A(f"ds_write_b128 v{t0}, {vr(xr+4,4)} offset:16")
        A("s_mov_b64 exec, -1")
    V.put(xf, 16); V.put(d16, 16); V.put(p2, 2); V.put(pm, 2)
    A("s_waitcnt lgkmcnt(0)")
    V.put(xr, 8)
    C("tags of this launch; first value of the arrival counts")
    vT1 = V.get(); vT2 = V.get()
    A(f"s_add_u32 s{sE}, s{sE}, 1"); A(f"s_mul_i32 s{sT0}, s{sE}, 0x9E3779B1")
    A(f"s_getreg_b32 s{sT1}, hwreg(HW_REG_XCC_ID, 0, 4)"); A(f"s_lshl_b32 s{sT1}, s{sT1}, 28")
    A(f"s_add_u32 s{sT2}, s{sT0}, 0x4a3c5e12"); A(f"s_xor_b32 s{sT0}, s{sT0}, s{sT1}")
    A(f"v_mov_b32 v{vT1}, s{sT0}"); A(f"v_mov_b32 v{vT2}, s{sT2}")
    A(f"s_lshl_b32 s{sS0}, s{sE}, 8"); A(f"s_and_b32 s{sS0}, s{sS0}, 0x7fff00"); A(f"s_or_b32 s{sS0}, s{sS0}, 0x4b000000")
    if not lateinit: initacc()
    for r in range(4): A(f"s_mov_b32 s{sSel+r}, {hex(0x07060500 + r)}")
    A(f"s_mov_b32 s{sSelA}, 0x0c0c0400"); A(f"s_mov_b32 s{sSelB}, 0x04000c0c")
    def lanemask(s_, m): A(f"s_mov_b32 s{s_}, {hex(m)}"); A(f"s_mov_b32 s{s_+1}, {hex(m)}")
    lanemask(sU1, 0x00f000f0); lanemask(sU2, 0x0f000f00)
    A(f"s_mov_b32 s{sSpin}, {spin}")
    def tag(v, vT):
        for r in range(4): A(f"v_perm_b32 v{v+r}, v{v+r}, v{vT}, s{sSel+r}")
    def chk(v, dst, vT):
        A(f"v_perm_b32 v{t0}, v{v+1}, v{v}, s{sSelA}"); A(f"v_perm_b32 v{t1}, v{v+3}, v{v+2}, s{sSelB}")
        A(f"v_or_b32 v{t0}, v{t0}, v{t1}"); A(f"v_cmp_ne_u32 {dst}, v{t0}, v{vT}")
    def untag(d, v):
        for r in range(4): A(f"v_and_b32 v{d+r}, 0xffffff00, v{v+r}")
    def tred(v):
        A(f"v_permlane32_swap_b32 v{v}, v{v+2}"); A(f"v_permlane32_swap_b32 v{v+1}, v{v+3}")
        A(f"v_add_f32 v{v}, v{v}, v{v+2}"); A(f"v_add_f32 v{v+1}, v{v+1}, v{v+3}")
        A(f"v_permlane16_swap_b32 v{v}, v{v+1}"); A(f"v_add_f32 v{v}, v{v}, v{v+1}")
    C("addresses of the projection stage")
    vB3 = V.get(); vQ4 = V.get()
    A(f"v_and_b32 v{vB3}, 3, v{vL}"); A(f"v_lshrrev_b32 v{vQ4}, 2, v{vL}")
    aXb = V.get(); aWq = V.get(); aW1 = V.get(); aW1h = V.get(); aH1 = V.get()
    A(f"v_mul_u32_u24 v{aXb}, 288, v{vB3}"); A(f"v_lshl_add_u32 v{aXb}, v{vG}, 3, v{aXb}"); A(f"v_add_u32 v{aXb}, {L_XN}, v{aXb}")
    A(f"s_lshl_b32 s{sT0}, s{sW}, 5"); A(f"v_lshlrev_b32 v{t2}, 3, v{vB3}")
    A(f"v_lshl_add_u32 v{aWq}, v{vQ4}, 7, v{t2}"); A(f"s_add_u32 s{sT1}, s{sT0}, {L_WQ}"); A(f"v_add_u32 v{aWq}, s{sT1}, v{aWq}")
    A(f"v_mul_u32_u24 v{aW1h}, 144, v{vQ4}"); A(f"v_add_u32 v{aW1h}, v{aW1h}, v{t2}"); A(f"v_add_u32 v{aW1h}, {L_W1}, v{aW1h}")
    A(f"v_add_u32 v{aW1}, s{sT0}, v{aW1h}")
    A(f"s_lshl_b32 s{sT0}, s{sW}, 6"); A(f"v_lshlrev_b32 v{t2}, 4, v{vG}")
    A(f"v_lshl_add_u32 v{aH1}, v{vB3}, 8, v{t2}"); A(f"v_add_u32 v{aH1}, s{sT0}, v{aH1}")
    A(f"v_mul_u32_u24 v{t3}, 288, v{vB3}"); A(f"v_add_u32 v{t3}, v{t3}, v{t2}")
    A(f"s_add_u32 s{sT0}, s{sT0}, 1024"); A(f"v_add_u32 v{t0}, s{sT0}, v{t3}")
    A(f"v_cndmask_b32 v{aH1}, v{aH1}, v{t0}, {sr(sU1,2)}")
    A(f"v_add_u32 v{t0}, {1024+256}, v{t3}")
    A(f"v_cndmask_b32 v{aH1}, v{aH1}, v{t0}, {sr(sU2,2)}")
    A(f"s_lshl_b32 s{sT0}, 0x01000100, s{sW}"); A(f"s_or_b32 vcc_lo, s{sT0}, 0x00ff00ff"); A("s_mov_b32 vcc_hi, 0x00ff00ff")
    A(f"s_mul_i32 s{sT0}, s{sBOX}, {BOX}"); A(f"s_add_u32 s{sT0}, s{sT0}, {WS_BOX}")
    A(f"v_add_u32 v{aH1}, s{sT0}, v{aH1}"); A(f"v_mov_b32 v{t0}, {hex(OOB)}"); A(f"v_cndmask_b32 v{aH1}, v{t0}, v{aH1}, vcc")
    while len(kseq) < D + 6: step(1)
    assert not w1q
    A.wait_vm(lastA[0])
    C("B1: wq / w1 tiles and xn are in LDS")
    A("s_barrier")
    step(1); A.cyc = 0; lim[0] = 26
    stamp()
    fr = [V.get(24), V.get(24)]; acc = V.get(12, 4)
    def batchA(bi):
        f = fr[bi & 1]
        for k in range(3):
            st = 3 * bi + k
            A(f"ds_read_b64 {vr(f+8*k,2)}, v{aXb} offset:{st*32}")
            A(f"ds_read_b64_tr_b16 {vr(f+8*k+2,2)}, v{aWq} offset:{st*2048}")
            A(f"ds_read_b64_tr_b16 {vr(f+8*k+4,2)}, v{aW1} offset:{st*2304}")
            A(f"ds_read_b64_tr_b16 {vr(f+8*k+6,2)}, v{aW1h} offset:{st*2304+128}")
    def mfmaA(bi):
        f = fr[bi & 1]
        for k in range(3):
            for tl in range(3):
                c = "0" if (bi == 0 and k == 0) else vr(acc+4*tl, 4)
                A(f"v_mfma_f32_16x16x16_bf16 {vr(acc+4*tl,4)}, {vr(f+8*k+2+2*tl,2)}, {vr(f+8*k,2)}, {c}")
    batchA(0); A("s_waitcnt lgkmcnt(0)")
    batchA(1); mfmaA(0); A("s_waitcnt lgkmcnt(0)")
    A("s_nop 7")
    batchA(2); mfmaA(1); A("s_waitcnt lgkmcnt(0)")
    mfmaA(2)
    o4 = V.get(4, 4)
    for r in range(4): A(f"v_cndmask_b32 v{o4+r}, v{acc+r}, v{acc+4+r}, {sr(sU1,2)}")
    for r in range(4): A(f"v_cndmask_b32 v{o4+r}, v{o4+r}, v{acc+8+r}, {sr(sU2,2)}")
    for r in range(4): A(f"v_add_u32 v{o4+r}, 0x80, v{o4+r}")
    tag(o4, vT1)
    A.vmem(f"buffer_store_dwordx4 {vr(o4,4)}, v{aH1}, {WS}, 0 offen")
    stamp()
    V.put(fr[0], 24); V.put(fr[1], 24); V.put(acc, 12)
    for r in (aXb, aWq, aW1, aW1h): V.put(r)
    step(1)
    assert len(kseq) <= 27
    C("B1b: the wq staging area may be overwritten by K")
    A("s_barrier")
    V.put(aH1); V.put(o4, 4)
    lim[0] = GK
    C("addresses of everything later, in the shadow of the K stream")
    aGq = V.get(); aGh = V.get(); aGh2 = V.get()
    A(f"v_mul_u32_u24 v{t2}, {BOX}, v{vG}"); A(f"v_lshl_add_u32 v{t2}, v{vI}, 4, v{t2}")
    A(f"s_lshl2_add_u32 s{sT0}, s{sHKV}, s{sW}"); A(f"s_mul_i32 s{sT0}, s{sT0}, {4*BOX}"); A(f"s_lshl_b32 s{sT1}, s{sB}, 8"); A(f"s_add_u32 s{sT0}, s{sT0}, s{sT1}"); A(f"s_add_u32 s{sT0}, s{sT0}, {WS_BOX}")
    A(f"v_add_u32 v{aGq}, s{sT0}, v{t2}")
    A(f"s_mul_i32 s{sT0}, s{sG}, {4*BOX}"); A(f"s_mul_i32 s{sT1}, s{sW}, 288"); A(f"s_add_u32 s{sT0}, s{sT0}, s{sT1}"); A(f"s_add_u32 s{sT0}, s{sT0}, {WS_BOX+1024}")
    A(f"v_add_u32 v{aGh}, s{sT0}, v{t2}")
    A(f"v_cmp_gt_u32 vcc, 2, v{vI}"); A(f"v_add_u32 v{aGh2}, 256, v{aGh}"); A(f"v_mov_b32 v{t0}, {hex(OOB)}")
    A(f"v_cndmask_b32 v{aGh2}, v{t0}, v{aGh2}, vcc")
    vM = V.get(4)
    A(f"v_and_b32 v{t0}, 1, v{vL}"); A(f"v_lshlrev_b32 v{t0}, 4, v{t0}"); A(f"v_mov_b32 v{t1}, 0xffff"); A(f"v_lshlrev_b32 v{t1}, v{t0}, v{t1}")
    A(f"v_bfe_u32 v{t0}, v{vL}, 1, 2")
    for k in range(4): A(f"v_cmp_eq_u32 vcc, {k}, v{t0}"); A(f"v_cndmask_b32 v{vM+k}, 0, v{t1}, vcc")
    aQw = V.get(); aHw = V.get(); aQr = V.get(); aKr = V.get(4)
    A(f"v_lshl_add_u32 v{t0}, v{vI}, 2, v{vG}"); A(f"v_lshlrev_b32 v{t0}, 1, v{t0}")
    A(f"s_lshl_b32 s{sT0}, s{sW}, 7"); A(f"s_add_u32 s{sT0}, s{sT0}, {L_Q}"); A(f"v_add_u32 v{aQw}, s{sT0}, v{t0}")
    A(f"s_mul_i32 s{sT0}, s{sW}, 160"); A(f"s_add_u32 s{sT0}, s{sT0}, {L_H}"); A(f"v_add_u32 v{aHw}, s{sT0}, v{t0}")
    A(f"v_lshrrev_b32 v{t0}, 3, v{vI}"); A(f"v_lshlrev_b32 v{t0}, 8, v{t0}"); A(f"v_lshl_add_u32 v{aQr}, v{vG}, 4, v{t0}"); A(f"v_add_u32 v{aQr}, {L_Q}, v{aQr}")
    A(f"v_xor_b32 v{t0}, v{vG}, v{vI}"); A(f"v_lshlrev_b32 v{t0}, 4, v{t0}")
    A(f"v_lshl_add_u32 v{t0}, v{vB3}, 12, v{t0}"); A(f"v_lshrrev_b32 v{t1}, 2, v{vI}"); A(f"v_lshl_add_u32 v{t0}, v{t1}, 8, v{t0}")
    A(f"v_add_u32 v{aKr}, s{sM}, v{t0}")
    for k in range(1, 4): A(f"v_xor_b32 v{aKr+k}, {k*64}, v{aKr}")
    aOPw = V.get(); aOPr = V.get(); aH2 = V.get(); aG2 = V.get(); aGm = V.get(); aOw = V.get(); aOr = V.get(); aHr = V.get()
    aW = V.get(); aAc = V.get(); aOut = V.get(); xr2 = V.get(2)
    A(f"v_lshrrev_b32 v{t0}, 1, v{vG}"); A(f"v_lshlrev_b32 v{t0}, 9, v{t0}"); A(f"v_lshl_add_u32 v{t0}, v{vI}, 5, v{t0}")
    A(f"v_and_b32 v{t1}, 1, v{vG}"); A(f"v_lshl_add_u32 v{t0}, v{t1}, 4, v{t0}"); A(f"v_add_u32 v{aOPw}, s{sM}, v{t0}")
    A(f"s_lshl_b32 s{sT1}, s{sW}, 8"); A(f"v_lshl_add_u32 v{aOPr}, v{vI}, 4, s{sT1}")
    A(f"s_mul_i32 s{sT0}, s{sBOX}, {BOX}"); A(f"s_add_u32 s{sT0}, s{sT0}, {WS_BOX}"); A(f"v_add_u32 v{aH2}, s{sT0}, v{aOPr}")
    A(f"v_and_b32 v{t0}, 12, v{vL}"); A(f"v_add_u32 v{t0}, v{t0}, v{vG}"); A(f"v_mul_u32_u24 v{t0}, {BOX}, v{t0}")
    A(f"s_mul_i32 s{sT0}, s{sHKV}, {16*BOX}"); A(f"s_add_u32 s{sT0}, s{sT0}, {WS_BOX}")
    A(f"s_add_u32 s{sT1}, s{sT0}, {MLO}"); A(f"v_add_u32 v{aGm}, s{sT1}, v{t0}")
    A(f"s_lshl2_add_u32 s{sT1}, s{sB}, s{sW}"); A(f"s_lshl_b32 s{sT1}, s{sT1}, 6"); A(f"s_add_u32 s{sT0}, s{sT0}, s{sT1}")
    A(f"v_lshl_add_u32 v{t0}, v{vB3}, 4, v{t0}"); A(f"v_add_u32 v{aG2}, s{sT0}, v{t0}")
    A(f"s_lshr_b32 s{sT0}, s{sW}, 1"); A(f"s_lshl_b32 s{sT0}, s{sT0}, 6"); A(f"s_and_b32 s{sT1}, s{sW}, 1"); A(f"s_lshl3_add_u32 s{sT0}, s{sT1}, s{sT0}"); A(f"s_add_u32 s{sT0}, s{sT0}, {L_O}")
    A(f"v_and_b32 v{t0}, 12, v{vL}"); A(f"v_lshlrev_b32 v{t0}, 5, v{t0}"); A(f"v_lshl_add_u32 v{t0}, v{vB3}, 4, v{t0}"); A(f"v_lshl_add_u32 v{t0}, v{vG}, 1, v{t0}")
    A(f"v_add_u32 v{aOw}, s{sT0}, v{t0}")
    A(f"v_and_b32 v{t1}, 3, v{vQ4}")
    A(f"v_lshlrev_b32 v{t0}, 7, v{t1}"); A(f"v_lshl_add_u32 v{t0}, v{vG}, 4, v{t0}"); A(f"v_add_u32 v{aOr}, {L_O}, v{t0}")
    A(f"v_mul_u32_u24 v{t0}, 160, v{t1}"); A(f"v_lshl_add_u32 v{t0}, v{vG}, 3, v{t0}"); A(f"v_add_u32 v{aHr}, {L_H}, v{t0}")
    A(f"v_mul_u32_u24 v{t0}, 288, v{vQ4}"); A(f"v_lshl_add_u32 v{t0}, v{vB3}, 3, v{t0}")
    A(f"s_mul_i32 s{sT2}, s{sW}, 96"); A(f"s_add_u32 s{sT0}, s{sT2}, {L_WO}"); A(f"v_add_u32 v{aW}, s{sT0}, v{t0}")
    A(f"s_mul_i32 s{sT0}, s{sS}, 3"); A(f"s_add_u32 s{sT0}, s{sT0}, s{sW}"); A(f"s_lshl_b32 s{sT0}, s{sT0}, 11"); A(f"s_add_u32 s{sT0}, s{sT0}, {WS_AC}")
    A(f"v_lshlrev_b32 v{t0}, 9, v{vG}"); A(f"v_lshl_add_u32 v{t0}, v{vI}, 2, v{t0}"); A(f"v_add_u32 v{aAc}, s{sT0}, v{t0}")
    srdW()
    A(f"s_add_u32 s{sT0}, s{sT1}, s{sT2}")
    A(f"v_mul_u32_u24 v{t0}, 1152, v{t1}"); A(f"v_lshl_add_u32 v{t0}, v{vB3}, 5, v{t0}")
    A(f"v_lshl_add_u32 v{t0}, v{vG}, 3, v{t0}"); A(f"v_add_u32 v{aOut}, s{sT0}, v{t0}")
    lanemask(sU1, 0x22222222); lanemask(sU2, 0x44444444); lanemask(sU3, 0x88888888)
    A(f"v_mov_b32 v{t0}, {hex(OOB)}"); A(f"v_cndmask_b32 v{aOut}, v{aOut}, v{t0}, {sr(sU3,2)}")
    C("the residual x enters through the workgroups with g = 0")
    srd(dX, pX, None, 4608); srd(dOUT, pOUT, None, 4608)
    A(f"s_cmp_eq_u32 s{sG}, 0"); A(f"s_cselect_b32 s{dX+2}, s{dX+2}, 0")
    A.vmem(f"buffer_load_dwordx2 {vr(xr2,2)}, v{aOut}, {sr(dX,4)}, 0 offen")
    A.auto = None
    while len(kseq) < GK: step(1)
    stamp()
    gq = V.get(4, 4); gh = V.get(4, 4); gh2 = V.get(4, 4); cp = V.get(4, 4); cpa = V.get()
    def gatherH1():
        A.vmem(f"buffer_load_dwordx4 {vr(gq,4)}, v{aGq}, {WS}, 0 offen sc1")
        A.vmem(f"buffer_load_dwordx4 {vr(gh,4)}, v{aGh}, {WS}, 0 offen sc1")
        return A.vmem(f"buffer_load_dwordx4 {vr(gh2,4)}, v{aGh2}, {WS}, 0 offen sc1")
    C("gather the q and h partials")
    g1 = gatherH1()
    step(D)
    A.wait_vm(g1)
    stamp()
    A.label("L_chk1")
    chk(gq, sr(sP, 2), vT1); chk(gh, sr(sP + 2, 2), vT1); chk(gh2, "vcc", vT1)
    A("s_and_b32 vcc_lo, vcc_lo, 0x00030003"); A("s_and_b32 vcc_hi, vcc_hi, 0x00030003")
    A(f"s_or_b64 vcc, vcc, {sr(sP,2)}"); A(f"s_or_b64 vcc, vcc, {sr(sP+2,2)}")
    A("s_cbranch_scc1 L_slow1")
    A.label("L_ok1")
    spinrec(58)
    def copybox(nm):
        C("write this workgroup's valid q / h granules through to memory, for readers on other XCDs")
        A(f"s_mul_i32 s{sT0}, s{sBOX}, {BOX}"); A(f"s_add_u32 s{sT0}, s{sT0}, {WS_BOX}"); A(f"v_lshl_add_u32 v{cpa}, v{vL}, 4, s{sT0}")
        for k in range(3):
            if k == 2: A("s_mov_b64 exec, 0xff")
            A.vmem(f"buffer_load_dwordx4 {vr(cp,4)}, v{cpa}, {WS}, 0 offen offset:{k*1024} sc1")
            A("s_waitcnt vmcnt(0)")
            chk(cp, "vcc", vT1)
            A("s_andn2_b64 exec, exec, vcc"); A(f"s_cbranch_execz L_cp{nm}{k}")
            A.vmem(f"buffer_store_dwordx4 {vr(cp,4)}, v{cpa}, {WS}, 0 offen offset:{k*1024} sc1")
            A.label(f"L_cp{nm}{k}")
            A("s_mov_b64 exec, -1"); A("s_waitcnt vmcnt(0)")
    def slow1():
        A.label("L_slow1"); bounded()
        C("a granule of this launch from another XCD differs from the own tag in the top nibble only")
        A(f"s_mov_b64 {sr(sP,2)}, 0")
        for v in (gq, gh, gh2):
            if v == gh2: A("s_mov_b32 exec_lo, 0x00030003"); A("s_mov_b32 exec_hi, 0x00030003")
            chk(v, sr(sP + 2, 2), vT1)
            A(f"v_xor_b32 v{t0}, v{t0}, v{vT1}"); A(f"v_lshlrev_b32 v{t0}, 4, v{t0}"); A(f"v_cmp_ne_u32 vcc, 0, v{t0}")
            A(f"s_or_b64 {sr(sP,2)}, {sr(sP,2)}, vcc")
            A(f"s_andn2_b64 vcc, {sr(sP+2,2)}, vcc"); A(f"s_cselect_b32 s{sMode}, 1, s{sMode}")
        A("s_mov_b64 exec, -1")
        A(f"s_cmp_eq_u64 {sr(sP,2)}, 0"); A("s_cbranch_scc1 L_ok1")
        A(f"s_add_u32 s{sIt}, s{sIt}, 1"); A(f"s_cmp_lt_u32 s{sIt}, 4"); A("s_cbranch_scc1 L_slow1b")
        copybox("a")
        A.label("L_slow1b")
        gatherH1(); A("s_waitcnt vmcnt(0)"); A("s_branch L_chk1")
    slow.append(slow1)
    def pubstore(nm, text):
        A(f"s_cmp_lg_u32 s{sMode}, 0"); A(f"s_cbranch_scc1 L_alt{nm}")
        A.vmem(text)
        A.label(f"L_altb{nm}")
        def alt():
            A.label(f"L_alt{nm}"); A.vmem(text + " sc1"); A("s_nop 1"); A(f"s_branch L_altb{nm}")
        slow.append(alt)
    step(1); A.cyc = 0; lim[0] = 60; A.auto = auto
    for v in (gq, gh, gh2): untag(v, v)
    for v in (gq, gh, gh2): tred(v)
    A(f"v_cvt_pk_bf16_f32 v{gq}, v{gq}, v{gq}"); A(f"ds_write_b16 v{aQw}, v{gq}")
    A(f"s_lshl2_add_u32 s{sT0}, s{sW}, {L_FL}"); A(f"v_mov_b32 v{t2}, s{sT0}"); A(f"v_mov_b32 v{t3}, s{sMode}")
    A(f"ds_write_b32 v{t2}, v{t3}")
    C("silu")
    A(f"v_cvt_pk_bf16_f32 v{t0}, v{gh}, v{gh2}")
    A(f"v_lshlrev_b32 v{gh}, 16, v{t0}"); A(f"v_and_b32 v{gh2}, 0xffff0000, v{t0}")
    for v in (gh, gh2): A(f"v_mul_f32 v{v+1}, {hex(LOG2E | 0x80000000)}, v{v}")
    for v in (gh, gh2): A(f"v_exp_f32 v{v+1}, v{v+1}")
    for v in (gh, gh2): A(f"v_add_f32 v{v+1}, 1.0, v{v+1}")
    for v in (gh, gh2): A(f"v_rcp_f32 v{v+1}, v{v+1}")
    for v in (gh, gh2): A(f"v_mul_f32 v{v}, v{v}, v{v+1}")
    A(f"v_cvt_pk_bf16_f32 v{t0}, v{gh}, v{gh2}")
    A(f"ds_write_b16 v{aHw}, v{t0}")
    with quiet():
        A("s_mov_b32 exec_lo, 0x000f000f"); A("s_mov_b32 exec_hi, 0x000f000f")
        A(f"ds_write_b16_d16_hi v{aHw}, v{t0} offset:128")
        A("s_mov_b64 exec, -1")
    step(1); A.cyc = 0
    A("s_waitcnt lgkmcnt(0)")
    C("B2: q, silu(h) and the placement flags are in LDS")
    A("s_barrier")
    stamp()
    A(f"v_mov_b32 v{t2}, {L_FL}"); A(f"ds_read_b128 {vr(gq,4)}, v{t2}")
    def modecheck():
        with quiet():
            A(f"v_or3_b32 v{t2}, v{gq}, v{gq+1}, v{gq+2}"); A(f"v_or_b32 v{t2}, v{t2}, v{gq+3}")
            A(f"v_readfirstlane_b32 s{sMode}, v{t2}")
            A(f"s_cmp_lg_u32 s{sMode}, 0"); A("s_cbranch_scc1 L_mode1")
            A.label("L_mode1b")
        def mode1(): A.label("L_mode1"); copybox("b"); A("s_branch L_mode1b")
        slow.append(mode1)
    V.put(aQw); V.put(aHw)
    C("scores: lane (g', n) register 4 t + r = key row g' of round 4 t + r, head n >> 3")
    qf = V.get(16, 4); kf = [V.get(16, 4), V.get(16, 4)]; S = V.get(32, 4)
    for st in range(4): A(f"ds_read_b128 {vr(qf+4*st,4)}, v{aQr} offset:{st*64}")
    def rdK(t):
        if 4 * t + 3 >= GK:
            while pos() < 4 * t + 3 + D: step(1); A.cyc = 0
            A.wait_vm(kseq[4 * t + 3])
        if t == 4:
            for k in range(4): A(f"v_add_u32 v{aKr+k}, 0x10000, v{aKr+k}")
        for st in range(4): A(f"ds_read_b128 {vr(kf[t&1]+4*st,4)}, v{aKr+st} offset:{(t&3)*16384}")
    rdK(0)
    for t in range(8):
        if t < 7: rdK(t + 1); A("s_waitcnt lgkmcnt(4)")
        else: A("s_waitcnt lgkmcnt(0)")
        for st in range(4):
            c = "0" if st == 0 else vr(S+4*t, 4)
            A(f"v_mfma_f32_16x16x32_bf16 {vr(S+4*t,4)}, {vr(kf[t&1]+4*st,4)}, {vr(qf+4*st,4)}, {c}")
        if t < 7: A("s_nop 3")
        if t == 0: modecheck()
    V.put(qf, 16); V.put(kf[0], 16); V.put(kf[1], 16); V.put(aQr); V.put(aKr, 4); V.put(vKo, 4)
    for v in (gq, gh, gh2, cp): V.put(v, 4)
    V.put(cpa)
    pc = V.get(2); tp = V.get(8); ml = V.get(2); pl = V.get(2)
    A(f"v_mov_b32 v{pc}, {hex(SCALE)}")
    for h in range(2):
        for k in range(8): A(f"v_cvt_pk_bf16_f32 v{tp+k}, v{S+16*h+2*k}, v{S+16*h+2*k+1}")
        unpack(S + 16 * h, tp, 8)
        for k in range(8): pk_scale(S + 16 * h + 2 * k, S + 16 * h + 2 * k, pc)
        for k in range(8): A(f"v_cvt_pk_bf16_f32 v{tp+k}, v{S+16*h+2*k}, v{S+16*h+2*k+1}")
        unpack(S + 16 * h, tp, 8)
    A(f"v_max_f32 v{ml}, v{S}, v{S+1}")
    for k in range(1, 16): A(f"v_max3_f32 v{ml}, v{S+2*k}, v{S+2*k+1}, v{ml}")
    allred_rows(ml, t0, "v_max_f32")
    A(f"v_mov_b32 v{pc}, {hex(LOG2E)}")
    for k in range(16): pk_sub(S + 2 * k, S + 2 * k, ml)
    for k in range(16): pk_scale(S + 2 * k, S + 2 * k, pc)
    for k in range(32): A(f"v_exp_f32 v{S+k}, v{S+k}")
    A(f"v_pk_add_f32 {vr(pl,2)}, {vr(S,2)}, {vr(S+2,2)}")
    for k in range(2, 16): A(f"v_pk_add_f32 {vr(pl,2)}, {vr(pl,2)}, {vr(S+2*k,2)}")
    A(f"v_add_f32 v{ml+1}, v{pl}, v{pl+1}")
    allred_rows(ml + 1, t0, "v_add_f32")
    A(f"s_lshl_b32 s{sT0}, s{sW}, 4"); A(f"s_add_u32 s{sT0}, s{sT0}, {L_ML}")
    A(f"v_and_b32 v{t0}, 8, v{vL}"); A(f"v_add_u32 v{t0}, s{sT0}, v{t0}")
    A(f"ds_write_b64 v{t0}, {vr(ml,2)}")
    for k in range(32): A(f"v_cvt_pk_bf16_f32 v{S+k}, v{S+k}, v{S+k}")
    A("s_waitcnt lgkmcnt(0)")
    C("B3: K is consumed, the waves' (max, sum) are in LDS")
    A("s_barrier")
    stamp()
    A(f"v_lshrrev_b32 v{t0}, 5, v{vL}"); A(f"v_lshlrev_b32 v{t0}, 3, v{t0}"); A(f"v_add_u32 v{t1}, s{sT0}, v{t0}"); A(f"v_add_u32 v{t0}, {L_ML}, v{t0}")
    for k in range(4): A(f"ds_read_b64 {vr(tp+2*k,2)}, v{t0} offset:{16*k}")
    A(f"ds_read_b32 v{pl}, v{t1}")
    A("s_waitcnt lgkmcnt(0)")
    vF = V.get(2); g4 = V.get(4, 4)
    A(f"v_max3_f32 v{g4}, v{tp}, v{tp+2}, v{tp+4}"); A(f"v_max_f32 v{g4}, v{g4}, v{tp+6}")
    for r in (tp, tp + 2, tp + 4, tp + 6, pl): A(f"v_sub_f32 v{r}, v{r}, v{g4}")
    for r in (tp, tp + 2, tp + 4, tp + 6, pl): A(f"v_mul_f32 v{r}, {hex(LOG2E)}, v{r}")
    for r in (tp, tp + 2, tp + 4, tp + 6): A(f"v_exp_f32 v{r}, v{r}")
    A(f"v_exp_f32 v{vF}, v{pl}")
    A(f"v_mul_f32 v{g4+1}, v{tp}, v{tp+1}")
    for k in range(1, 4): A(f"v_fmac_f32 v{g4+1}, v{tp+2*k}, v{tp+2*k+1}")
    A(f"v_mov_b32 v{g4+2}, v{g4}"); A(f"v_mov_b32 v{g4+3}, v{g4+1}")
    A(f"v_permlane32_swap_b32 v{g4}, v{g4+2}"); A(f"v_permlane32_swap_b32 v{g4+1}, v{g4+3}")
    tag(g4, vT2)
    A(f"s_mul_i32 s{sT0}, s{sBOX}, {BOX}"); A(f"s_add_u32 s{sT1}, s{sT0}, {WS_BOX+MLO}")
    A(f"v_cmp_gt_u32 vcc, 8, v0"); A(f"v_mov_b32 v{t0}, {hex(OOB)}"); A(f"v_lshl_add_u32 v{t1}, v0, 4, s{sT1}")
    A(f"v_cndmask_b32 v{t0}, v{t0}, v{t1}, vcc")
    A.auto = None
    C("publish the workgroup's (max, sum) of both heads")
    pubstore("m", f"buffer_store_dwordx4 {vr(g4,4)}, v{t0}, {WS}, 0 offen")
    V.put(pc, 2); V.put(tp, 8); V.put(ml, 2); V.put(pl, 2)
    print("V rounds issued at the end of the softmax:", len(vseq), file=sys.stderr)
    oacc = V.get(4, 4); NQ = 8; aq = V.get(4 * NQ, 4)
    built = [0]; done = [0]
    def build(n):
        for _ in range(n):
            j = built[0]
            if j >= 32: return
            assert j - done[0] < NQ
            for k in range(4): A(f"v_and_b32 v{aq+4*(j%NQ)+k}, v{S+j}, v{vM+k}")
            built[0] += 1
    def pv():
        j = done[0]
        assert built[0] > j
        A.wait_vm(vseq[j])
        A(f"v_mfma_f32_16x16x32_bf16 {vr(oacc,4)}, {vr(aq+4*(j%NQ),4)}, {ar(4*j,4)}, {'0' if j == 0 else vr(oacc,4)}")
        done[0] += 1
        if done[0] == GM: weights()
    gp = V.get(4, 4); gm = V.get(4, 4); vWg = V.get(2); xc = V.get(4, 4)
    unpack(xc, xr2, 2)
    def gatherO(): return A.vmem(f"buffer_load_dwordx4 {vr(gp,4)}, v{aG2}, {WS}, 0 offen sc1")
    def gatherML(): return A.vmem(f"buffer_load_dwordx4 {vr(gm,4)}, v{aGm}, {WS}, 0 offen sc1")
    gml = [None]
    def weights():
        C("softmax weights of the four splits from the gathered (max, sum)")
        A.wait_vm(gml[0])
        A.label("L_chk2")
        chk(gm, "vcc", vT2)
        A("s_cbranch_vccnz L_slow2")
        spinrec(59)
        def slow2(): A.label("L_slow2"); bounded(); gatherML(); A("s_waitcnt vmcnt(0)"); A("s_branch L_chk2")
        slow.append(slow2)
        A(f"s_cmp_ge_u32 s{sB}, 2"); A("s_cselect_b64 vcc, -1, 0")
        A(f"v_cndmask_b32 v{t2}, v{gm}, v{gm+2}, vcc"); A(f"v_cndmask_b32 v{t3}, v{gm+1}, v{gm+3}, vcc")
        A(f"v_and_b32 v{t2}, 0xffffff00, v{t2}"); A(f"v_and_b32 v{t3}, 0xffffff00, v{t3}")
        A(f"v_mov_b32 v{vWg}, v{t2}"); allred_rows(vWg, t0, "v_max_f32")
        A(f"v_sub_f32 v{t2}, v{t2}, v{vWg}"); A(f"v_mul_f32 v{t2}, {hex(LOG2E)}, v{t2}"); A(f"v_exp_f32 v{t2}, v{t2}")
        A(f"v_mul_f32 v{t3}, v{t2}, v{t3}"); allred_rows(t3, t0, "v_add_f32")
        A(f"v_rcp_f32 v{t3}, v{t3}"); A(f"v_mul_f32 v{vWg}, v{t2}, v{t3}")
    cap = 32 if wi else GM - 1
    build(2)
    assert len(vseq) < GM
    pv0 = len(vseq) + pk
    if Dlo and pk == 0: pq = A.vmem(f"buffer_load_dwordx4 {vr(gp,4)}, v{aGm}, {WS}, 0 offen sc1")
    while len(vseq) < 32:
        step(1)
        if Dlo and pk and len(vseq) == pv0: pq = A.vmem(f"buffer_load_dwordx4 {vr(gp,4)}, v{aGm}, {WS}, 0 offen sc1")
        if Dlo and len(vseq) == pv0 + DV:
            A.wait_vm(pq); chk(gp, "vcc", vT2); A(f"s_bcnt1_i32_b64 s{sLo}, vcc"); A(f"s_cmp_ge_u32 s{sLo}, {4*thr}"); A(f"s_cselect_b32 s{sLo}, 1, 0")
            dyn[0] = 1
        if len(vseq) == GM: gml[0] = gatherML()
        n = 0
        while done[0] < min(len(vseq) - DV - 1, cap) and n < 4: pv(); build(1); n += 1
    dyn[0] = 0
    V.put(g4, 4)
    stamp()
    C("w2 and wo tiles -> LDS behind V")
    tail = ragged(dW2, L_W2, 6, 3641, 864) + ragged(dWO, L_WO, 5, 3641, 864)
    wseq = []
    while len(tail) > hold:
        pace(DW)
        wseq.append(tail.pop(0)())
        while done[0] < min(32 + len(wseq) - DW - 1, cap): build(NQ - (built[0] - done[0])); pv()
    while done[0] < 32:
        build(NQ - (built[0] - done[0])); pv()
    stamp()
    pk_scale(oacc, oacc, vF); pk_scale(oacc + 2, oacc + 2, vF)
    A(f"ds_write_b128 v{aOPw}, {vr(oacc,4)}")
    A("s_waitcnt lgkmcnt(0)")
    C("B4: the waves' o are in LDS; wave w sums and publishes a quarter")
    A("s_barrier")
    V.put(S, 32); V.put(aq, 4 * NQ); V.put(vM, 4)
    r16 = V.get(16, 4)
    A("s_mov_b64 exec, 0xffff")
    for k in range(4): A(f"ds_read_b128 {vr(r16+4*k,4)}, v{aOPr} offset:{L_OP + 1024*k}")
    A("s_waitcnt lgkmcnt(2)")
    for h in range(2): A(f"v_pk_add_f32 {vr(r16+2*h,2)}, {vr(r16+2*h,2)}, {vr(r16+4+2*h,2)}")
    A("s_waitcnt lgkmcnt(0)")
    for h in range(2): A(f"v_pk_add_f32 {vr(r16+8+2*h,2)}, {vr(r16+8+2*h,2)}, {vr(r16+12+2*h,2)}")
    for h in range(2): A(f"v_pk_add_f32 {vr(r16+2*h,2)}, {vr(r16+2*h,2)}, {vr(r16+8+2*h,2)}")
    tag(r16, vT2)
    pubstore("o", f"buffer_store_dwordx4 {vr(r16,4)}, v{aH2}, {WS}, 0 offen")
    A("s_mov_b64 exec, -1")
    stamp()
    g2 = None
    while tail:
        wseq.append(tail.pop(0)())
        if len(tail) == hold - pp and tail: g2 = gatherO()
    hf = V.get(10, 4); w2f = V.get(36, 4); wof = V.get(24, 4); yacc = V.get(12, 4)
    W2D = L_W2 - L_WO
    for st in range(5): A(f"ds_read_b64 {vr(hf+2*st,2)}, v{aHr} offset:{st*32}")
    C("the polls of o overlap: a granule that has turned valid stays valid")
    g3 = gatherO()
    if g2 is None: g2 = g3
    A(f"s_cmp_eq_u32 s{sW}, 3")
    A.wait_vm(wseq[5], "lgkmcnt(0)", trust=True)
    C("B5: w2 tile landed")
    A("s_barrier")
    stamp()
    gatherO()
    A("s_cbranch_scc1 L_noffn")
    for st in (4, 0, 1, 2, 3):
        for tl in range(3): A(f"ds_read_b64_tr_b16 {vr(w2f+12*tl+2*st,2)}, v{aW} offset:{W2D+st*4608+32*tl}")
    A("s_waitcnt lgkmcnt(12)")
    for tl in range(3): A(f"v_mfma_f32_16x16x16_bf16 {vr(yacc+4*tl,4)}, {vr(w2f+12*tl+8,2)}, {vr(hf+8,2)}, {vr(xc,4)}")
    for st in range(2):
        A(f"s_waitcnt lgkmcnt({6-6*st})")
        for tl in range(3): A(f"v_mfma_f32_16x16x32_bf16 {vr(yacc+4*tl,4)}, {vr(w2f+12*tl+4*st,4)}, {vr(hf+4*st,4)}, {vr(yacc+4*tl,4)}")
    A.label("L_noffn")
    gatherO()
    A.wait_vm(g2)
    stamp()
    A.label("L_chk3")
    chk(gp, "vcc", vT2)
    A("s_cbranch_vccnz L_slow3")
    spinrec(60)
    def slow3():
        A.label("L_slow3"); bounded()
        A("s_mov_b64 exec, vcc"); gatherO(); A("s_mov_b64 exec, -1")
        A("s_waitcnt vmcnt(1)"); A("s_branch L_chk3")
    slow.append(slow3)
    stamp()
    go = V.get(4, 4)
    untag(go, gp); pk_scale(go, go, vWg); pk_scale(go + 2, go + 2, vWg)
    tred(go)
    A(f"v_cvt_pk_bf16_f32 v{go}, v{go}, v{go}")
    A(f"ds_write_b16 v{aOw}, v{go}")
    if lateinit:
        with uncounted(): initacc()
        A("s_waitcnt vmcnt(0)")
    A(f"s_add_u32 s{sT0}, s{sS0}, 63"); A(f"v_mov_b32 v{t2}, s{sT0}"); A(f"v_mov_b32 v{t1}, {hex(OOB)}")
    A(f"s_cmp_eq_u32 s{sW}, 3")
    A.wait_vm(wseq[-1], "lgkmcnt(0)")
    C("B6: normalised o and the wo tile are in LDS")
    A("s_barrier")
    A("s_cbranch_scc1 L_fin")
    of = V.get(8, 4)
    def rdq(q):
        for tl in range(3): A(f"ds_read_b64_tr_b16 {vr(wof+8*tl+2*q,2)}, v{aW} offset:{q*4608+32*tl}")
    for st in range(2): A(f"ds_read_b128 {vr(of+4*st,4)}, v{aOr} offset:{64*st}"); rdq(2 * st); rdq(2 * st + 1)
    for st in range(2):
        A(f"s_waitcnt lgkmcnt({7-7*st})")
        for tl in range(3): A(f"v_mfma_f32_16x16x32_bf16 {vr(yacc+4*tl,4)}, {vr(wof+8*tl+4*st,4)}, {vr(of+4*st,4)}, {vr(yacc+4*tl,4)}")
    C("add into the accumulators; 63 earlier arrivals mean that the returned value completes the sum")
    own = V.get(4, 4); ret = V.get(4, 4); cur = V.get(); dc = V.get(4)
    def atom(r): return A.vmem(f"buffer_atomic_add_f32 v{ret+r}, v{aAc}, {WS}, 0 offen offset:{128*r} sc0 sc1")
    for rs in (((0,), (1,), (2,), (3,)) if m2 else ((0, 1, 2, 3),)):
        for r in rs: A(f"v_cndmask_b32 v{own+r}, v{yacc+r}, 1.0, {sr(sU3,2)}")
        for r in rs: A(f"v_cndmask_b32 v{own+r}, v{own+r}, v{yacc+4+r}, {sr(sU1,2)}")
        for r in rs: A(f"v_cndmask_b32 v{ret+r}, v{own+r}, v{yacc+8+r}, {sr(sU2,2)}"); atom(r)
    stamp()
    for r in range(4): A(f"v_cndmask_b32 v{own+r}, v{own+r}, v{yacc+8+r}, {sr(sU2,2)}")
    def arrivals(d, v): A(f"v_sub_u32_dpp v{d}, v{v}, v{t2} quad_perm:[3,3,3,3] row_mask:0xf bank_mask:0xf")
    A("s_waitcnt vmcnt(2)")
    A.label("L_chk4")
    arrivals(dc, ret); arrivals(dc + 1, ret + 1)
    A(f"v_pk_add_f32 {vr(of,2)}, {vr(ret,2)}, {vr(own,2)}")
    A(f"v_or_b32 v{t0}, v{dc}, v{dc+1}")
    A(f"v_cvt_pk_bf16_f32 v{of+4}, v{of}, v{of+1}")
    A("s_waitcnt vmcnt(0)")
    arrivals(dc + 2, ret + 2); arrivals(dc + 3, ret + 3)
    A(f"v_or3_b32 v{t0}, v{t0}, v{dc+2}, v{dc+3}")
    A(f"v_cmp_eq_u32 vcc, 0, v{t0}")
    A(f"v_pk_add_f32 {vr(of+2,2)}, {vr(ret+2,2)}, {vr(own+2,2)}")
    A(f"v_cvt_pk_bf16_f32 v{of+5}, v{of+2}, v{of+3}")
    A(f"v_cndmask_b32 v{of+6}, v{t1}, v{aOut}, vcc")
    A.vmem(f"buffer_store_dwordx2 {vr(of+4,2)}, v{of+6}, {sr(dOUT,4)}, 0 offen")
    stamp()
    A(f"v_min3_u32 v{t3}, v{dc}, v{dc+1}, v{dc+2}"); A(f"v_min_u32 v{t3}, v{t3}, v{dc+3}"); A(f"s_movk_i32 s{sT0}, -63")
    A(f"v_cmp_gt_u32 {sr(sP,2)}, s{sT0}, v{t3}")
    A(f"v_cmp_eq_u32 {sr(sL,2)}, 0, v{dc}")
    A(f"s_andn2_b64 {sr(sP,2)}, {sr(sP,2)}, vcc")
    def singles():
        C("last arrival on some of the four lines only: single elements")
        sQ = 4
        A(f"v_cndmask_b32 v{of+7}, v{t1}, v{aOut}, {sr(sP,2)}")
        for r in range(1, 4): A(f"v_cmp_eq_u32 {sr(sQ+2*r,2)}, 0, v{dc+r}")
        for r in range(4):
            A(f"v_cndmask_b32 v{of+r}, v{t1}, v{of+7}, {sr(sQ+2*r if r else sL,2)}")
            A.vmem(f"buffer_store_short{'_d16_hi' if r & 1 else ''} v{of+4+(r>>1)}, v{of+r}, {sr(dOUT,4)}, 0 offen offset:{2*r}")
        for r in range(4): A(f"v_add_u32 v{dc+r}, 63, v{dc+r}")
        A(f"v_max3_u32 v{t3}, v{dc}, v{dc+1}, v{dc+2}"); A(f"v_max_u32 v{t3}, v{t3}, v{dc+3}")
        A(f"v_cmp_lt_u32 vcc, 63, v{t3}")
    A("s_cbranch_scc0 L_mixedb"); singles(); A("s_cbranch_vccnz L_mixed")
    A.label("L_mixedb")
    def mixed():
        A.label("L_mixed")
        C("an add that reached a line before its initialisation is lost: wait for the initialisation, add again")
        bounded()
        for r in range(4):
            A(f"v_cmp_lt_u32 vcc, 63, v{dc+r}"); A("s_and_b64 exec, exec, vcc"); A(f"s_cbranch_scc0 L_rt{r}")
            A.vmem(f"buffer_load_dword v{cur}, v{aAc}, {WS}, 0 offen offset:{128*r} sc1")
            A("s_waitcnt vmcnt(0)")
            arrivals(t0, cur); A(f"v_add_u32 v{t0}, 63, v{t0}")
            A(f"v_cmp_ge_u32 vcc, 63, v{t0}"); A("s_and_b64 exec, exec, vcc"); A(f"s_cbranch_scc0 L_rt{r}")
            A(f"v_mov_b32 v{ret+r}, v{own+r}"); atom(r)
            A("s_waitcnt vmcnt(0)")
            A.label(f"L_rt{r}")
            A("s_mov_b64 exec, -1")
        A("s_branch L_chk4")
    slow.append(mixed)
    C("the last arrival on the first chunk has seen every workgroup past its read of the epoch word: advance it")
    A(f"s_or_b32 s{sT0}, s{sS}, s{sW}"); A("s_cbranch_scc1 L_fin")
    A(f"s_bitcmp1_b32 s{sL}, 3"); A("s_cbranch_scc0 L_fin")
    A(f"v_mov_b32 v{t0}, s{sE}"); A(f"v_mov_b32 v{t1}, 0"); A("s_mov_b64 exec, 1")
    A.vmem(f"buffer_store_dword v{t0}, v{t1}, {WS}, 0 offen")
    if probe2:
        A("s_waitcnt vmcnt(0)"); A(f"s_memrealtime s[{sSt}:{sSt+1}]"); A("s_mov_b32 s100, 0"); A("s_atomic_add s100, s[14:15], 0 glc"); A("s_waitcnt lgkmcnt(0)")
        if probe2 is True: A(f"s_lshl_b32 s{sT0}, s{sSt}, 3"); A(f"s_sub_u32 s{sT0}, s{sT0}, s100")
        elif probe2 == "skew":
            A("s_mov_b32 s101, 0"); A("s_atomic_add s101, s[14:15], 4 glc"); A("s_waitcnt lgkmcnt(0)")
            A("s_not_b32 s101, s101"); A(f"s_sub_u32 s{sT0}, s100, s101"); A(f"s_mul_i32 s{sT0}, s{sT0}, 40")
        else: A(f"s_mul_i32 s{sT0}, s100, 10"); A(f"s_add_u32 s{sT0}, s{sT0}, 10000")
        A(f"s_min_u32 s{sT0}, s{sT0}, 100000")
        A.label("L_probe")
        A("s_memrealtime s[100:101]"); A("s_waitcnt lgkmcnt(0)"); A(f"s_sub_u32 s100, s100, s{sSt}"); A(f"s_cmp_lt_u32 s100, s{sT0}"); A("s_cbranch_scc1 L_probe")
    A.label("L_fin")
    if stamps:
        A("s_mov_b64 exec, -1"); A("s_waitcnt vmcnt(0)")
        A(f"s_memrealtime s[{sSt}:{sSt+1}]"); A("s_waitcnt lgkmcnt(0)"); A(f"v_writelane_b32 v{vSt}, s{sSt}, 62")
        A(f"v_writelane_b32 v{vSt}, s{sSpin}, 61")
        A(f"s_getreg_b32 s{sSt}, hwreg(HW_REG_XCC_ID, 0, 4)"); A(f"v_writelane_b32 v{vSt}, s{sSt}, 63")
        A(f"s_lshl_b32 s{sT0}, s2, 10"); A(f"s_add_u32 s{sT0}, s{sT0}, {WS_ST}"); A(f"v_lshl_add_u32 v{t0}, v0, 2, s{sT0}")
        if stamps == "tiny":
            A(f"s_lshl2_add_u32 s{sT0}, s2, s{sW}"); A(f"s_lshl3_add_u32 s{sT0}, s{sT0}, {WS_ST}"); A(f"v_lshrrev_b32 v{t0}, 5, v{vL}"); A(f"v_lshl_add_u32 v{t0}, v{t0}, 2, s{sT0}")
            A("s_mov_b32 exec_lo, 1"); A("s_mov_b32 exec_hi, 0x40000000")
        A.vmem(f"buffer_store_dword v{vSt}, v{t0}, {WS}, 0 offen")
    A("s_endpgm")
    C("---- rare paths")
    for f in slow: f()
    A.label("L_end")
    A("s_endpgm")
    acc_off = (V.top + 3) // 4 * 4
    A.raw('.section .rodata,"a"'); A.raw(".p2align 6"); A.raw(f".amdhsa_kernel {NAME}_kernel")
    A.raw(f"  .amdhsa_next_free_vgpr {acc_off + 128}"); A.raw("  .amdhsa_next_free_sgpr 102"); A.raw(f"  .amdhsa_accum_offset {acc_off}")
    A.raw("  .amdhsa_group_segment_fixed_size 0"); A.raw("  .amdhsa_kernarg_size 88"); A.raw("  .amdhsa_user_sgpr_count 2")
    A.raw("  .amdhsa_user_sgpr_kernarg_segment_ptr 1"); A.raw("  .amdhsa_system_sgpr_workgroup_id_x 1"); A.raw(".end_amdhsa_kernel")
    return A.text()

if __name__ == "__main__":
    kw = eval("dict(" + (sys.argv[2] if len(sys.argv) > 2 else "") + ")")
    open(sys.argv[1], "w").write(gen(**kw))
```

```python
import sys, struct
from asmlib import *
NAME = "parallel_sum__sliding_block_cached__dense_activation_silu__decode"

def f2u(x): return struct.unpack("<I", struct.pack("<f", x))[0]
LOG2E = f2u(1.4426950408889634); SCALE = f2u(128 ** -0.5)
OOB = 0x40000000
WS_BOX, BOX = 0x1000, 2304
MLO = 2176
WS_AC = 0x100000
WS_ST = 0x400000
L_WQ = 131072 - 20480; L_WO = L_WQ
L_XN = 131072; L_Q = L_XN + 1152; L_H = L_Q + 512; L_ML = L_H + 640; L_O = L_ML + 128; L_FL = L_O + 512
L_W1 = 134144; L_W2 = L_W1; L_OP = 0
LDS_BYTES = L_W1 + 24576
HEADER = open("cdna_kernels/" + NAME + ".s.ref").read().split("; Override launch")[0]

DOC = """;
;   2. attention over 512 of the 2048 window keys for the two query heads of (batch, kv head)
; exchange through its L2 with plain stores, any other placement switches to write-through stores.
"""

def gen(D=6, DV=6, DW=6, TH=300, GK=26, GM=19, hold=5, pp=9, sb=14, rc=(1, 0, 0, 0, 3, 0, 0, 2),
        stamps=False, sel=None, scramble=False, force1=False, lateinit=False, spin=None, rtab=False, m2=0, wi=1, il=4, ipos=0, prime=0, pat='KW', wm=0, pl=1, t1o=1, pre=1, mid=1, pa=0, pb=0, hb=9, bb=1, inl3=1, pz=5, tc=0, Dlo=0, pk=0, thr=8, nlo=99, probe2=False, n0=3, lt=1, DC=7):
    if spin is None: spin = 20000 if stamps else 1 << 21
    A = Asm(); V = VAlloc(1, 256); A.th = TH
    def C(t): A.raw("    ; " + t)
    A.raw(HEADER.rstrip("\n"))
    A.raw(f"; @launch grid=(256,1,1) block=(256,1,1) lds={LDS_BYTES}")
    A.raw(DOC.rstrip("\n"))
    A.raw('.amdgcn_target "amdgcn-amd-amdhsa--gfx950"')
    A.raw(".text"); A.raw(f".globl {NAME}_kernel"); A.raw(".p2align 8"); A.raw(f".type {NAME}_kernel,@function")
    A.label(f"{NAME}_kernel")
    sW = 3
    pX, pK, pV, pWQ, pWO, pW1, pW2, pOUT, pWS = 4, 6, 8, 10, 12, 16, 18, 20, 24
    sMode, sIt, sPC = 22, 23, 26
    dX, dK, dV, dWQ, dW1, dW2, dWO, dWS, dOUT = 28, 32, 36, 40, 44, 48, 52, 56, 60
    sG, sS, sB, sHKV, sBOX, sRot, sSo, sE, sT0, sT1, sT2, sS0 = 64, 65, 66, 67, 68, 69, 70, 71, 72, 73, 74, 75
    sSel, sSelA, sSelB, sU1, sU2, sSpin, sC, sM, sP, sL, sU3, sSt = 76, 80, 81, 82, 84, 86, 87, 88, 90, 94, 96, 98
    WS = sr(dWS, 4)
    slow = []
    vSt = V.get() if stamps else None
    nst = [1]; cnt = [0]
    class quiet:
        def __enter__(s): s.a = A.auto; A.auto = None
        def __exit__(s, *a): A.auto = s.a
    class uncounted:
        def __enter__(s): s.n = len(A.vm)
        def __exit__(s, *a): del A.vm[s.n:]
    def stamp():
        cnt[0] += 1
        if stamps is True and (sel is None or cnt[0] in sel):
            with quiet():
                A(f"s_memrealtime s[{sSt}:{sSt+1}]"); A("s_waitcnt lgkmcnt(0)"); A(f"v_writelane_b32 v{vSt}, s{sSt}, {nst[0]}"); nst[0] += 1
    def spinrec(k):
        if stamps: A(f"v_writelane_b32 v{vSt}, s{sSpin}, {k}")
    def srd(d, p, off_s, nrec):
        if off_s is None: A(f"s_mov_b32 s{d}, s{p}"); A(f"s_mov_b32 s{d+1}, s{p+1}")
        else: A(f"s_add_u32 s{d}, s{p}, s{off_s}"); A(f"s_addc_u32 s{d+1}, s{p+1}, 0")
        A(f"s_mov_b32 s{d+2}, {nrec}"); A(f"s_mov_b32 s{d+3}, 0x20000")
    def bounded(): A(f"s_sub_u32 s{sSpin}, s{sSpin}, 1"); A("s_cbranch_scc1 L_end")

    def initacc():
        C("workgroup (g < 48, s) initialises accumulator line 48 s + g")
        with quiet():
            i4 = V.get(4, 4)
            for r in range(3): A(f"v_mov_b32 v{i4+r}, 0")
            A(f"v_mov_b32 v{i4+3}, s{sS0}")
            A(f"s_mul_i32 s{sT0}, s{sS}, 48"); A(f"s_add_u32 s{sT0}, s{sT0}, s{sG}"); A(f"s_lshl_b32 s{sT0}, s{sT0}, 7"); A(f"s_add_u32 s{sT0}, s{sT0}, {WS_AC}")
            A(f"s_cmp_lt_u32 s{sG}, 48"); A(f"s_cselect_b32 s{sT1}, {il}, 0")
            A(f"v_lshl_add_u32 v{t0}, v0, 4, s{sT0}"); A(f"v_cmp_gt_u32 vcc, s{sT1}, v0"); A(f"v_mov_b32 v{t1}, {hex(OOB)}")
            A(f"v_cndmask_b32 v{t0}, v{t1}, v{t0}, vcc")
            A.vmem(f"buffer_store_dwordx4 {vr(i4,4)}, v{t0}, {WS}, 0 offen sc1")
            V.put(i4, 4)
    vJ = V.get(); vPa = V.get(2); vL = V.get(); t0 = V.get(); t1 = V.get(); t2 = V.get(); t3 = V.get(); vX = V.get(); vWq = V.get()
    A("s_load_dwordx16 s[4:19], s[0:1], 0")
    if stamps or probe2: A(f"s_memrealtime s[{sSt}:{sSt+1}]")
    A("s_cmpk_ge_u32 s2, 256"); A("s_cbranch_scc1 L_end")
    A(f"v_readfirstlane_b32 s{sM}, v0")
    if scramble:
        A(f"s_lshr_b32 s{sG}, s2, 2"); A(f"s_and_b32 s{sS}, s2, 3")
    else:
        A(f"s_and_b32 s{sT0}, s2, 7"); A(f"s_bfe_u32 s{sT1}, s2, 0x30003"); A(f"s_lshl3_add_u32 s{sG}, s{sT0}, s{sT1}")
        A(f"s_lshr_b32 s{sS}, s2, 6")
    C("pull this kernel's text into L2, one dword per 64 bytes")
    A(f"s_getpc_b64 s[{sPC}:{sPC+1}]")
    A.label("L_pc")
    A(f"v_lshlrev_b32 v{vPa}, 6, v0"); A(f"v_min_u32 v{vPa}, L_end-L_pc, v{vPa}"); A(f"v_mov_b32 v{vPa+1}, s{sPC+1}")
    A(f"v_add_co_u32 v{vPa}, vcc, s{sPC}, v{vPa}")
    A(f"v_and_b32 v{vL}, 63, v0"); A(f"s_lshr_b32 s{sW}, s{sM}, 6")
    A(f"v_addc_co_u32 v{vPa+1}, vcc, 0, v{vPa+1}, vcc")
    A.vmem(f"global_load_dword v{vJ}, {vr(vPa,2)}, off")
    C("wq tile: rows 144 s.., columns 64 g.. -> LDS")
    A(f"v_lshrrev_b32 v{t0}, 3, v0"); A(f"v_and_b32 v{t1}, 7, v0"); A(f"v_lshlrev_b32 v{t1}, 4, v{t1}")
    A(f"v_lshl_or_b32 v{vWq}, v{t0}, 13, v{t1}")
    A(f"s_lshl4_add_u32 m0, s{sM}, {L_WQ}")
    A(f"s_mul_i32 s{sT1}, s{sS}, {144*8192}"); A(f"s_lshl_b32 s{sT2}, s{sG}, 7"); A(f"s_add_u32 s{sT1}, s{sT1}, s{sT2}")
    A(f"s_mov_b32 s{dWQ+2}, {143*8192+128}"); A(f"s_mov_b32 s{dWQ+3}, 0x20000"); A(f"s_lshl_b32 s{sC}, s{dWQ+3}, 1")
    A("s_waitcnt lgkmcnt(0)")
    A(f"s_add_u32 s{dWQ}, s{pWQ}, s{sT1}"); A(f"s_addc_u32 s{dWQ+1}, s{pWQ+1}, 0")
    for r in range(5):
        if r: A("s_addk_i32 m0, 0x1000"); A(f"v_add_u32 v{vWq}, s{sC}, v{vWq}")
        A.vmem(f"buffer_load_dwordx4 v{vWq}, {sr(dWQ,4)}, 0 offen nt lds")
    A("s_load_dwordx2 s[20:21], s[0:1], 64"); A("s_load_dwordx2 s[24:25], s[0:1], 80")
    if probe2: A("s_load_dwordx2 s[14:15], s[0:1], 72")
    if rtab:
        A(f"s_lshl_b32 s{sT0}, s2, 2"); A(f"s_load_dword s100, s[14:15], s{sT0}")
    if stamps: A(f"v_mov_b32 v{vSt}, 0"); A(f"v_writelane_b32 v{vSt}, s{sSt}, 0")
    C("x row of batch w")
    A(f"s_mul_i32 s{sT0}, s{sM}, 18"); A(f"s_lshl_b32 s{sM}, s{sM}, 4")
    A(f"v_lshlrev_b32 v{vX}, 5, v{vL}")
    srd(dX, pX, sT0, 1152)
    xr = V.get(8, 4)
    A.vmem(f"buffer_load_dwordx4 {vr(xr,4)}, v{vX}, {sr(dX,4)}, 0 offen")
    x1 = A.vmem(f"buffer_load_dwordx4 {vr(xr+4,4)}, v{vX}, {sr(dX,4)}, 0 offen offset:16")
    A(f"s_mul_i32 s{sT1}, s{sS}, {144*9216}"); A(f"s_mul_i32 s{sT2}, s{sG}, 144"); A(f"s_add_u32 s{sT1}, s{sT1}, s{sT2}")
    srd(dW1, pW1, sT1, 143 * 9216 + 144)
    def ragged(d, lbase, rounds, magic, rowpad):
        vP16 = V.get(); vMul = V.get(); vo = V.get()
        def mk(r):
            def f(before=None, split=False):
                with quiet():
                    if split:
                        v2 = V.get()
                        if r == 0: A(f"v_lshlrev_b32 v{vP16}, 4, v0"); A(f"v_mul_u32_u24 v{vMul}, {magic}, v0")
                        else: A(f"v_add_u32 v{vP16}, 0x1000, v{vP16}"); A(f"v_add_u32 v{vMul}, {magic*256}, v{vMul}")
                        A(f"s_movk_i32 s{sC}, {rowpad}"); A(f"v_lshrrev_b32 v{v2}, 16, v{vMul}"); A(f"v_mad_u32_u24 v{v2}, v{v2}, s{sC}, v{vP16}")
                        def g():
                            A(f"s_add_u32 m0, s{sM}, {lbase + r*4096}")
                            return A.vmem(f"buffer_load_dwordx4 v{v2}, {sr(d,4)}, 0 offen nt lds")
                        return g
                    if before and not pl: before()
                    if r == 0: A(f"v_lshlrev_b32 v{vP16}, 4, v0"); A(f"v_mul_u32_u24 v{vMul}, {magic}, v0")
                    else: A(f"v_add_u32 v{vP16}, 0x1000, v{vP16}"); A(f"v_add_u32 v{vMul}, {magic*256}, v{vMul}")
                    A(f"s_movk_i32 s{sC}, {rowpad}")
                    A(f"v_lshrrev_b32 v{vo}, 16, v{vMul}")
                    A(f"s_add_u32 m0, s{sM}, {lbase + r*4096}")
                    A(f"v_mad_u32_u24 v{vo}, v{vo}, s{sC}, v{vP16}")
                    if before and pl: before()
                    q = A.vmem(f"buffer_load_dwordx4 v{vo}, {sr(d,4)}, 0 offen nt lds")
                if lt and r == 5: A.vm[q].light = True
                if r == rounds - 1: V.put(vP16); V.put(vMul); V.put(vo)
                return q
            return f
        return [mk(r) for r in range(rounds)]
    w1q = ragged(dW1, L_W1, 6, 7282, 9072); lastA = [None]
    V.put(vWq); V.put(vX); V.put(vPa, 2)
    stamp()
    C("K / V window of (batch, kv head); the four splits interleave in 16 KB pieces")
    GAP = 3 << sb; VAL = 0x7f000 & ~GAP
    A(f"s_and_b32 s{sB}, s{sG}, 3"); A(f"s_lshr_b32 s{sHKV}, s{sG}, 2")
    A(f"s_lshl4_add_u32 s{sT0}, s{sB}, s{sHKV}"); A(f"s_lshl_b32 s{sT0}, s{sT0}, 21")
    A(f"s_lshl_b32 s{sT1}, s{sS}, {sb}"); A(f"s_add_u32 s{sT0}, s{sT0}, s{sT1}"); A(f"s_add_u32 s{sT0}, s{sT0}, {6144*256}")
    srd(dK, pK, sT0, VAL + 4096); srd(dV, pV, sT0, VAL + 4096)
    A(f"s_lshl2_add_u32 s{sBOX}, s{sG}, s{sS}")
    C("start block of the walk over this workgroup's 32 blocks of 16 keys (spreads the load over the memory channels)")
    A(f"s_mov_b32 s{sRot}, 0")
    for w, bit in zip(rc, (5, 6, 7, 4, 2, 3, 0, 1)):
        if w: A(f"s_bitcmp1_b32 s{sBOX}, {bit}"); A(f"s_cselect_b32 s{sT1}, {w}, 0"); A(f"s_add_u32 s{sRot}, s{sRot}, s{sT1}")
    if rtab: A("s_waitcnt lgkmcnt(0)"); A(f"s_mov_b32 s{sRot}, s100")
    A(f"s_lshl_b32 s{sRot}, s{sRot}, 12"); A(f"s_and_b32 s{sRot}, s{sRot}, 0x1f000")
    A(f"s_and_b32 s{sT1}, s{sRot}, {hex(0x1f000 & ~((1 << sb) - 1))}"); A(f"s_mul_i32 s{sT1}, s{sT1}, 3"); A(f"s_add_u32 s{sRot}, s{sRot}, s{sT1}")
    vG = V.get(); vI = V.get(); vKo = V.get(4); vVo = V.get()
    A(f"v_lshrrev_b32 v{vG}, 4, v{vL}"); A(f"v_and_b32 v{vI}, 15, v{vL}")
    A(f"v_lshlrev_b32 v{vVo}, 4, v0")
    A(f"v_lshlrev_b32 v{t0}, 6, v{vG}"); A(f"v_xor_b32 v{vKo}, v{vVo}, v{t0}")
    for i in range(1, 4): A(f"v_xor_b32 v{vKo+i}, {i*16}, v{vKo}")

    kseq = []; vseq = []; lim = [0]; incomp = [0]
    dyn = [0]; sLo = 26
    def pace(d):
        if DC and incomp[0]: d = DC
        def wait(d):
            k = 0; n = 0
            for x in reversed(A.vm):
                heavy = " nt" in x.text and not getattr(x, "light", False)
                if heavy and k == d - 1: break
                k += heavy; n += 1
            A(f"s_waitcnt vmcnt({n})")
        if 0 < dyn[0] <= nlo:
            A(f"s_cmp_eq_u32 s{sLo}, 0"); A(f"s_cbranch_scc1 L_pa{dyn[0]}"); wait(Dlo); A.label(f"L_pa{dyn[0]}"); dyn[0] += 1
        wait(d)
    def so(j):
        if j == 0: A(f"s_mov_b32 s{sSo}, s{sRot}")
        else: A(f"s_add_u32 s{sSo}, s{sSo}, {hex(GAP + 0x1000)}"); A(f"s_and_b32 s{sSo}, s{sSo}, {hex(VAL)}")
    def pos(): return len(kseq) + len(vseq)
    def step(n=1):
        for _ in range(n):
            if len(kseq) < 32:
                j = len(kseq)
                if pat == 'WK' and w1q: pace(D); lastA[0] = w1q.pop(0)()
                if pat == 'WW' and w1q:
                    for _ in range(2): pace(D); lastA[0] = w1q.pop(0)()
                    continue
                A(f"s_add_u32 m0, s{sM}, {j*4096}"); so(j); pace(D)
                kseq.append(A.vmem(f"buffer_load_dwordx4 v{vKo + (j & 3)}, {sr(dK,4)}, s{sSo} offen nt lds"))
                if pat == 'KW' and w1q: lastA[0] = w1q.pop(0)(lambda: pace(D))
                if pat == 'KWW' and w1q:
                    for _ in range(2): pace(D); lastA[0] = w1q.pop(0)()
            else:
                j = len(vseq)
                so(j); pace(DV)
                vseq.append(A.vmem(f"buffer_load_dwordx4 {ar(4*j,4)}, v{vVo}, {sr(dV,4)}, s{sSo} offen nt"))
    def auto():
        incomp[0] = 1
        if pos() < lim[0]: step(1)
        incomp[0] = 0
    def allred_rows(v, t, op):
        A(f"v_mov_b32 v{t}, v{v}"); A(f"v_permlane16_swap_b32 v{v}, v{t}"); A(f"{op} v{v}, v{v}, v{t}")
        A(f"v_mov_b32 v{t}, v{v}"); A(f"v_permlane32_swap_b32 v{v}, v{t}"); A(f"{op} v{v}, v{v}, v{t}")
    def allred64(v, t):
        for k in (8, 4, 2, 1): A(f"v_add_f32_dpp v{v}, v{v}, v{v} row_ror:{k} row_mask:0xf bank_mask:0xf")
        allred_rows(v, t, "v_add_f32")
    def unpack(dst, src, n):
        for k in range(n): A(f"v_and_b32 v{dst+2*k+1}, 0xffff0000, v{src+k}"); A(f"v_lshlrev_b32 v{dst+2*k}, 16, v{src+k}")
    def pk_sub(d, a, b): A(f"v_pk_add_f32 {vr(d,2)}, {vr(a,2)}, {vr(b,2)} op_sel_hi:[1,0] neg_lo:[0,1] neg_hi:[0,1]")
    def pk_scale(d, a, b): A(f"v_pk_mul_f32 {vr(d,2)}, {vr(a,2)}, {vr(b,2)} op_sel_hi:[1,0]")

    def srdW():
        A(f"s_mul_i32 s{sT1}, s{sS}, 288")
        A(f"s_mul_i32 s{sT0}, s{sG}, {72*1152}"); A(f"s_add_u32 s{sT0}, s{sT0}, s{sT1}"); srd(dW2, pW2, sT0, 71 * 1152 + 288)
        A(f"s_mul_i32 s{sT0}, s{sG}, {64*1152}"); A(f"s_add_u32 s{sT0}, s{sT0}, s{sT1}"); srd(dWO, pWO, sT0, 63 * 1152 + 288)
    step(1)
    A("s_waitcnt lgkmcnt(0)")
    A(f"s_load_dword s{sE}, s[{pWS}:{pWS+1}], 0")
    if probe2:
        A("s_lshr_b32 s100, s2, 3"); A(f"s_or_b32 s100, s100, s{sW}"); A("s_cbranch_scc1 L_pr2"); A(f"s_mov_b32 s100, s{sSt}")
        if probe2 is True: A("s_atomic_add s100, s[14:15], 0")
        elif probe2 == "skew":
            A("s_not_b32 s101, s100"); A("s_atomic_umax s100, s[14:15], 0"); A("s_atomic_umax s101, s[14:15], 4")
        else:
            A(f"s_sub_u32 s101, 0, s100"); A(f"s_bitcmp1_b32 {probe2}, s2"); A("s_cselect_b32 s100, s100, s101"); A("s_atomic_add s100, s[14:15], 0")
        A.label("L_pr2")
    srd(dWS, pWS, None, 0x800000 if stamps else WS_AC + 192 * 128)
    A(f"s_mov_b32 s{sMode}, {1 if force1 else 0}"); A(f"s_mov_b32 s{sIt}, 0")
    step(n0 - 1)
    C("layer norm of batch w, lanes 0..35 hold 16 values each; bf16 roundings as in the reference")
    A.wait_vm(x1)
    stamp()
    A.cyc = 0; KA = {'KW': 6, 'WK': 5, 'WW': 0, 'KWW': 3}[pat]; lim[0] = D + KA; A.auto = auto
    xf = V.get(16); d16 = V.get(16); p2 = V.get(2); pm = V.get(2)
    unpack(xf, xr, 8)
    A(f"v_pk_add_f32 {vr(p2,2)}, {vr(xf,2)}, {vr(xf+2,2)}")
    for k in range(2, 8): A(f"v_pk_add_f32 {vr(p2,2)}, {vr(p2,2)}, {vr(xf+2*k,2)}")
    A(f"v_add_f32 v{pm}, v{p2}, v{p2+1}")
    allred64(pm, t0)
    A(f"v_mul_f32 v{pm}, {hex(f2u(1/576))}, v{pm}")
    for k in range(8): pk_sub(d16 + 2 * k, xf + 2 * k, pm)
    A(f"v_pk_mul_f32 {vr(p2,2)}, {vr(d16,2)}, {vr(d16,2)}")
    for k in range(1, 8): A(f"v_pk_fma_f32 {vr(p2,2)}, {vr(d16+2*k,2)}, {vr(d16+2*k,2)}, {vr(p2,2)}")
    A(f"v_cmp_gt_u32 vcc, 36, v{vL}"); A(f"v_add_f32 v{t1}, v{p2}, v{p2+1}"); A(f"v_cndmask_b32 v{t1}, 0, v{t1}, vcc")
    allred64(t1, t0)
    A(f"v_mul_f32 v{t1}, {hex(f2u(1/576))}, v{t1}")
    A(f"v_cvt_pk_bf16_f32 v{t0}, v{pm}, v{t1}")
    A(f"v_lshlrev_b32 v{pm}, 16, v{t0}"); A(f"v_and_b32 v{t1}, 0xffff0000, v{t0}")
    A(f"v_add_f32 v{t1}, {hex(f2u(1e-5))}, v{t1}")
    A(f"v_cvt_pk_bf16_f32 v{t1}, v{t1}, v{t1}"); A(f"v_lshlrev_b32 v{t1}, 16, v{t1}")
    A(f"v_sqrt_f32 v{t1}, v{t1}")
    A(f"v_cvt_pk_bf16_f32 v{t1}, v{t1}, v{t1}"); A(f"v_lshlrev_b32 v{t1}, 16, v{t1}")
    A(f"v_rcp_f32 v{p2}, v{t1}")
    for k in range(8): pk_sub(d16 + 2 * k, xf + 2 * k, pm)
    for k in range(8): A(f"v_cvt_pk_bf16_f32 v{xr+k}, v{d16+2*k}, v{d16+2*k+1}")
    unpack(xf, xr, 8)
    for k in range(8): pk_scale(xf + 2 * k, xf + 2 * k, p2)
    for k in range(8): A(f"v_cvt_pk_bf16_f32 v{xr+k}, v{xf+2*k}, v{xf+2*k+1}")
    A(f"s_mul_i32 s{sT0}, s{sS}, 9"); A(f"s_sub_u32 s{sT1}, s{sW}, s{sS}"); A(f"s_mul_i32 s{sT1}, s{sT1}, 288"); A(f"s_add_u32 s{sT1}, s{sT1}, {L_XN}")
    A(f"v_lshl_add_u32 v{t0}, v{vL}, 5, s{sT1}")
    with quiet():
        A(f"s_lshl_b64 exec, 0x1ff, s{sT0}")
        A(f"ds_write_b128 v{t0}, {vr(xr,4)}"); A(f"ds_write_b128 v{t0}, {vr(xr+4,4)} offset:16")
        A("s_mov_b64 exec, -1")
    V.put(xf, 16); V.put(d16, 16); V.put(p2, 2); V.put(pm, 2)
    A("s_waitcnt lgkmcnt(0)")
    V.put(xr, 8)
    C("tags of this launch; first value of the arrival counts")
    vT1 = V.get(); vT2 = V.get()
    A(f"s_add_u32 s{sE}, s{sE}, 1"); A(f"s_mul_i32 s{sT0}, s{sE}, 0x9E3779B1")
    A(f"s_getreg_b32 s{sT1}, hwreg(HW_REG_XCC_ID, 0, 4)"); A(f"s_lshl_b32 s{sT1}, s{sT1}, 28")
    A(f"s_add_u32 s{sT2}, s{sT0}, 0x4a3c5e12"); A(f"s_xor_b32 s{sT0}, s{sT0}, s{sT1}")
    A(f"v_mov_b32 v{vT1}, s{sT0}"); A(f"v_mov_b32 v{vT2}, s{sT2}")
    A(f"s_lshl_b32 s{sS0}, s{sE}, 8"); A(f"s_and_b32 s{sS0}, s{sS0}, 0x7fff00"); A(f"s_or_b32 s{sS0}, s{sS0}, 0x4b000000")
    if not lateinit and ipos == 0: initacc()
    if prime:
        with quiet():
            A(f"s_mul_i32 s{sT0}, s{sBOX}, {BOX}"); A(f"s_add_u32 s{sT0}, s{sT0}, {WS_BOX}")
            A(f"v_lshl_add_u32 v{t0}, v0, 7, s{sT0}"); A(f"v_cmp_gt_u32 vcc, 18, v0"); A(f"v_mov_b32 v{t1}, {hex(OOB)}")
            A(f"v_cndmask_b32 v{t0}, v{t1}, v{t0}, vcc")
            A.vmem(f"buffer_load_dword v{vJ}, v{t0}, {WS}, 0 offen sc1")
    for r in range(4): A(f"s_mov_b32 s{sSel+r}, {hex(0x07060500 + r)}")
    A(f"s_mov_b32 s{sSelA}, 0x0c0c0400"); A(f"s_mov_b32 s{sSelB}, 0x04000c0c")
    def lanemask(s_, m): A(f"s_mov_b32 s{s_}, {hex(m)}"); A(f"s_mov_b32 s{s_+1}, {hex(m)}")
    lanemask(sU1, 0x00f000f0); lanemask(sU2, 0x0f000f00)
    A(f"s_mov_b32 s{sSpin}, {spin}")
    def tag(v, vT):
        for r in range(4): A(f"v_perm_b32 v{v+r}, v{v+r}, v{vT}, s{sSel+r}")
    def chk(v, dst, vT):
        A(f"v_perm_b32 v{t0}, v{v+1}, v{v}, s{sSelA}"); A(f"v_perm_b32 v{t1}, v{v+3}, v{v+2}, s{sSelB}")
        A(f"v_or_b32 v{t0}, v{t0}, v{t1}"); A(f"v_cmp_ne_u32 {dst}, v{t0}, v{vT}")
    def untag(d, v):
        for r in range(4): A(f"v_and_b32 v{d+r}, 0xffffff00, v{v+r}")
    def tred(v):
        A(f"v_permlane32_swap_b32 v{v}, v{v+2}"); A(f"v_permlane32_swap_b32 v{v+1}, v{v+3}")
        A(f"v_add_f32 v{v}, v{v}, v{v+2}"); A(f"v_add_f32 v{v+1}, v{v+1}, v{v+3}")
        A(f"v_permlane16_swap_b32 v{v}, v{v+1}"); A(f"v_add_f32 v{v}, v{v}, v{v+1}")
    C("addresses of the projection stage")
    vB3 = V.get(); vQ4 = V.get()
    A(f"v_and_b32 v{vB3}, 3, v{vL}"); A(f"v_lshrrev_b32 v{vQ4}, 2, v{vL}")
    aXb = V.get(); aWq = V.get(); aW1 = V.get(); aW1h = V.get(); aH1 = V.get()
    A(f"v_mul_u32_u24 v{aXb}, 288, v{vB3}"); A(f"v_lshl_add_u32 v{aXb}, v{vG}, 3, v{aXb}"); A(f"v_add_u32 v{aXb}, {L_XN}, v{aXb}")
    A(f"s_lshl_b32 s{sT0}, s{sW}, 5"); A(f"v_lshlrev_b32 v{t2}, 3, v{vB3}")
    A(f"v_lshl_add_u32 v{aWq}, v{vQ4}, 7, v{t2}"); A(f"s_add_u32 s{sT1}, s{sT0}, {L_WQ}"); A(f"v_add_u32 v{aWq}, s{sT1}, v{aWq}")
    A(f"v_mul_u32_u24 v{aW1h}, 144, v{vQ4}"); A(f"v_add_u32 v{aW1h}, v{aW1h}, v{t2}"); A(f"v_add_u32 v{aW1h}, {L_W1}, v{aW1h}")
    A(f"v_add_u32 v{aW1}, s{sT0}, v{aW1h}")
    A(f"s_lshl_b32 s{sT0}, s{sW}, 6"); A(f"v_lshlrev_b32 v{t2}, 4, v{vG}")
    A(f"v_lshl_add_u32 v{aH1}, v{vB3}, 8, v{t2}"); A(f"v_add_u32 v{aH1}, s{sT0}, v{aH1}")
    A(f"v_mul_u32_u24 v{t3}, 288, v{vB3}"); A(f"v_add_u32 v{t3}, v{t3}, v{t2}")
    A(f"s_add_u32 s{sT0}, s{sT0}, 1024"); A(f"v_add_u32 v{t0}, s{sT0}, v{t3}")
    A(f"v_cndmask_b32 v{aH1}, v{aH1}, v{t0}, {sr(sU1,2)}")
    A(f"v_add_u32 v{t0}, {1024+256}, v{t3}")
    A(f"v_cndmask_b32 v{aH1}, v{aH1}, v{t0}, {sr(sU2,2)}")
    A(f"s_lshl_b32 s{sT0}, 0x01000100, s{sW}"); A(f"s_or_b32 vcc_lo, s{sT0}, 0x00ff00ff"); A("s_mov_b32 vcc_hi, 0x00ff00ff")
    A(f"s_mul_i32 s{sT0}, s{sBOX}, {BOX}"); A(f"s_add_u32 s{sT0}, s{sT0}, {WS_BOX}")
    A(f"v_add_u32 v{aH1}, s{sT0}, v{aH1}"); A(f"v_mov_b32 v{t0}, {hex(OOB)}"); A(f"v_cndmask_b32 v{aH1}, v{t0}, v{aH1}, vcc")
    while len(kseq) < D + KA: step(1)
    assert not w1q
    A.wait_vm(lastA[0])
    C("B1: wq / w1 tiles and xn are in LDS")
    A("s_barrier")
    step(1); A.cyc = 0; lim[0] = 26
    stamp()
    fr = [V.get(24), V.get(24)]; acc = V.get(12, 4)
    def batchA(bi):
        f = fr[bi & 1]
        for k in range(3):
            st = 3 * bi + k
            A(f"ds_read_b64 {vr(f+8*k,2)}, v{aXb} offset:{st*32}")
            A(f"ds_read_b64_tr_b16 {vr(f+8*k+2,2)}, v{aWq} offset:{st*2048}")
            A(f"ds_read_b64_tr_b16 {vr(f+8*k+4,2)}, v{aW1} offset:{st*2304}")
            A(f"ds_read_b64_tr_b16 {vr(f+8*k+6,2)}, v{aW1h} offset:{st*2304+128}")
    def mfmaA(bi):
        f = fr[bi & 1]
        for k in range(3):
            for tl in range(3):
                c = "0" if (bi == 0 and k == 0) else vr(acc+4*tl, 4)
                A(f"v_mfma_f32_16x16x16_bf16 {vr(acc+4*tl,4)}, {vr(f+8*k+2+2*tl,2)}, {vr(f+8*k,2)}, {c}")
    batchA(0); A("s_waitcnt lgkmcnt(0)")
    batchA(1); mfmaA(0); A("s_waitcnt lgkmcnt(0)")
    A("s_nop 7")
    batchA(2); mfmaA(1); A("s_waitcnt lgkmcnt(0)")
    mfmaA(2)
    o4 = V.get(4, 4)
    for r in range(4): A(f"v_cndmask_b32 v{o4+r}, v{acc+r}, v{acc+4+r}, {sr(sU1,2)}")
    for r in range(4): A(f"v_cndmask_b32 v{o4+r}, v{o4+r}, v{acc+8+r}, {sr(sU2,2)}")
    for r in range(4): A(f"v_add_u32 v{o4+r}, 0x80, v{o4+r}")
    tag(o4, vT1)
    A.vmem(f"buffer_store_dwordx4 {vr(o4,4)}, v{aH1}, {WS}, 0 offen")
    stamp()
    V.put(fr[0], 24); V.put(fr[1], 24); V.put(acc, 12)
    for r in (aXb, aWq, aW1, aW1h): V.put(r)
    step(1)
    assert len(kseq) <= 27
    C("B1b: the wq staging area may be overwritten by K")
    A("s_barrier")
    V.put(aH1); V.put(o4, 4)
    lim[0] = GK
    C("addresses of everything later, in the shadow of the K stream")
    aGq = V.get(); aGh = V.get(); aGh2 = V.get()
    A(f"v_mul_u32_u24 v{t2}, {BOX}, v{vG}"); A(f"v_lshl_add_u32 v{t2}, v{vI}, 4, v{t2}")
    A(f"s_lshl2_add_u32 s{sT0}, s{sHKV}, s{sW}"); A(f"s_mul_i32 s{sT0}, s{sT0}, {4*BOX}"); A(f"s_lshl_b32 s{sT1}, s{sB}, 8"); A(f"s_add_u32 s{sT0}, s{sT0}, s{sT1}"); A(f"s_add_u32 s{sT0}, s{sT0}, {WS_BOX}")
    A(f"v_add_u32 v{aGq}, s{sT0}, v{t2}")
    A(f"s_mul_i32 s{sT0}, s{sG}, {4*BOX}"); A(f"s_mul_i32 s{sT1}, s{sW}, 288"); A(f"s_add_u32 s{sT0}, s{sT0}, s{sT1}"); A(f"s_add_u32 s{sT0}, s{sT0}, {WS_BOX+1024}")
    A(f"v_add_u32 v{aGh}, s{sT0}, v{t2}")
    A(f"v_cmp_gt_u32 vcc, 2, v{vI}"); A(f"v_add_u32 v{aGh2}, 256, v{aGh}"); A(f"v_mov_b32 v{t0}, {hex(OOB)}")
    A(f"v_cndmask_b32 v{aGh2}, v{t0}, v{aGh2}, vcc")
    vM = V.get(4)
    A(f"v_and_b32 v{t0}, 1, v{vL}"); A(f"v_lshlrev_b32 v{t0}, 4, v{t0}"); A(f"v_mov_b32 v{t1}, 0xffff"); A(f"v_lshlrev_b32 v{t1}, v{t0}, v{t1}")
    A(f"v_bfe_u32 v{t0}, v{vL}, 1, 2")
    for k in range(4): A(f"v_cmp_eq_u32 vcc, {k}, v{t0}"); A(f"v_cndmask_b32 v{vM+k}, 0, v{t1}, vcc")
    aQw = V.get(); aHw = V.get(); aQr = V.get(); aKr = V.get(4)
    A(f"v_lshl_add_u32 v{t0}, v{vI}, 2, v{vG}"); A(f"v_lshlrev_b32 v{t0}, 1, v{t0}")
    A(f"s_lshl_b32 s{sT0}, s{sW}, 7"); A(f"s_add_u32 s{sT0}, s{sT0}, {L_Q}"); A(f"v_add_u32 v{aQw}, s{sT0}, v{t0}")
    A(f"s_mul_i32 s{sT0}, s{sW}, 160"); A(f"s_add_u32 s{sT0}, s{sT0}, {L_H}"); A(f"v_add_u32 v{aHw}, s{sT0}, v{t0}")
    A(f"v_lshrrev_b32 v{t0}, 3, v{vI}"); A(f"v_lshlrev_b32 v{t0}, 8, v{t0}"); A(f"v_lshl_add_u32 v{aQr}, v{vG}, 4, v{t0}"); A(f"v_add_u32 v{aQr}, {L_Q}, v{aQr}")
    A(f"v_xor_b32 v{t0}, v{vG}, v{vI}"); A(f"v_lshlrev_b32 v{t0}, 4, v{t0}")
    A(f"v_lshl_add_u32 v{t0}, v{vB3}, 12, v{t0}"); A(f"v_lshrrev_b32 v{t1}, 2, v{vI}"); A(f"v_lshl_add_u32 v{t0}, v{t1}, 8, v{t0}")
    A(f"v_add_u32 v{aKr}, s{sM}, v{t0}")
    for k in range(1, 4): A(f"v_xor_b32 v{aKr+k}, {k*64}, v{aKr}")
    aOPw = V.get(); aOPr = V.get(); aH2 = V.get(); aG2 = V.get(); aGm = V.get(); aOw = V.get(); aOr = V.get(); aHr = V.get()
    aW = V.get(); aAc = V.get(); aOut = V.get(); xr2 = V.get(2)
    A(f"v_lshrrev_b32 v{t0}, 1, v{vG}"); A(f"v_lshlrev_b32 v{t0}, 9, v{t0}"); A(f"v_lshl_add_u32 v{t0}, v{vI}, 5, v{t0}")
    A(f"v_and_b32 v{t1}, 1, v{vG}"); A(f"v_lshl_add_u32 v{t0}, v{t1}, 4, v{t0}"); A(f"v_add_u32 v{aOPw}, s{sM}, v{t0}")
    A(f"s_lshl_b32 s{sT1}, s{sW}, 8"); A(f"v_lshl_add_u32 v{aOPr}, v{vI}, 4, s{sT1}")
    A(f"s_mul_i32 s{sT0}, s{sBOX}, {BOX}"); A(f"s_add_u32 s{sT0}, s{sT0}, {WS_BOX}"); A(f"v_add_u32 v{aH2}, s{sT0}, v{aOPr}")
    A(f"v_and_b32 v{t0}, 12, v{vL}"); A(f"v_add_u32 v{t0}, v{t0}, v{vG}"); A(f"v_mul_u32_u24 v{t0}, {BOX}, v{t0}")
    A(f"s_mul_i32 s{sT0}, s{sHKV}, {16*BOX}"); A(f"s_add_u32 s{sT0}, s{sT0}, {WS_BOX}")
    A(f"s_add_u32 s{sT1}, s{sT0}, {MLO}"); A(f"v_add_u32 v{aGm}, s{sT1}, v{t0}")
    A(f"s_lshl2_add_u32 s{sT1}, s{sB}, s{sW}"); A(f"s_lshl_b32 s{sT1}, s{sT1}, 6"); A(f"s_add_u32 s{sT0}, s{sT0}, s{sT1}")
    A(f"v_lshl_add_u32 v{t0}, v{vB3}, 4, v{t0}"); A(f"v_add_u32 v{aG2}, s{sT0}, v{t0}")
    A(f"s_lshr_b32 s{sT0}, s{sW}, 1"); A(f"s_lshl_b32 s{sT0}, s{sT0}, 6"); A(f"s_and_b32 s{sT1}, s{sW}, 1"); A(f"s_lshl3_add_u32 s{sT0}, s{sT1}, s{sT0}"); A(f"s_add_u32 s{sT0}, s{sT0}, {L_O}")
    A(f"v_and_b32 v{t0}, 12, v{vL}"); A(f"v_lshlrev_b32 v{t0}, 5, v{t0}"); A(f"v_lshl_add_u32 v{t0}, v{vB3}, 4, v{t0}"); A(f"v_lshl_add_u32 v{t0}, v{vG}, 1, v{t0}")
    A(f"v_add_u32 v{aOw}, s{sT0}, v{t0}")
    A(f"v_and_b32 v{t1}, 3, v{vQ4}")
    A(f"v_lshlrev_b32 v{t0}, 7, v{t1}"); A(f"v_lshl_add_u32 v{t0}, v{vG}, 4, v{t0}"); A(f"v_add_u32 v{aOr}, {L_O}, v{t0}")
    A(f"v_mul_u32_u24 v{t0}, 160, v{t1}"); A(f"v_lshl_add_u32 v{t0}, v{vG}, 3, v{t0}"); A(f"v_add_u32 v{aHr}, {L_H}, v{t0}")
    A(f"v_mul_u32_u24 v{t0}, 288, v{vQ4}"); A(f"v_lshl_add_u32 v{t0}, v{vB3}, 3, v{t0}")
    A(f"s_mul_i32 s{sT2}, s{sW}, 96"); A(f"s_add_u32 s{sT0}, s{sT2}, {L_WO}"); A(f"v_add_u32 v{aW}, s{sT0}, v{t0}")
    A(f"s_mul_i32 s{sT0}, s{sS}, 3"); A(f"s_add_u32 s{sT0}, s{sT0}, s{sW}"); A(f"s_lshl_b32 s{sT0}, s{sT0}, 11"); A(f"s_add_u32 s{sT0}, s{sT0}, {WS_AC}")
    A(f"v_lshlrev_b32 v{t0}, 9, v{vG}"); A(f"v_lshl_add_u32 v{t0}, v{vI}, 2, v{t0}"); A(f"v_add_u32 v{aAc}, s{sT0}, v{t0}")
    srdW()
    A(f"s_add_u32 s{sT0}, s{sT1}, s{sT2}")
    A(f"v_mul_u32_u24 v{t0}, 1152, v{t1}"); A(f"v_lshl_add_u32 v{t0}, v{vB3}, 5, v{t0}")
    A(f"v_lshl_add_u32 v{t0}, v{vG}, 3, v{t0}"); A(f"v_add_u32 v{aOut}, s{sT0}, v{t0}")
    lanemask(sU1, 0x22222222); lanemask(sU2, 0x44444444); lanemask(sU3, 0x88888888)
    A(f"v_mov_b32 v{t0}, {hex(OOB)}"); A(f"v_cndmask_b32 v{aOut}, v{aOut}, v{t0}, {sr(sU3,2)}")
    C("the residual x enters through the workgroups with g = 0")
    srd(dX, pX, None, 4608); srd(dOUT, pOUT, None, 4608)
    A(f"s_cmp_eq_u32 s{sG}, 0"); A(f"s_cselect_b32 s{dX+2}, s{dX+2}, 0")
    A.vmem(f"buffer_load_dwordx2 {vr(xr2,2)}, v{aOut}, {sr(dX,4)}, 0 offen")
    if not lateinit and ipos == 1: initacc()
    A.auto = None
    while len(kseq) < GK: step(1)
    stamp()
    gq = V.get(4, 4); gh = V.get(4, 4); gh2 = V.get(4, 4); cp = V.get(4, 4); cpa = V.get()
    def gatherH1():
        A.vmem(f"buffer_load_dwordx4 {vr(gq,4)}, v{aGq}, {WS}, 0 offen sc1")
        A.vmem(f"buffer_load_dwordx4 {vr(gh,4)}, v{aGh}, {WS}, 0 offen sc1")
        return A.vmem(f"buffer_load_dwordx4 {vr(gh2,4)}, v{aGh2}, {WS}, 0 offen sc1")
    C("gather the q and h partials")
    g1 = gatherH1()
    step(D)
    A.wait_vm(g1)
    stamp()
    A.label("L_chk1")
    chk(gq, sr(sP, 2), vT1); chk(gh, sr(sP + 2, 2), vT1); chk(gh2, "vcc", vT1)
    A("s_and_b32 vcc_lo, vcc_lo, 0x00030003"); A("s_and_b32 vcc_hi, vcc_hi, 0x00030003")
    A(f"s_or_b64 vcc, vcc, {sr(sP,2)}"); A(f"s_or_b64 vcc, vcc, {sr(sP+2,2)}")
    A("s_cbranch_scc1 L_slow1")
    A.label("L_ok1")
    spinrec(58)
    def copybox(nm):
        C("write this workgroup's valid q / h granules through to memory, for readers on other XCDs")
        A(f"s_mul_i32 s{sT0}, s{sBOX}, {BOX}"); A(f"s_add_u32 s{sT0}, s{sT0}, {WS_BOX}"); A(f"v_lshl_add_u32 v{cpa}, v{vL}, 4, s{sT0}")
        for k in range(3):
            if k == 2: A("s_mov_b64 exec, 0xff")
            A.vmem(f"buffer_load_dwordx4 {vr(cp,4)}, v{cpa}, {WS}, 0 offen offset:{k*1024} sc1")
            A("s_waitcnt vmcnt(0)")
            chk(cp, "vcc", vT1)
            A("s_andn2_b64 exec, exec, vcc"); A(f"s_cbranch_execz L_cp{nm}{k}")
            A.vmem(f"buffer_store_dwordx4 {vr(cp,4)}, v{cpa}, {WS}, 0 offen offset:{k*1024} sc1")
            A.label(f"L_cp{nm}{k}")
            A("s_mov_b64 exec, -1"); A("s_waitcnt vmcnt(0)")
    def slow1():
        A.label("L_slow1"); bounded()
        C("a granule of this launch from another XCD differs from the own tag in the top nibble only")
        A(f"s_mov_b64 {sr(sP,2)}, 0")
        for v in (gq, gh, gh2):
            if v == gh2: A("s_mov_b32 exec_lo, 0x00030003"); A("s_mov_b32 exec_hi, 0x00030003")
            chk(v, sr(sP + 2, 2), vT1)
            A(f"v_xor_b32 v{t0}, v{t0}, v{vT1}"); A(f"v_lshlrev_b32 v{t0}, 4, v{t0}"); A(f"v_cmp_ne_u32 vcc, 0, v{t0}")
            A(f"s_or_b64 {sr(sP,2)}, {sr(sP,2)}, vcc")
            A(f"s_andn2_b64 vcc, {sr(sP+2,2)}, vcc"); A(f"s_cselect_b32 s{sMode}, 1, s{sMode}")
        A("s_mov_b64 exec, -1")
        A(f"s_cmp_eq_u64 {sr(sP,2)}, 0"); A("s_cbranch_scc1 L_ok1")
        A(f"s_add_u32 s{sIt}, s{sIt}, 1"); A(f"s_cmp_lt_u32 s{sIt}, 4"); A("s_cbranch_scc1 L_slow1b")
        copybox("a")
        A.label("L_slow1b")
        gatherH1(); A("s_waitcnt vmcnt(0)"); A("s_branch L_chk1")
    slow.append(slow1)
    def pubstore(nm, text):
        if not (pre and nm == "o"): A(f"s_cmp_lg_u32 s{sMode}, 0")
        A(f"s_cbranch_scc1 L_alt{nm}")
        A.vmem(text)
        A.label(f"L_altb{nm}")
        def alt():
            A.label(f"L_alt{nm}"); A.vmem(text + " sc1"); A("s_nop 1"); A(f"s_branch L_altb{nm}")
        slow.append(alt)
    step(1); A.cyc = 0; lim[0] = 60; A.auto = auto
    for v in (gq, gh, gh2): untag(v, v)
    for v in (gq, gh, gh2): tred(v)
    A(f"v_cvt_pk_bf16_f32 v{gq}, v{gq}, v{gq}"); A(f"ds_write_b16 v{aQw}, v{gq}")
    A(f"s_lshl2_add_u32 s{sT0}, s{sW}, {L_FL}"); A(f"v_mov_b32 v{t2}, s{sT0}"); A(f"v_mov_b32 v{t3}, s{sMode}")
    A(f"ds_write_b32 v{t2}, v{t3}")
    C("silu")
    A(f"v_cvt_pk_bf16_f32 v{t0}, v{gh}, v{gh2}")
    A(f"v_lshlrev_b32 v{gh}, 16, v{t0}"); A(f"v_and_b32 v{gh2}, 0xffff0000, v{t0}")
    for v in (gh, gh2): A(f"v_mul_f32 v{v+1}, {hex(LOG2E | 0x80000000)}, v{v}")
    for v in (gh, gh2): A(f"v_exp_f32 v{v+1}, v{v+1}")
    for v in (gh, gh2): A(f"v_add_f32 v{v+1}, 1.0, v{v+1}")
    for v in (gh, gh2): A(f"v_rcp_f32 v{v+1}, v{v+1}")
    for v in (gh, gh2): A(f"v_mul_f32 v{v}, v{v}, v{v+1}")
    A(f"v_cvt_pk_bf16_f32 v{t0}, v{gh}, v{gh2}")
    A(f"ds_write_b16 v{aHw}, v{t0}")
    with quiet():
        A("s_mov_b32 exec_lo, 0x000f000f"); A("s_mov_b32 exec_hi, 0x000f000f")
        A(f"ds_write_b16_d16_hi v{aHw}, v{t0} offset:128")
        A("s_mov_b64 exec, -1")
    step(1); A.cyc = 0
    A("s_waitcnt lgkmcnt(0)")
    C("B2: q, silu(h) and the placement flags are in LDS")
    A("s_barrier")
    stamp()
    A(f"v_mov_b32 v{t2}, {L_FL}"); A(f"ds_read_b128 {vr(gq,4)}, v{t2}")
    def modecheck():
        with quiet():
            A(f"v_or3_b32 v{t2}, v{gq}, v{gq+1}, v{gq+2}"); A(f"v_or_b32 v{t2}, v{t2}, v{gq+3}")
            A(f"v_readfirstlane_b32 s{sMode}, v{t2}")
            A(f"s_cmp_lg_u32 s{sMode}, 0"); A("s_cbranch_scc1 L_mode1")
            A.label("L_mode1b")
        def mode1(): A.label("L_mode1"); copybox("b"); A("s_branch L_mode1b")
        slow.append(mode1)
    V.put(aQw); V.put(aHw)
    C("scores: lane (g', n) register 4 t + r = key row g' of round 4 t + r, head n >> 3")
    qf = V.get(16, 4); kf = [V.get(16, 4), V.get(16, 4)]; S = V.get(32, 4)
    for st in range(4): A(f"ds_read_b128 {vr(qf+4*st,4)}, v{aQr} offset:{st*64}")
    def rdK(t):
        if 4 * t + 3 >= GK:
            while pos() < 4 * t + 3 + D: step(1); A.cyc = 0
            A.wait_vm(kseq[4 * t + 3])
        if t == 4:
            for k in range(4): A(f"v_add_u32 v{aKr+k}, 0x10000, v{aKr+k}")
        for st in range(4): A(f"ds_read_b128 {vr(kf[t&1]+4*st,4)}, v{aKr+st} offset:{(t&3)*16384}")
    rdK(0)
    for t in range(8):
        if t < 7: rdK(t + 1); A("s_waitcnt lgkmcnt(4)")
        else: A("s_waitcnt lgkmcnt(0)")
        for st in range(4):
            c = "0" if st == 0 else vr(S+4*t, 4)
            A(f"v_mfma_f32_16x16x32_bf16 {vr(S+4*t,4)}, {vr(kf[t&1]+4*st,4)}, {vr(qf+4*st,4)}, {c}")
        if t < 7: A("s_nop 3")
        if t == 0: modecheck()
    V.put(qf, 16); V.put(kf[0], 16); V.put(kf[1], 16); V.put(aQr); V.put(aKr, 4); V.put(vKo, 4)
    for v in (gq, gh, gh2, cp): V.put(v, 4)
    V.put(cpa)
    pc = V.get(2); tp = V.get(8); ml = V.get(2); pl = V.get(2)
    A(f"v_mov_b32 v{pc}, {hex(SCALE)}")
    for h in range(2):
        for k in range(8): A(f"v_cvt_pk_bf16_f32 v{tp+k}, v{S+16*h+2*k}, v{S+16*h+2*k+1}")
        unpack(S + 16 * h, tp, 8)
        for k in range(8): pk_scale(S + 16 * h + 2 * k, S + 16 * h + 2 * k, pc)
        for k in range(8): A(f"v_cvt_pk_bf16_f32 v{tp+k}, v{S+16*h+2*k}, v{S+16*h+2*k+1}")
        unpack(S + 16 * h, tp, 8)
    A(f"v_max_f32 v{ml}, v{S}, v{S+1}")
    for k in range(1, 16): A(f"v_max3_f32 v{ml}, v{S+2*k}, v{S+2*k+1}, v{ml}")
    allred_rows(ml, t0, "v_max_f32")
    A(f"v_mov_b32 v{pc}, {hex(LOG2E)}")
    for k in range(16): pk_sub(S + 2 * k, S + 2 * k, ml)
    for k in range(16): pk_scale(S + 2 * k, S + 2 * k, pc)
    for k in range(32): A(f"v_exp_f32 v{S+k}, v{S+k}")
    A(f"v_pk_add_f32 {vr(pl,2)}, {vr(S,2)}, {vr(S+2,2)}")
    for k in range(2, 16): A(f"v_pk_add_f32 {vr(pl,2)}, {vr(pl,2)}, {vr(S+2*k,2)}")
    A(f"v_add_f32 v{ml+1}, v{pl}, v{pl+1}")
    allred_rows(ml + 1, t0, "v_add_f32")
    A(f"s_lshl_b32 s{sT0}, s{sW}, 4"); A(f"s_add_u32 s{sT0}, s{sT0}, {L_ML}")
    A(f"v_and_b32 v{t0}, 8, v{vL}"); A(f"v_add_u32 v{t0}, s{sT0}, v{t0}")
    A(f"ds_write_b64 v{t0}, {vr(ml,2)}")
    for k in range(32): A(f"v_cvt_pk_bf16_f32 v{S+k}, v{S+k}, v{S+k}")
    A("s_waitcnt lgkmcnt(0)")
    C("B3: K is consumed, the waves' (max, sum) are in LDS")
    A("s_barrier")
    stamp()
    A(f"v_lshrrev_b32 v{t0}, 5, v{vL}"); A(f"v_lshlrev_b32 v{t0}, 3, v{t0}"); A(f"v_add_u32 v{t1}, s{sT0}, v{t0}"); A(f"v_add_u32 v{t0}, {L_ML}, v{t0}")
    for k in range(4): A(f"ds_read_b64 {vr(tp+2*k,2)}, v{t0} offset:{16*k}")
    A(f"ds_read_b32 v{pl}, v{t1}")
    A("s_waitcnt lgkmcnt(0)")
    vF = V.get(2); g4 = V.get(4, 4)
    A(f"v_max3_f32 v{g4}, v{tp}, v{tp+2}, v{tp+4}"); A(f"v_max_f32 v{g4}, v{g4}, v{tp+6}")
    for r in (tp, tp + 2, tp + 4, tp + 6, pl): A(f"v_sub_f32 v{r}, v{r}, v{g4}")
    for r in (tp, tp + 2, tp + 4, tp + 6, pl): A(f"v_mul_f32 v{r}, {hex(LOG2E)}, v{r}")
    for r in (tp, tp + 2, tp + 4, tp + 6): A(f"v_exp_f32 v{r}, v{r}")
    A(f"v_exp_f32 v{vF}, v{pl}")
    A(f"v_mul_f32 v{g4+1}, v{tp}, v{tp+1}")
    for k in range(1, 4): A(f"v_fmac_f32 v{g4+1}, v{tp+2*k}, v{tp+2*k+1}")
    A(f"v_mov_b32 v{g4+2}, v{g4}"); A(f"v_mov_b32 v{g4+3}, v{g4+1}")
    A(f"v_permlane32_swap_b32 v{g4}, v{g4+2}"); A(f"v_permlane32_swap_b32 v{g4+1}, v{g4+3}")
    tag(g4, vT2)
    A(f"s_mul_i32 s{sT0}, s{sBOX}, {BOX}"); A(f"s_add_u32 s{sT1}, s{sT0}, {WS_BOX+MLO}")
    A(f"v_cmp_gt_u32 vcc, 8, v0"); A(f"v_mov_b32 v{t0}, {hex(OOB)}"); A(f"v_lshl_add_u32 v{t1}, v0, 4, s{sT1}")
    A(f"v_cndmask_b32 v{t0}, v{t0}, v{t1}, vcc")
    A.auto = None
    C("publish the workgroup's (max, sum) of both heads")
    pubstore("m", f"buffer_store_dwordx4 {vr(g4,4)}, v{t0}, {WS}, 0 offen")
    V.put(pc, 2); V.put(tp, 8); V.put(ml, 2); V.put(pl, 2)
    print("V rounds issued at the end of the softmax:", len(vseq), file=sys.stderr)
    oacc = V.get(4, 4); NQ = 8; aq = V.get(4 * NQ, 4)
    built = [0]; done = [0]
    def build(n):
        for _ in range(n):
            j = built[0]
            if j >= 32: return
            assert j - done[0] < NQ
            for k in range(4): A(f"v_and_b32 v{aq+4*(j%NQ)+k}, v{S+j}, v{vM+k}")
            built[0] += 1
    def pv():
        j = done[0]
        assert built[0] > j
        A.wait_vm(vseq[j])
        A(f"v_mfma_f32_16x16x32_bf16 {vr(oacc,4)}, {vr(aq+4*(j%NQ),4)}, {ar(4*j,4)}, {'0' if j == 0 else vr(oacc,4)}")
        done[0] += 1
        if done[0] == GM: weights()
    gp = V.get(4, 4); gm = V.get(4, 4); vWg = V.get(2); xc = V.get(4, 4)
    unpack(xc, xr2, 2)
    def gatherO(): return A.vmem(f"buffer_load_dwordx4 {vr(gp,4)}, v{aG2}, {WS}, 0 offen sc1")
    def gatherML(): return A.vmem(f"buffer_load_dwordx4 {vr(gm,4)}, v{aGm}, {WS}, 0 offen sc1")
    gml = [None]
    def weights():
        C("softmax weights of the four splits from the gathered (max, sum)")
        A.wait_vm(gml[0])
        A.label("L_chk2")
        chk(gm, "vcc", vT2)
        A("s_cbranch_vccnz L_slow2")
        spinrec(59)
        def slow2(): A.label("L_slow2"); bounded(); gatherML(); A("s_waitcnt vmcnt(0)"); A("s_branch L_chk2")
        slow.append(slow2)
        A(f"s_cmp_ge_u32 s{sB}, 2"); A("s_cselect_b64 vcc, -1, 0")
        A(f"v_cndmask_b32 v{t2}, v{gm}, v{gm+2}, vcc"); A(f"v_cndmask_b32 v{t3}, v{gm+1}, v{gm+3}, vcc")
        A(f"v_and_b32 v{t2}, 0xffffff00, v{t2}"); A(f"v_and_b32 v{t3}, 0xffffff00, v{t3}")
        A(f"v_mov_b32 v{vWg}, v{t2}"); allred_rows(vWg, t0, "v_max_f32")
        A(f"v_sub_f32 v{t2}, v{t2}, v{vWg}"); A(f"v_mul_f32 v{t2}, {hex(LOG2E)}, v{t2}"); A(f"v_exp_f32 v{t2}, v{t2}")
        A(f"v_mul_f32 v{t3}, v{t2}, v{t3}"); allred_rows(t3, t0, "v_add_f32")
        A(f"v_rcp_f32 v{t3}, v{t3}"); A(f"v_mul_f32 v{vWg}, v{t2}, v{t3}")
    cap = 32 if wi else GM - 1
    if not lateinit and ipos == 2: initacc()
    tail = ragged(dW2, L_W2, 6, 3641, 864) + ragged(dWO, L_WO, 5, 3641, 864); wseq = []
    build(2)
    assert len(vseq) < GM
    pv0 = len(vseq) + pk
    if Dlo and pk == 0: pq = A.vmem(f"buffer_load_dwordx4 {vr(gp,4)}, v{aGm}, {WS}, 0 offen sc1")
    while len(vseq) < 32:
        step(1)
        if Dlo and pk and len(vseq) == pv0: pq = A.vmem(f"buffer_load_dwordx4 {vr(gp,4)}, v{aGm}, {WS}, 0 offen sc1")
        if Dlo and len(vseq) == pv0 + DV:
            A.wait_vm(pq); chk(gp, "vcc", vT2); A(f"s_bcnt1_i32_b64 s{sLo}, vcc"); A(f"s_cmp_ge_u32 s{sLo}, {4*thr}"); A(f"s_cselect_b32 s{sLo}, 1, 0")
            dyn[0] = 1
        if len(vseq) == GM: gml[0] = gatherML()
        if 32 - 2 * wm <= len(vseq) < 32 and len(vseq) % 2 == 0: pace(DV); wseq.append(tail.pop(0)())
        n = 0
        while done[0] < min(len(vseq) - DV - 1, cap) and n < 4: pv(); build(1); n += 1
    dyn[0] = 0
    V.put(g4, 4)
    stamp()
    C("w2 and wo tiles -> LDS behind V")
    w0 = len(wseq)
    while len(tail) > hold:
        wseq.append(tail.pop(0)(lambda: pace(DW)))
        while done[0] < min(32 + len(wseq) - w0 - DW - 1, cap): build(NQ - (built[0] - done[0])); pv()
    if pre:
        assert hold <= 5
        tail = [f(split=True) for f in tail]
    while done[0] < 32:
        build(NQ - (built[0] - done[0])); pv()
    stamp()
    pk_scale(oacc, oacc, vF); pk_scale(oacc + 2, oacc + 2, vF)
    A(f"ds_write_b128 v{aOPw}, {vr(oacc,4)}")
    for _ in range(mid): wseq.append(tail.pop(0)())
    hold -= mid
    if pre: A(f"s_cmp_lg_u32 s{sMode}, 0")
    A("s_waitcnt lgkmcnt(0)")
    C("B4: the waves' o are in LDS; wave w sums and publishes a quarter")
    A("s_barrier")
    V.put(S, 32); V.put(aq, 4 * NQ); V.put(vM, 4)
    r16 = V.get(16, 4)
    A("s_mov_b64 exec, 0xffff")
    for k in range(4): A(f"ds_read_b128 {vr(r16+4*k,4)}, v{aOPr} offset:{L_OP + 1024*k}")
    A("s_waitcnt lgkmcnt(2)")
    for h in range(2): A(f"v_pk_add_f32 {vr(r16+2*h,2)}, {vr(r16+2*h,2)}, {vr(r16+4+2*h,2)}")
    A("s_waitcnt lgkmcnt(0)")
    for h in range(2): A(f"v_pk_add_f32 {vr(r16+8+2*h,2)}, {vr(r16+8+2*h,2)}, {vr(r16+12+2*h,2)}")
    for h in range(2): A(f"v_pk_add_f32 {vr(r16+2*h,2)}, {vr(r16+2*h,2)}, {vr(r16+8+2*h,2)}")
    tag(r16, vT2)
    pubstore("o", f"buffer_store_dwordx4 {vr(r16,4)}, v{aH2}, {WS}, 0 offen")
    A("s_mov_b64 exec, -1")
    stamp()
    g2 = None
    def early():
        if bb: C("all four stores of o are ahead of the first poll"); A("s_barrier")
        return gatherO()
    if pp == 0: g2 = early()
    nb = 0
    while tail:
        if nb >= hb: pace(DW)
        wseq.append(tail.pop(0)()); nb += 1
        if len(tail) == hold - pp and tail: g2 = early()
    hf = V.get(10, 4); w2f = V.get(36, 4); wof = V.get(24, 4); yacc = V.get(12, 4)
    W2D = L_W2 - L_WO
    for st in range(5): A(f"ds_read_b64 {vr(hf+2*st,2)}, v{aHr} offset:{st*32}")
    C("the polls of o overlap: a granule that has turned valid stays valid")
    if pz & 4: pass
    elif g2 is None: g2 = early()
    elif not pz & 2: gatherO()
    A(f"s_cmp_eq_u32 s{sW}, 3")
    A.wait_vm(wseq[5], "lgkmcnt(0)", trust=True)
    C("B5: w2 tile landed")
    A("s_barrier")
    stamp()
    if pz & 4: g2 = gatherO() if pz & 1 else None
    elif pz & 1: gatherO()
    A("s_cbranch_scc1 L_noffn")
    for st in (4, 0, 1, 2, 3):
        for tl in range(3): A(f"ds_read_b64_tr_b16 {vr(w2f+12*tl+2*st,2)}, v{aW} offset:{W2D+st*4608+32*tl}")
    A("s_waitcnt lgkmcnt(12)")
    for tl in range(3): A(f"v_mfma_f32_16x16x16_bf16 {vr(yacc+4*tl,4)}, {vr(w2f+12*tl+8,2)}, {vr(hf+8,2)}, {vr(xc,4)}")
    for st in range(2):
        A(f"s_waitcnt lgkmcnt({6-6*st})")
        for tl in range(3): A(f"v_mfma_f32_16x16x32_bf16 {vr(yacc+4*tl,4)}, {vr(w2f+12*tl+4*st,4)}, {vr(hf+4*st,4)}, {vr(yacc+4*tl,4)}")
    A.label("L_noffn")
    def rd2(tl, st):
        for q in (2 * st, 2 * st + 1): A(f"ds_read_b64_tr_b16 {vr(wof+8*tl+2*q,2)}, v{aW} offset:{q*4608+32*tl}")
    if tc:
        A.wait_vm(wseq[-1]); C("B5b: wo tile landed"); A("s_barrier")
        if tc == 3:
            for st in range(2):
                for tl in range(3): rd2(tl, st)
        if tc == 4:
            for tl in range(3): rd2(tl, 0)
    if pa: A.wait_vm(wseq[-pa]); g2 = gatherO()
    if pb: A.wait_vm(wseq[-pb])
    if inl3:
        A("s_mov_b64 vcc, -1")
        A.label("L_chk3")
        A("s_mov_b64 exec, vcc"); gl = gatherO(); A("s_mov_b64 exec, -1")
        bounded()
        A.wait_vm(gl if g2 is None else g2)
        chk(gp, "vcc", vT2)
        A("s_cbranch_vccnz L_chk3")
        cnt[0] += 1
    else:
        gatherO()
        A.wait_vm(g2)
        stamp()
        A.label("L_chk3")
        chk(gp, "vcc", vT2)
        A("s_cbranch_vccnz L_slow3")
        def slow3():
            A.label("L_slow3"); bounded()
            A("s_mov_b64 exec, vcc"); gatherO(); A("s_mov_b64 exec, -1")
            A("s_waitcnt vmcnt(1)"); A("s_branch L_chk3")
        slow.append(slow3)
    spinrec(60)
    stamp()
    go = V.get(4, 4)
    untag(go, gp); pk_scale(go, go, vWg); pk_scale(go + 2, go + 2, vWg)
    tred(go)
    A(f"v_cvt_pk_bf16_f32 v{go}, v{go}, v{go}")
    A(f"ds_write_b16 v{aOw}, v{go}")
    if lateinit:
        with uncounted(): initacc()
        A("s_waitcnt vmcnt(0)")
    A(f"s_add_u32 s{sT0}, s{sS0}, 63"); A(f"v_mov_b32 v{t2}, s{sT0}"); A(f"v_mov_b32 v{t1}, {hex(OOB)}")
    A(f"s_cmp_eq_u32 s{sW}, 3")
    if tc:
        sts = {1: (0,), 2: (0, 1), 3: (), 4: (1,)}[tc]
        for st in sts:
            for tl in range(3): rd2(tl, st)
        A(f"s_waitcnt lgkmcnt({6 * len(sts)})")
    else: A.wait_vm(wseq[-1], "lgkmcnt(0)")
    C("B6: normalised o and the wo tile are in LDS")
    A("s_barrier")
    A("s_cbranch_scc1 L_fin")
    of = V.get(8, 4)
    def rdq(q):
        for tl in range(3): A(f"ds_read_b64_tr_b16 {vr(wof+8*tl+2*q,2)}, v{aW} offset:{q*4608+32*tl}")
    def mfy(tl, st): A(f"v_mfma_f32_16x16x32_bf16 {vr(yacc+4*tl,4)}, {vr(wof+8*tl+4*st,4)}, {vr(of+4*st,4)}, {vr(yacc+4*tl,4)}")
    if tc:
        for st in range(2): A(f"ds_read_b128 {vr(of+4*st,4)}, v{aOr} offset:{64*st}")
        if tc == 1:
            for tl in range(3): rd2(tl, 1)
        A(f"s_waitcnt lgkmcnt({7 if tc == 1 else 1})")
        for tl in range(3): mfy(tl, 0)
        for tl in range(3):
            if tc == 1 or tl == 0: A(f"s_waitcnt lgkmcnt({4 - 2*tl if tc == 1 else 0})")
            mfy(tl, 1)
    elif t1o == 0:
        for st in range(2): A(f"ds_read_b128 {vr(of+4*st,4)}, v{aOr} offset:{64*st}"); rdq(2 * st); rdq(2 * st + 1)
        for st in range(2):
            A(f"s_waitcnt lgkmcnt({7-7*st})")
            for tl in range(3): mfy(tl, st)
    elif t1o == 1:
        for st in range(2):
            A(f"ds_read_b128 {vr(of+4*st,4)}, v{aOr} offset:{64*st}")
            for tl in range(3): rd2(tl, st)
        for st in range(2):
            for tl in range(3): A(f"s_waitcnt lgkmcnt({11 - 7*st - 2*tl})"); mfy(tl, st)
    else:
        for st in range(2): A(f"ds_read_b128 {vr(of+4*st,4)}, v{aOr} offset:{64*st}")
        for tl in range(3):
            for st in range(2): rd2(tl, st)
        for tl in range(3):
            for st in range(2): A(f"s_waitcnt lgkmcnt({10 - 4*tl - 2*st})"); mfy(tl, st)
    C("add into the accumulators; 63 earlier arrivals mean that the returned value completes the sum")
    own = V.get(4, 4); ret = V.get(4, 4); cur = V.get(); dc = V.get(4)
    def atom(r): return A.vmem(f"buffer_atomic_add_f32 v{ret+r}, v{aAc}, {WS}, 0 offen offset:{128*r} sc0 sc1")
    for rs in {0: ((0, 1, 2, 3),), 1: ((0,), (1,), (2,), (3,)), 2: ((0, 1), (2, 3))}[m2]:
        for r in rs: A(f"v_cndmask_b32 v{own+r}, v{yacc+r}, 1.0, {sr(sU3,2)}")
        for r in rs: A(f"v_cndmask_b32 v{own+r}, v{own+r}, v{yacc+4+r}, {sr(sU1,2)}")
        for r in rs: A(f"v_cndmask_b32 v{ret+r}, v{own+r}, v{yacc+8+r}, {sr(sU2,2)}"); atom(r)
    stamp()
    for r in range(4): A(f"v_cndmask_b32 v{own+r}, v{own+r}, v{yacc+8+r}, {sr(sU2,2)}")
    def arrivals(d, v): A(f"v_sub_u32_dpp v{d}, v{v}, v{t2} quad_perm:[3,3,3,3] row_mask:0xf bank_mask:0xf")
    A("s_waitcnt vmcnt(2)")
    A.label("L_chk4")
    arrivals(dc, ret); arrivals(dc + 1, ret + 1)
    A(f"v_pk_add_f32 {vr(of,2)}, {vr(ret,2)}, {vr(own,2)}")
    A(f"v_or_b32 v{t0}, v{dc}, v{dc+1}")
    A(f"v_cvt_pk_bf16_f32 v{of+4}, v{of}, v{of+1}")
    A("s_waitcnt vmcnt(0)")
    arrivals(dc + 2, ret + 2); arrivals(dc + 3, ret + 3)
    A(f"v_or3_b32 v{t0}, v{t0}, v{dc+2}, v{dc+3}")
    A(f"v_cmp_eq_u32 vcc, 0, v{t0}")
    A(f"v_pk_add_f32 {vr(of+2,2)}, {vr(ret+2,2)}, {vr(own+2,2)}")
    A(f"v_cvt_pk_bf16_f32 v{of+5}, v{of+2}, v{of+3}")
    A(f"v_cndmask_b32 v{of+6}, v{t1}, v{aOut}, vcc")
    A.vmem(f"buffer_store_dwordx2 {vr(of+4,2)}, v{of+6}, {sr(dOUT,4)}, 0 offen")
    stamp()
    A(f"v_min3_u32 v{t3}, v{dc}, v{dc+1}, v{dc+2}"); A(f"v_min_u32 v{t3}, v{t3}, v{dc+3}"); A(f"s_movk_i32 s{sT0}, -63")
    A(f"v_cmp_gt_u32 {sr(sP,2)}, s{sT0}, v{t3}")
    A(f"v_cmp_eq_u32 {sr(sL,2)}, 0, v{dc}")
    A(f"s_andn2_b64 {sr(sP,2)}, {sr(sP,2)}, vcc")
    def singles():
        C("last arrival on some of the four lines only: single elements")
        sQ = 4
        A(f"v_cndmask_b32 v{of+7}, v{t1}, v{aOut}, {sr(sP,2)}")
        for r in range(1, 4): A(f"v_cmp_eq_u32 {sr(sQ+2*r,2)}, 0, v{dc+r}")
        for r in range(4):
            A(f"v_cndmask_b32 v{of+r}, v{t1}, v{of+7}, {sr(sQ+2*r if r else sL,2)}")
            A.vmem(f"buffer_store_short{'_d16_hi' if r & 1 else ''} v{of+4+(r>>1)}, v{of+r}, {sr(dOUT,4)}, 0 offen offset:{2*r}")
        for r in range(4): A(f"v_add_u32 v{dc+r}, 63, v{dc+r}")
        A(f"v_max3_u32 v{t3}, v{dc}, v{dc+1}, v{dc+2}"); A(f"v_max_u32 v{t3}, v{t3}, v{dc+3}")
        A(f"v_cmp_lt_u32 vcc, 63, v{t3}")
    A("s_cbranch_scc0 L_mixedb"); singles(); A("s_cbranch_vccnz L_mixed")
    A.label("L_mixedb")
    def mixed():
        A.label("L_mixed")
        C("an add that reached a line before its initialisation is lost: wait for the initialisation, add again")
        bounded()
        for r in range(4):
            A(f"v_cmp_lt_u32 vcc, 63, v{dc+r}"); A("s_and_b64 exec, exec, vcc"); A(f"s_cbranch_scc0 L_rt{r}")
            A.vmem(f"buffer_load_dword v{cur}, v{aAc}, {WS}, 0 offen offset:{128*r} sc1")
            A("s_waitcnt vmcnt(0)")
            arrivals(t0, cur); A(f"v_add_u32 v{t0}, 63, v{t0}")
            A(f"v_cmp_ge_u32 vcc, 63, v{t0}"); A("s_and_b64 exec, exec, vcc"); A(f"s_cbranch_scc0 L_rt{r}")
            A(f"v_mov_b32 v{ret+r}, v{own+r}"); atom(r)
            A("s_waitcnt vmcnt(0)")
            A.label(f"L_rt{r}")
            A("s_mov_b64 exec, -1")
        A("s_branch L_chk4")
    slow.append(mixed)
    C("the last arrival on the first chunk has seen every workgroup past its read of the epoch word: advance it")
    A(f"s_or_b32 s{sT0}, s{sS}, s{sW}"); A("s_cbranch_scc1 L_fin")
    A(f"s_bitcmp1_b32 s{sL}, 3"); A("s_cbranch_scc0 L_fin")
    A(f"v_mov_b32 v{t0}, s{sE}"); A(f"v_mov_b32 v{t1}, 0"); A("s_mov_b64 exec, 1")
    A.vmem(f"buffer_store_dword v{t0}, v{t1}, {WS}, 0 offen")
    if probe2:
        A("s_waitcnt vmcnt(0)"); A(f"s_memrealtime s[{sSt}:{sSt+1}]"); A("s_mov_b32 s100, 0"); A("s_atomic_add s100, s[14:15], 0 glc"); A("s_waitcnt lgkmcnt(0)")
        if probe2 is True: A(f"s_lshl_b32 s{sT0}, s{sSt}, 3"); A(f"s_sub_u32 s{sT0}, s{sT0}, s100")
        elif probe2 == "skew":
            A("s_mov_b32 s101, 0"); A("s_atomic_add s101, s[14:15], 4 glc"); A("s_waitcnt lgkmcnt(0)")
            A("s_not_b32 s101, s101"); A(f"s_sub_u32 s{sT0}, s100, s101"); A(f"s_mul_i32 s{sT0}, s{sT0}, 40")
        else: A(f"s_mul_i32 s{sT0}, s100, 10"); A(f"s_add_u32 s{sT0}, s{sT0}, 10000")
        A(f"s_min_u32 s{sT0}, s{sT0}, 100000")
        A.label("L_probe")
        A("s_memrealtime s[100:101]"); A("s_waitcnt lgkmcnt(0)"); A(f"s_sub_u32 s100, s100, s{sSt}"); A(f"s_cmp_lt_u32 s100, s{sT0}"); A("s_cbranch_scc1 L_probe")
    A.label("L_fin")
    if stamps:
        A("s_mov_b64 exec, -1"); A("s_waitcnt vmcnt(0)")
        A(f"s_memrealtime s[{sSt}:{sSt+1}]"); A("s_waitcnt lgkmcnt(0)"); A(f"v_writelane_b32 v{vSt}, s{sSt}, 62")
        A(f"v_writelane_b32 v{vSt}, s{sSpin}, 61")
        A(f"s_getreg_b32 s{sSt}, hwreg(HW_REG_XCC_ID, 0, 4)"); A(f"v_writelane_b32 v{vSt}, s{sSt}, 63")
        A(f"s_lshl_b32 s{sT0}, s2, 10"); A(f"s_add_u32 s{sT0}, s{sT0}, {WS_ST}"); A(f"v_lshl_add_u32 v{t0}, v0, 2, s{sT0}")
        if stamps == "tiny":
            A(f"s_lshl2_add_u32 s{sT0}, s2, s{sW}"); A(f"s_lshl3_add_u32 s{sT0}, s{sT0}, {WS_ST}"); A(f"v_lshrrev_b32 v{t0}, 5, v{vL}"); A(f"v_lshl_add_u32 v{t0}, v{t0}, 2, s{sT0}")
            A("s_mov_b32 exec_lo, 1"); A("s_mov_b32 exec_hi, 0x40000000")
        A.vmem(f"buffer_store_dword v{vSt}, v{t0}, {WS}, 0 offen")
    A("s_endpgm")
    C("---- rare paths")
    for f in slow: f()
    A.label("L_end")
    A("s_endpgm")
    acc_off = (V.top + 3) // 4 * 4
    A.raw('.section .rodata,"a"'); A.raw(".p2align 6"); A.raw(f".amdhsa_kernel {NAME}_kernel")
    A.raw(f"  .amdhsa_next_free_vgpr {acc_off + 128}"); A.raw("  .amdhsa_next_free_sgpr 102"); A.raw(f"  .amdhsa_accum_offset {acc_off}")
    A.raw("  .amdhsa_group_segment_fixed_size 0"); A.raw("  .amdhsa_kernarg_size 88"); A.raw("  .amdhsa_user_sgpr_count 2")
    A.raw("  .amdhsa_user_sgpr_kernarg_segment_ptr 1"); A.raw("  .amdhsa_system_sgpr_workgroup_id_x 1"); A.raw(".end_amdhsa_kernel")
    return A.text()

if __name__ == "__main__":
    kw = eval("dict(" + (sys.argv[2] if len(sys.argv) > 2 else "") + ")")
    open(sys.argv[1], "w").write(gen(**kw))
```
